```python
import torch

def _softmax(x, axis=-1):
    return torch.softmax(x, dim=axis)
def _gelu(x):
    return torch.nn.functional.gelu(x, approximate="tanh")
def _silu(x):
    return torch.nn.functional.silu(x)
def _sigmoid(x):
    return torch.sigmoid(x)
def _layernorm(x, axis=-1, eps=1e-5):
    m = x.mean(dim=axis, keepdim=True)
    v = x.var(dim=axis, keepdim=True, unbiased=False)
    return (x - m) / torch.sqrt(v + eps)
def _scatter_add(tgt, idx, src, axis=0):
    return tgt.clone().index_add_(axis, idx, src)
def _segment_sum(src, seg, n):
    out = torch.zeros((n,) + src.shape[1:], dtype=src.dtype)
    return out.index_add_(0, seg, src)
def _pad(x, pw):
    flat = tuple(v for pair in reversed(pw) for v in pair)
    return torch.nn.functional.pad(x, flat)

kernel_name = 'parallel_sum__linear_kernel_hedgehog__geglu_ffn__prompt'

def setup_inputs():

    _w = (lambda a: (lambda t: t.to(torch.bfloat16) if t.is_floating_point() else t)(torch.as_tensor(a)))
    def _A_setup():
        B, S, D, H = 1, 2048, 1024, 32
        Dh = D // H
        return {
            "x": _w((lambda *s: torch.randn(*s, dtype=torch.bfloat16) * 0.05)(B, S, D)),
            "wqkv": _w((lambda *s: torch.randn(*s, dtype=torch.bfloat16) * 0.8)(D, 3 * D)),
            "w_phi": _w((lambda *s: torch.randn(*s, dtype=torch.bfloat16) * 0.8)(H, Dh, Dh) * (Dh ** -0.5)),
            "wo": _w((lambda *s: torch.randn(*s, dtype=torch.bfloat16) * 0.2)(D, D)),
        }
    _A_in = _A_setup()

    def _B_setup():
        B, S, D, F = 1, 2048, 1024, 3584
        return {
            "x": _w((lambda *s: torch.randn(*s, dtype=torch.bfloat16) * 0.05)(B, S, D)),
            "w_gate": _w((lambda *s: torch.randn(*s, dtype=torch.bfloat16) * 0.05)(D, F)),
            "w_up": _w((lambda *s: torch.randn(*s, dtype=torch.bfloat16) * 0.05)(D, F)),
            "w_down": _w((lambda *s: torch.randn(*s, dtype=torch.bfloat16) * 0.05)(F, D)),
        }
    _B_in = _B_setup()

    return {
        "A_x": _A_in["x"],
        "A_wqkv": _A_in["wqkv"],
        "A_w_phi": _A_in["w_phi"],
        "A_wo": _A_in["wo"],
        "B_x": _B_in["x"],
        "B_w_gate": _B_in["w_gate"],
        "B_w_up": _B_in["w_up"],
        "B_w_down": _B_in["w_down"],
    }

def reference(A_x, A_wqkv, A_w_phi, A_wo, B_x, B_w_gate, B_w_up, B_w_down):
    def _A_ref(x, wqkv, w_phi, wo):
        B, S, D = x.shape
        H = 32; Dh = D // H
        qkv = (lambda x, *d: x.permute(*d))((x @ wqkv).reshape(B, S, 3, H, Dh), 2, 0, 3, 1, 4)
        q, k, v = qkv[0], qkv[1], qkv[2]
        pq = torch.einsum("bhsd,hdf->bhsf", q, w_phi)
        pk = torch.einsum("bhsd,hdf->bhsf", k, w_phi)
        phi_q = torch.concatenate([_softmax(pq, axis=-1), _softmax(-pq, axis=-1)], axis=-1)
        phi_k = torch.concatenate([_softmax(pk, axis=-1), _softmax(-pk, axis=-1)], axis=-1)
        kv = torch.einsum("bhsf,bhsd->bhfd", phi_k, v)
        z  = torch.einsum("bhsf->bhf", phi_k)
        num = torch.einsum("bhqf,bhfd->bhqd", phi_q, kv)
        den = torch.einsum("bhqf,bhf->bhq", phi_q, z)[..., None] + 1e-6
        o = num / den
        return (lambda x, *d: x.permute(*d))(o, 0, 2, 1, 3).reshape(B, S, D) @ wo

    def _B_ref(x, w_gate, w_up, w_down):
        return (_gelu(x @ w_gate) * (x @ w_up)) @ w_down

    x = A_x
    xn = _layernorm(x, axis=-1)
    return x + _A_ref(xn, A_wqkv, A_w_phi, A_wo) + _B_ref(xn, B_w_gate, B_w_up, B_w_down)
```

```python
import re

class Asm:
    def __init__(self):
        self.lines = []
    def __call__(self, s):
        for l in s.split("\n"):
            l = l.strip()
            if l:
                self.lines.append(l)
    def label(self, n):
        self.lines.append(n + ":")
    def c(self, s):
        self.lines.append("; " + s)

def vr(a, n=1):
    return f"v{a}" if n == 1 else f"v[{a}:{a+n-1}]"
def sr(a, n=1):
    return f"s{a}" if n == 1 else f"s[{a}:{a+n-1}]"

_reg = re.compile(r"^(-|abs\(|\|)?\s*([vsa])(\d+)\)?\|?$")
_rng = re.compile(r"^(-|abs\(|\|)?\s*([vsa])\[(\d+):(\d+)\]\)?\|?$")

def regs_of(op):
    op = op.strip()
    m = _reg.match(op)
    if m:
        return {(m.group(2), int(m.group(3)))}
    m = _rng.match(op)
    if m:
        return {(m.group(2), i) for i in range(int(m.group(3)), int(m.group(4)) + 1)}
    if op == "vcc":
        return {("s", "vcc_lo"), ("s", "vcc_hi")}
    if op in ("vcc_lo", "vcc_hi"):
        return {("s", op)}
    if op == "exec":
        return {("s", "exec_lo"), ("s", "exec_hi")}
    if op in ("exec_lo", "exec_hi"):
        return {("s", op)}
    if op == "m0":
        return {("s", "m0")}
    return set()

TRANS = ("v_exp_f32", "v_log_f32", "v_rcp_f32", "v_rsq_f32", "v_sqrt_f32", "v_sin_f32", "v_cos_f32", "v_rcp_iflag_f32")
VCC = {("s", "vcc_lo"), ("s", "vcc_hi")}
EXEC = {("s", "exec_lo"), ("s", "exec_hi")}

class Ins:
    def __init__(self, text):
        self.text = text
        t = text.split(";")[0].strip()
        self.label = t[:-1] if t.endswith(":") else None
        self.op = None
        self.kind = None
        self.w = set(); self.r = set()
        self.states = 0
        if self.label or not t or t.startswith("."):
            return
        parts = t.split(None, 1)
        op = parts[0]
        self.op = op
        rest = parts[1] if len(parts) > 1 else ""
        ops = []; cur = ""; d = 0
        for ch in rest:
            if ch == "[": d += 1
            if ch == "]": d -= 1
            if ch == "," and d == 0:
                ops.append(cur.strip()); cur = ""
            else:
                cur += ch
        if cur.strip(): ops.append(cur.strip())
        mods = ""
        if ops:
            last = ops[-1].split(None, 1)
            ops[-1] = last[0]
            mods = last[1] if len(last) > 1 else ""
        self.ops = ops; self.mods = mods
        self.states = 1
        R = regs_of
        if op == "s_nop":
            self.kind = "nop"; self.states = int(ops[0], 0) + 1
        elif op.startswith("v_mfma"):
            self.kind = "mfma"
            self.w = R(ops[0]); self.A = R(ops[1]); self.B = R(ops[2]); self.C = R(ops[3])
            self.r = self.A | self.B | self.C
            self.passes = 8 if ("32x32x16" in op or "16x16x4_f32" in op) else 4 if "16x16x32" in op else None
            assert self.passes, op
        elif op.startswith("v_"):
            self.kind = "valu"
            base = op.replace("_e32", "").replace("_e64", "").replace("_dpp", "").replace("_sdwa", "")
            self.dpp = ("row_" in mods or "quad_perm" in mods or "wave_" in mods or "_dpp" in op)
            self.trans = base in TRANS
            self.perm = base.startswith("v_permlane")
            self.rl = base in ("v_readlane_b32", "v_readfirstlane_b32")
            self.opsel = ("op_sel" in mods and not base.startswith("v_pk_")) or "_sdwa" in op or "dst_sel" in mods
            if self.perm:
                self.w = R(ops[0]) | R(ops[1]); self.r = set(self.w)
            elif base.startswith("v_cmpx"):
                self.w = R(ops[0]) | EXEC
                for o in ops[1:]: self.r |= R(o)
            elif base in ("v_add_co_u32", "v_sub_co_u32", "v_addc_co_u32", "v_subb_co_u32", "v_subrev_co_u32", "v_div_scale_f32", "v_mad_u64_u32"):
                self.w = R(ops[0]) | R(ops[1])
                for o in ops[2:]: self.r |= R(o)
            else:
                self.w = R(ops[0])
                for o in ops[1:]: self.r |= R(o)
                if base in ("v_fmac_f32", "v_pk_fmac_f16", "v_dot2c_f32_bf16", "v_writelane_b32") or self.dpp:
                    self.r |= R(ops[0])
                if base == "v_div_fmas_f32": self.r |= VCC
            if base in ("v_readlane_b32", "v_writelane_b32"):
                self.lanesel = R(ops[2])
            else:
                self.lanesel = set()
        elif op.startswith("ds_"):
            self.kind = "ds"
            if op.startswith("ds_read") or op.startswith("ds_bpermute") or op.startswith("ds_permute") or op.startswith("ds_swizzle") or "_rtn" in op:
                self.w = R(ops[0])
                for o in ops[1:]: self.r |= R(o)
            else:
                for o in ops: self.r |= R(o)
        elif op.startswith("buffer_") or op.startswith("global_"):
            self.kind = "vmem"
            self.lds = bool(re.search(r"\blds\b", mods))
            self.wide_store = set()
            if op.startswith("buffer_load") or op.startswith("global_load"):
                if self.lds:
                    for o in ops: self.r |= R(o)
                    self.r |= {("s", "m0")}
                else:
                    self.w = R(ops[0])
                    for o in ops[1:]: self.r |= R(o)
            elif op in ("buffer_inv", "buffer_wbl2"):
                pass
            else:
                for o in ops: self.r |= R(o)
                if op.startswith("buffer_store") and ("x3" in op or "x4" in op):
                    self.wide_store = R(ops[0])
                if op.startswith("global_store") and ("x3" in op or "x4" in op):
                    self.wide_store = R(ops[1])
                if "atomic" in op and "sc0" in mods:
                    self.w = R(ops[0])
        elif op.startswith("s_"):
            self.kind = "salu"
            if op in ("s_branch",) or op.startswith("s_cbranch"):
                self.kind = "branch"; self.target = ops[0]
            elif op == "s_endpgm":
                self.kind = "end"
            elif op.startswith("s_cmp") or op in ("s_waitcnt", "s_barrier", "s_setprio", "s_sleep", "s_bitcmp1_b32", "s_bitcmp0_b32"):
                for o in ops: self.r |= R(o)
            elif op.startswith("s_load") or op.startswith("s_mem") or op.startswith("s_getreg"):
                self.kind = "smem"; self.w = R(ops[0])
                for o in ops[1:]: self.r |= R(o)
            else:
                self.w = R(ops[0])
                for o in ops[1:]: self.r |= R(o)
                if "saveexec" in op: self.w |= EXEC
        else:
            raise ValueError("unknown op " + op)

def isv(x): return x[0] == "v" or x[0] == "a"
def iss(x): return x[0] == "s"

def need(p, c):
    n = 0
    pk, ck = p.kind, c.kind
    if pk == "valu":
        pwv = {x for x in p.w if isv(x)}; pws = {x for x in p.w if iss(x)}
        if ck == "vmem" and pws & c.r: n = max(n, 5)
        if ck == "valu":
            if c.dpp and pwv & c.r: n = max(n, 2)
            if c.dpp and pws & EXEC: n = max(n, 5)
            if pws & c.r: n = max(n, 2)
            if pws & c.lanesel: n = max(n, 4)
            if c.op.startswith("v_div_fmas") and pws & VCC: n = max(n, 4)
            if c.rl and pwv & c.r: n = max(n, 1)
            if (c.rl or c.perm or c.op.startswith("v_writelane")) and pws & EXEC: n = max(n, 4)
            if p.opsel and pwv & (c.r | c.w): n = max(n, 1)
            if p.trans and not c.trans and pwv & c.r: n = max(n, 1)
            if c.perm and pwv & c.r: n = max(n, 2)
        if ck == "mfma":
            if pwv & c.r: n = max(n, 2)
            if pws & EXEC: n = max(n, 4)
        if ck in ("ds", "vmem") and p.trans and pwv & c.r: n = max(n, 1)
    if pk == "vmem" and p.wide_store:
        if p.wide_store & c.w:
            n = max(n, 2 if ck in ("valu", "mfma") else 1)
    if pk == "salu" and ("s", "m0") in p.w:
        if ck == "vmem" and c.lds: n = max(n, 1)
    if pk == "mfma":
        P = p.passes
        if ck == "mfma":
            if p.w & c.C:
                if p.w == c.C and p.passes == c.passes: pass
                else: n = max(n, {4: 6, 8: 10}[P])
            if p.w & (c.A | c.B): n = max(n, {4: 8, 8: 12}[P])
            if p.w & c.w and not (p.w == c.C): n = max(n, {4: 8, 8: 12}[P])
        elif ck in ("valu", "ds", "vmem"):
            if p.w & (c.r | c.w): n = max(n, {4: 8, 8: 12}[P])
            if ck == "valu" and p.C & c.w: n = max(n, {4: 3, 8: 7}[P])
    return n

def pad(lines, verbose=False):
    ins = [Ins(l) for l in lines]
    lab = {x.label: i for i, x in enumerate(ins) if x.label}
    preds = [[] for _ in ins]
    for i, x in enumerate(ins):
        if x.kind == "branch":
            assert x.target in lab, x.target
            preds[lab[x.target]].append(i)
            if x.op != "s_branch" and i + 1 < len(ins): preds[i + 1].append(i)
        elif x.kind == "end":
            pass
        elif i + 1 < len(ins):
            preds[i + 1].append(i)
    pre = [0] * len(ins)
    total = 0
    for i, c in enumerate(ins):
        if c.kind in (None, "nop", "branch", "end", "salu", "smem"): continue
        worst = 0
        stack = [(p, 0) for p in preds[i]]
        seen = {}
        while stack:
            j, d = stack.pop()
            if d >= 12: continue
            if seen.get(j, 99) <= d: continue
            seen[j] = d
            p = ins[j]
            if p.kind not in (None, "nop"):
                n = need(p, c)
                if n > d: worst = max(worst, n - d)
            for q in preds[j]:
                stack.append((q, d + p.states + pre[j]))
        if worst:
            pre[i] = worst; total += worst
            if verbose: print(f"pad {worst} before: {c.text}")
    out = []
    for i, x in enumerate(ins):
        if pre[i]: out.append(f"s_nop {pre[i]-1}")
        out.append(x.text)
    return out, total
```

```python
from gen import *

QB = 65536; QS = 6144
GB = QB + 4 * QS; GS = 14464; UPO = 7296
PB = GB + 4 * GS
LDS_K2 = PB + 2048
E_PART = 0; E_Z = 32768; E_KVF = 40960; E_ZF = 45056

ACC0 = 96
def acc(b, tb): return ACC0 + (b * 2 + tb) * 16
FR = 40
def wfrag(st, b): return FR + st * 28 + b * 4
def xfrag(st, tb): return FR + st * 28 + 20 + tb * 4
VX, VQ, VG = 2, 3, 4
VD = 5
VL16 = 10
VID = 32

MF = "v_mfma_f32_32x32x16_bf16"
def mfma(d, a, b, c=None):
    cs = vr(d, 16) if c is None else c
    return f"{MF} {vr(d,16)}, {vr(a,4)}, {vr(b,4)}, {cs}"

def blocks(h):
    return [("q", 1), ("q", 2), ("g", 0), ("g", 1), ("g", 2)] if h == 0 else [("q", 0), ("g", 3), ("g", 4), ("g", 5), ("g", 6)]

def reads(h, st, slot, a):
    R = []
    def xr(tb): return f"ds_read_b128 {vr(xfrag(st,tb),4)}, v{VX} offset:{slot*16384 + a*8192 + tb*1024}"
    def wr(b, sec):
        kind, idx = blocks(h)[b]
        if kind == "q":
            return f"ds_read_b64_tr_b16 {vr(wfrag(st,b)+2*sec,2)}, v{VQ} offset:{slot*QS + (a*16+sec*4)*192 + idx*64}"
        return f"ds_read_b64_tr_b16 {vr(wfrag(st,b)+2*sec,2)}, v{VG} offset:{slot*GS + (a*16+sec*4)*224 + idx*32}"
    R = [xr(0), wr(0, 0), wr(0, 1), xr(1)]
    for b in range(1, 5): R += [wr(b, 0), wr(b, 1)]
    return R

def mfmas(h, st):
    M = []
    for b in range(5):
        for tb in range(2):
            if h == 0 and b == 1:
                M.append(mfma(acc(b, tb), xfrag(st, tb), wfrag(st, b)))
            else:
                M.append(mfma(acc(b, tb), wfrag(st, b), xfrag(st, tb)))
    return M

def dma(h, slot):
    D = []
    if h == 0:
        for i in range(5):
            D.append(([f"s_mov_b32 m0, s{44+slot*5+i}"],
                      f"buffer_load_dwordx4 v{VD+i}, s[{24+4*i}:{27+4*i}], s{64+i} offen lds",
                      [f"s_add_u32 s{64+i}, s{64+i}, s{69+i}"]))
    else:
        for i in range(4):
            D.append(([f"s_mov_b32 m0, s{44+slot}"] if i == 0 else [],
                      f"buffer_load_dwordx4 v{VD}, s[8:11], s64 offen offset:{i*1024} lds",
                      ["s_add_u32 s64, s64, 0x20000"] if i == 3 else []))
    return D

def step(A, h, st, rd, dm):
    M = mfmas(h, st)
    rd = list(rd); dm = list(dm)
    nd = len(dm)
    first_d = 10 - nd if nd else 99
    for i, m in enumerate(M):
        if i >= first_d - 0 and i - first_d < nd:
            pass
        A(m)
        for _ in range(2):
            if rd: A(rd.pop(0))
        k = i - first_d
        if 0 <= k < nd:
            A(dm[k][1])
            for p in dm[k][2]: A(p)
        if 0 <= k + 1 < nd:
            for p in dm[k + 1][0]: A(p)
    assert not rd

def mainloop(A, h, opt):
    n = 5 if h == 0 else 4
    def stage(slot, s_rel, last):
        dm0 = []; dm1 = []
        if h == 0:
            if last is None: dm1 = dma(0, slot)
        else:
            if last is None or last == 28: dm0 = dma(1, (slot + 3) % 4)
        step(A, h, 0, reads(h, 1, slot, 1), dm0)
        if last is None or last == 28: vm = 2 * n
        elif last == 29: vm = n
        elif last == 30: vm = 0
        else: vm = None
        A(f"s_waitcnt vmcnt({vm}) lgkmcnt(0)" if vm is not None else "s_waitcnt lgkmcnt(0)")
        A("s_barrier")
        if last == 31:
            step(A, h, 1, phi_reads(), [])
        else:
            step(A, h, 1, reads(h, 0, (slot + 1) % 4, 0), dm1)
            A("s_waitcnt lgkmcnt(0)")
    A("s_mov_b32 s74, 7")
    A.label(f"L2_loop{h}")
    for slot in range(4): stage(slot, slot, None)
    A("s_sub_u32 s74, s74, 1"); A("s_cmp_lg_u32 s74, 0"); A(f"s_cbranch_scc1 L2_loop{h}")
    for slot in range(4): stage(slot, slot, 28 + slot)

VPH = 56
VPA = 11
def phi_reads():
    return [f"ds_read_b64_tr_b16 {vr(VPH + 4*c + 2*sec, 2)}, v{VPA} offset:{(16*c + 8*sec)*64}" for c in range(2) for sec in range(2)]

SL, SK1 = 75, 76
VK0 = 12
def PK(tb): return 40 if tb == 0 else 80
EP = 64

def featmap_head(A):
    for tb in range(2):
        for r in range(8):
            A(f"v_cvt_pk_bf16_f32 v{40+8*tb+r}, v{acc(0,tb)+2*r}, v{acc(0,tb)+2*r+1}")
    A("s_waitcnt lgkmcnt(0)")
    for tb in range(2):
        A(mfma(acc(0, tb), VPH, 40 + 8 * tb, "0"))
    for tb in range(2):
        A(mfma(acc(0, tb), VPH + 4, 44 + 8 * tb))

def softmax(A, tb):
    P = acc(0, tb)
    mx, mn, t = 14, 15, 16
    A(f"v_max3_f32 v{mx}, v{P}, v{P+1}, v{P+2}")
    A(f"v_max3_f32 v{mn}, -v{P}, -v{P+1}, -v{P+2}")
    for k in range(3, 15, 2):
        A(f"v_max3_f32 v{mx}, v{mx}, v{P+k}, v{P+k+1}")
        A(f"v_max3_f32 v{mn}, v{mn}, -v{P+k}, -v{P+k+1}")
    A(f"v_max_f32 v{mx}, v{mx}, v{P+15}")
    A(f"v_max_f32_e64 v{mn}, v{mn}, -v{P+15}")
    A(f"v_permlane32_swap_b32 v{mx}, v{mn}")
    A(f"v_max_f32 v{mx}, v{mx}, v{mn}")
    A(f"v_mul_f32_e64 v{mx}, v{mx}, -s{SL}")
    A(f"v_mov_b32 v{mn}, v{mx}")
    A(f"v_permlane32_swap_b32 v{mx}, v{mn}")
    for i in range(16):
        A(f"v_fma_f32 v{EP+i}, v{P+i}, s{SL}, v{mx}")
        A(f"v_fma_f32 v{P+i}, -v{P+i}, s{SL}, v{mn}")
    for i in range(16):
        A(f"v_exp_f32 v{EP+i}, v{EP+i}")
        A(f"v_exp_f32 v{P+i}, v{P+i}")
    sp, sm = 14, 15
    A(f"v_add_f32 v{sp}, v{EP}, v{EP+1}"); A(f"v_add_f32 v{sm}, v{P}, v{P+1}")
    A(f"v_add_f32 v16, v{EP+2}, v{EP+3}"); A(f"v_add_f32 v17, v{P+2}, v{P+3}")
    for i in range(4, 16, 2):
        A(f"v_add_f32 v{sp}, v{sp}, v{EP+i}"); A(f"v_add_f32 v{sm}, v{sm}, v{P+i}")
        A(f"v_add_f32 v16, v16, v{EP+i+1}"); A(f"v_add_f32 v17, v17, v{P+i+1}")
    A(f"v_add_f32 v{sp}, v{sp}, v16"); A(f"v_add_f32 v{sm}, v{sm}, v17")
    A(f"v_permlane32_swap_b32 v{sp}, v{sm}")
    A(f"v_add_f32 v{sp}, v{sp}, v{sm}")
    A(f"v_rcp_f32 v{sp}, v{sp}")
    A(f"v_mov_b32 v{sm}, v{sp}")
    A(f"v_permlane32_swap_b32 v{sp}, v{sm}")
    for i in range(16):
        A(f"v_mul_f32 v{EP+i}, v{EP+i}, v{sp}")
        A(f"v_mul_f32 v{P+i}, v{P+i}, v{sm}")
    for r in range(8):
        A(f"v_cvt_pk_bf16_f32 v{PK(tb)+r}, v{EP+2*r}, v{EP+2*r+1}")
    for r in range(8):
        A(f"v_cvt_pk_bf16_f32 v{PK(tb)+8+r}, v{P+2*r}, v{P+2*r+1}")

def gelu(A, b, gidx):
    A(f"s_add_u32 s78, s77, {(16+gidx)*65536}")
    for tb in range(2):
        G = acc(b, tb); U = G + 8; T = 16
        for i in range(8): A(f"v_mul_f32 v{T+i}, v{G+i}, v{G+i}")
        for i in range(8): A(f"v_fma_f32 v{T+i}, v{T+i}, s{SK1}, v{VK0}")
        for i in range(8): A(f"v_mul_f32 v{T+i}, v{T+i}, v{G+i}")
        for i in range(8): A(f"v_exp_f32 v{T+i}, v{T+i}")
        for i in range(8): A(f"v_mul_f32 v{G+i}, v{G+i}, v{U+i}")
        for i in range(8): A(f"v_add_f32 v{T+i}, 1.0, v{T+i}")
        for i in range(8): A(f"v_rcp_f32 v{T+i}, v{T+i}")
        for i in range(8): A(f"v_mul_f32 v{G+i}, v{G+i}, v{T+i}")
        for r in range(4): A(f"v_cvt_pk_bf16_f32 v{U+r}, v{G+2*r}, v{G+2*r+1}")
        A(f"buffer_store_dwordx4 {vr(U,4)}, v{VX}, s[8:11], s78 offen offset:{tb*1024}")

def reduce_publish(A, h):
    R = 64
    for p in range(4):
        A(f"ds_read_b128 {vr(R+4*p,4)}, v13 offset:{E_PART + p*8192}")
    if h == 0:
        A("s_cmp_lg_u32 s3, 0"); A("s_cbranch_scc1 L2_noz1")
        A("v_lshlrev_b32 v16, 2, v1")
        for p in range(4): A(f"ds_read_b32 v{17+p}, v16 offset:{E_Z + p*256}")
        A("s_waitcnt lgkmcnt(0)")
        A("v_add_f32 v17, v17, v18"); A("v_add_f32 v19, v19, v20"); A("v_add_f32 v17, v17, v19")
        A("s_add_u32 s78, s79, 8192")
        A("buffer_store_dword v17, v16, s[8:11], s78 offen sc1")
        A.label("L2_noz1")
    A("s_waitcnt lgkmcnt(0)")
    for i in range(4):
        A(f"v_add_f32 v{R+i}, v{R+i}, v{R+4+i}"); A(f"v_add_f32 v{R+8+i}, v{R+8+i}, v{R+12+i}")
    for i in range(4): A(f"v_add_f32 v{R+i}, v{R+i}, v{R+8+i}")
    A(f"buffer_store_dwordx4 {vr(R,4)}, v13, s[8:11], s79 offen sc1")

def gather(A, h):
    R = acc(2, 0)
    Z = acc(3, 0)
    A("s_mov_b32 s81, 0")
    if h == 0: A("v_lshlrev_b32 v16, 2, v1")
    A.label(f"L2_poll{h}")
    for p in range(8):
        A(f"s_add_u32 s78, s80, {p*KVP_STRIDE}")
        A(f"buffer_load_dwordx4 {vr(R+4*p,4)}, v13, s[8:11], s78 offen sc1")
    A("v_mov_b32 v17, 0")
    if h == 0:
        A("s_cmp_lg_u32 s3, 0"); A("s_cbranch_scc1 L2_noz2")
        for p in range(8):
            A(f"s_add_u32 s78, s80, {p*KVP_STRIDE+8192}")
            A(f"buffer_load_dword v{Z+p}, v16, s[8:11], s78 offen sc1")
        A("s_waitcnt vmcnt(0)")
        for p in range(0, 8, 2): A(f"v_max3_u32 v17, v17, v{Z+p}, v{Z+p+1}")
        A.label("L2_noz2")
    A("s_waitcnt vmcnt(0)")
    for i in range(0, 32, 2): A(f"v_max3_u32 v17, v17, v{R+i}, v{R+i+1}")
    A("v_cmp_eq_u32 vcc, -1, v17")
    A(f"s_cbranch_vccz L2_got{h}")
    A("s_add_u32 s81, s81, 1"); A("s_cmp_lt_u32 s81, 0x40000"); A("s_sleep 1")
    A(f"s_cbranch_scc1 L2_poll{h}")
    A.label(f"L2_got{h}")
    for st in (16, 8, 4):
        for i in range(st): A(f"v_add_f32 v{R+i}, v{R+i}, v{R+st+i}")
    A(f"v_cvt_pk_bf16_f32 v{R}, v{R}, v{R+1}"); A(f"v_cvt_pk_bf16_f32 v{R+1}, v{R+2}, v{R+3}")
    A("s_lshr_b32 s78, s3, 1"); A("s_lshl_b32 s78, s78, 10"); A("s_and_b32 s82, s3, 1"); A("s_lshl_b32 s82, s82, 3"); A("s_add_u32 s78, s78, s82")
    A(f"v_add_u32 v18, s78, v{VL16}")
    A(f"ds_write_b64 v18, {vr(R,2)} offset:{E_KVF}")
    if h == 0:
        A("s_cmp_lg_u32 s3, 0"); A("s_cbranch_scc1 L2_noz3")
        for st in (4, 2, 1):
            for i in range(st): A(f"v_add_f32 v{Z+i}, v{Z+i}, v{Z+st+i}")
        A(f"v_cvt_pk_bf16_f32 v{Z}, v{Z}, v{Z}")
        A("v_lshlrev_b32 v16, 1, v1")
        A(f"ds_write_b16 v16, v{Z} offset:{E_ZF}")
        A.label("L2_noz3")
    A("s_waitcnt lgkmcnt(0)")
    A("s_barrier")

def epi_k(A, opt):
    featmap_head(A)
    A("v_mov_b32 v24, 0"); A("v_mov_b32 v25, 0")
    for tb in range(2):
        softmax(A, tb)
        T0 = acc(0, tb); T1 = EP
        A(mfma(T0, PK(tb), VID, "0")); A(mfma(T1, PK(tb) + 8, VID, "0"))
        A(mfma(T0, PK(tb) + 4, VID + 4)); A(mfma(T1, PK(tb) + 12, VID + 4))
        V = acc(1, tb)
        for r in range(8): A(f"v_cvt_pk_bf16_f32 v{V+r}, v{V+2*r}, v{V+2*r+1}")
        for i in range(0, 16, 2):
            A(f"v_add_f32 v16, v{T0+i}, v{T0+i+1}"); A(f"v_add_f32 v17, v{T1+i}, v{T1+i+1}")
            A("v_add_f32 v24, v24, v16"); A("v_add_f32 v25, v25, v17")
        for r in range(8): A(f"v_cvt_pk_bf16_f32 v{PK(tb)+r}, v{T0+2*r}, v{T0+2*r+1}")
        for r in range(8): A(f"v_cvt_pk_bf16_f32 v{PK(tb)+8+r}, v{T1+2*r}, v{T1+2*r+1}")
    first = True
    for tb in range(2):
        for c2 in range(2):
            for sg in range(2):
                A(mfma(acc(0, sg), PK(tb) + 8 * sg + 4 * c2, acc(1, tb) + 4 * c2, "0" if first else None))
            first = False
    A("v_permlane32_swap_b32 v24, v25"); A("v_add_f32 v24, v24, v25")
    A("s_lshl_b32 s78, s3, 13"); A(f"v_add_u32 v16, s78, v{VL16}")
    A("s_lshl_b32 s78, s3, 8"); A("v_lshl_add_u32 v17, v1, 2, s78")
    A(f"ds_write_b32 v17, v24 offset:{E_Z}")
    for s in range(8):
        A(f"ds_write_b128 v16, {vr(acc(0, s>>2) + 4*(s&3), 4)} offset:{E_PART + s*1024}")
    A("s_waitcnt lgkmcnt(0)"); A("s_barrier")
    reduce_publish(A, 0)
    for b in (2, 3, 4): gelu(A, b, blocks(0)[b][1])
    gather(A, 0)

def epi_q(A, opt):
    featmap_head(A)
    for tb in range(2): softmax(A, tb)
    gelu(A, 1, 3)
    A("s_barrier")
    reduce_publish(A, 1)
    for b in (2, 3, 4): gelu(A, b, blocks(1)[b][1])
    gather(A, 1)
    KA = acc(4, 0); ZA = acc(4, 1)
    for c in range(4): A(f"ds_read_b128 {vr(KA+4*c,4)}, v{VL16} offset:{E_KVF + c*1024}")
    A("v_lshrrev_b32 v16, 5, v1"); A("v_lshlrev_b32 v16, 3, v16")
    for c in range(4):
        for sec in range(2):
            A(f"ds_read_b64 {vr(ZA+4*c+2*sec,2)}, v16 offset:{E_ZF + c*32 + sec*16}")
    A("s_waitcnt lgkmcnt(0)")
    for tb in range(2):
        N = acc(0, tb); D = acc(1, tb)
        for c in range(4):
            A(mfma(N, KA + 4 * c, PK(tb) + 4 * c, "0" if c == 0 else None))
            A(mfma(D, ZA + 4 * c, PK(tb) + 4 * c, "0" if c == 0 else None))
    A("s_add_u32 s78, s83, 65536")
    for tb in range(2):
        N = acc(0, tb); D = acc(1, tb)
        A(f"v_add_f32 v{D}, {hex(f2u(1e-6))}, v{D}")
        A(f"v_rcp_f32 v{D}, v{D}")
        for i in range(16): A(f"v_mul_f32 v{N+i}, v{N+i}, v{D}")
        for r in range(8): A(f"v_cvt_pk_bf16_f32 v{D+4+r}, v{N+2*r}, v{N+2*r+1}")
        A(f"buffer_store_dwordx4 {vr(D+4,4)}, v{VX}, s[8:11], s83 offen offset:{tb*1024}")
        A(f"buffer_store_dwordx4 {vr(D+8,4)}, v{VX}, s[8:11], s78 offen offset:{tb*1024}")

def run(A, h, opt):
    A("s_and_b32 s78, s3, 3"); A("s_lshl_b32 s78, s78, 11"); A(f"v_add_u32 v{VX}, s78, v{VL16}")
    A("v_lshrrev_b32 v16, 5, v1")
    A("v_bfe_u32 v17, v1, 2, 2")
    A("v_bfe_u32 v18, v1, 4, 1")
    A("v_and_b32 v19, 3, v1")
    A("v_lshl_add_u32 v20, v16, 3, v17")
    A(f"v_mul_u32_u24 v{VQ}, 192, v20"); A(f"v_lshl_add_u32 v{VQ}, v18, 5, v{VQ}"); A(f"v_lshl_add_u32 v{VQ}, v19, 3, v{VQ}")
    A(f"v_add_u32 v{VQ}, {QB}, v{VQ}")
    A(f"v_mul_u32_u24 v{VG}, 224, v20"); A(f"v_mul_u32_u24 v21, {UPO}, v18"); A(f"v_add_u32 v{VG}, v{VG}, v21")
    A(f"v_lshl_add_u32 v{VG}, v19, 3, v{VG}"); A(f"v_add_u32 v{VG}, {GB}, v{VG}")
    A("v_lshl_add_u32 v20, v16, 2, v17")
    A(f"v_lshlrev_b32 v{VPA}, 6, v20"); A(f"v_lshl_add_u32 v{VPA}, v18, 5, v{VPA}"); A(f"v_lshl_add_u32 v{VPA}, v19, 3, v{VPA}")
    A(f"v_add_u32 v{VPA}, {PB}, v{VPA}")
    A("s_lshl_b32 s78, s3, 10"); A(f"v_add_u32 v13, s78, v{VL16}")
    A("v_and_b32 v17, 31, v1"); A("v_lshlrev_b32 v16, 2, v16"); A("v_sub_u32 v17, v17, v16")
    A("v_mov_b32 v18, 0x3f80"); A("v_mov_b32 v19, 0x3f800000")
    for c in range(2):
        for r in range(4):
            base = 16 * c + 8 * (r >> 1) + 2 * (r & 1)
            d = VID + 4 * c + r
            A(f"v_cmp_eq_u32 vcc, {base}, v17"); A(f"v_cndmask_b32 v{d}, 0, v18, vcc")
            A(f"v_cmp_eq_u32 vcc, {base+1}, v17"); A(f"v_cndmask_b32 v{d}, v{d}, v19, vcc")
    c0 = -2.0 * math.sqrt(2.0 / math.pi) * math.log2(math.e)
    A(f"s_mov_b32 s{SL}, {hex(f2u(math.log2(math.e)))}"); A(f"s_mov_b32 s{SK1}, {hex(f2u(c0*0.044715))}")
    A(f"v_mov_b32 v{VK0}, {hex(f2u(c0))}")
    A("s_lshr_b32 s78, s22, 3"); A("s_mul_i32 s78, s78, 72"); A("s_and_b32 s79, s22, 7")
    A("s_mul_i32 s80, s79, 7"); A("s_add_u32 s80, s80, s78"); A("s_lshl_b32 s80, s80, 16")
    A("s_lshl_b32 s81, s23, 13"); A(f"s_add_u32 s81, s81, {ACT_OFF}"); A("s_add_u32 s77, s80, s81")
    A("s_lshl_b32 s80, s79, 1"); A("s_add_u32 s80, s80, s78"); A("s_lshl_b32 s80, s80, 16"); A("s_add_u32 s83, s80, s81")
    A(f"s_mul_i32 s80, s22, {8*KVP_STRIDE}"); A(f"s_add_u32 s80, s80, {KVP_OFF}")
    A(f"s_mul_i32 s79, s23, {KVP_STRIDE}"); A("s_add_u32 s79, s79, s80")
    if opt.get("clr", 1):
        for i in range(4): A(f"v_mov_b32 v{20+i}, -1")
        A("v_lshlrev_b32 v16, 4, v0")
        A(f"s_mul_i32 s78, s2, 49152"); A(f"s_add_u32 s78, s78, {XCH_OFF}")
        for i in range(6):
            A("buffer_store_dwordx4 v[20:23], v16, s[8:11], s78 offen sc1")
            A("s_add_u32 s78, s78, 8192")
    nclr = 6 if opt.get("clr", 1) else 0
    for i in range(160): A(f"v_mov_b32 v{ACC0+i}, 0")
    A(f"s_waitcnt vmcnt({(15 if h == 0 else 8) + nclr})"); A("s_barrier")
    for r in reads(h, 0, 0, 0): A(r)
    A("s_waitcnt lgkmcnt(0)")
    mainloop(A, h, opt)
    if h == 0:
        epi_k(A, opt); A("s_endpgm")
    else:
        epi_q(A, opt)

def k2(opt):
    A = Asm(); lab = "gemm1_kernel"
    header(A, lab)
    A("s_cmp_ge_u32 s2, 256"); A("s_cbranch_scc1 L2_end")
    A("s_load_dwordx2 s[4:5], s[0:1], 8"); A("s_load_dwordx2 s[6:7], s[0:1], 16")
    A("s_load_dwordx4 s[16:19], s[0:1], 40"); A("s_load_dwordx2 s[20:21], s[0:1], 80")
    A("v_lshrrev_b32 v2, 6, v0"); A("v_and_b32 v1, 63, v0")
    A("v_readfirstlane_b32 s3, v2")
    A("s_and_b32 s22, s2, 7"); A("s_lshl_b32 s22, s22, 2"); A("s_lshr_b32 s23, s2, 3"); A("s_and_b32 s78, s23, 3")
    A("s_add_u32 s22, s22, s78"); A("s_lshr_b32 s23, s23, 2")
    A(f"v_lshlrev_b32 v{VL16}, 4, v1")
    A("s_waitcnt lgkmcnt(0)")
    srd(A, 8, 20, 21, WS_BYTES); srd(A, 12, 6, 7, 65536)
    A("s_cmp_ge_u32 s3, 4"); A("s_cbranch_scc1 L2_xsetup")
    A("s_lshl_b32 s78, s22, 6")
    A("s_mul_i32 s79, s22, 224")
    for w in range(4):
        if w < 3:
            A(f"s_cmp_lg_u32 s3, {w}"); A(f"s_cbranch_scc1 L2_ws{w+1}")
        for i in range(5):
            g = 5 * w + i
            if g < 6:
                kind, idx = 0, g
                srd(A, 24 + 4 * i, 4, 5, 1024 * 6144)
                A(f"v_add_u32 v16, {idx*64}, v1"); A("v_mul_u32_u24 v17, 5462, v16"); A("v_lshrrev_b32 v17, 16, v17")
                A("v_mul_u32_u24 v18, 12, v17"); A("v_sub_u32 v18, v16, v18")
                A("v_mul_u32_u24 v17, 6144, v17"); A("v_lshrrev_b32 v19, 2, v18"); A("v_lshl_add_u32 v17, v19, 11, v17")
                A("v_and_b32 v18, 3, v18"); A(f"v_lshl_add_u32 v{VD+i}, v18, 4, v17")
                A(f"s_mov_b32 s{64+i}, s78"); A(f"s_mov_b32 s{69+i}, {32*6144}")
                for sl in range(4): A(f"s_mov_b32 s{44+sl*5+i}, {QB + sl*QS + idx*1024}")
            else:
                kind = 1 if g < 13 else 2; idx = g - 6 if g < 13 else g - 13
                srd(A, 24 + 4 * i, 16 if kind == 1 else 18, 17 if kind == 1 else 19, 1024 * 7168)
                A(f"v_add_u32 v16, {idx*64}, v1"); A("v_mul_u32_u24 v17, 4682, v16"); A("v_lshrrev_b32 v17, 16, v17")
                A("v_mul_u32_u24 v18, 14, v17"); A("v_sub_u32 v18, v16, v18")
                A("v_mul_u32_u24 v17, 7168, v17"); A(f"v_lshl_add_u32 v{VD+i}, v18, 4, v17")
                A(f"s_mov_b32 s{64+i}, s79"); A(f"s_mov_b32 s{69+i}, {32*7168}")
                for sl in range(4): A(f"s_mov_b32 s{44+sl*5+i}, {GB + sl*GS + (UPO if kind == 2 else 0) + idx*1024}")
        if w < 3:
            A("s_branch L2_wgo"); A.label(f"L2_ws{w+1}")
    A.label("L2_wgo")
    for sl in range(4):
        for pre, ins, post in dma(0, sl):
            for p in pre: A(p)
            A(ins)
            for p in post: A(p)
    run(A, 0, opt)
    A.label("L2_xsetup")
    A("s_sub_u32 s78, s3, 4")
    A("s_and_b32 s79, s78, 1"); A("s_lshl_b32 s79, s79, 10"); A(f"s_add_u32 m0, s79, {PB}")
    A("s_lshl_b32 s80, s22, 11"); A("s_add_u32 s80, s80, s79")
    A(f"buffer_load_dwordx4 v{VL16}, s[12:15], s80 offen lds")
    A("s_lshr_b32 s80, s78, 1"); A("s_lshl_b32 s80, s80, 16"); A("s_lshl_b32 s79, s79, 2"); A("s_add_u32 s80, s80, s79")
    A("s_lshl_b32 s79, s23, 13"); A("s_add_u32 s80, s80, s79")
    A(f"v_add_u32 v{VD}, s80, v{VL16}")
    A(f"s_mov_b32 s64, {XN_OFF}")
    A("s_lshl_b32 s44, s78, 12")
    for sl in range(1, 4): A(f"s_add_u32 s{44+sl}, s44, {sl*16384}")
    for sl in range(3):
        for pre, ins, post in dma(1, sl):
            for p in pre: A(p)
            A(ins)
            for p in post: A(p)
    run(A, 1, opt)
    A.label("L2_end")
    A("s_endpgm")
    return lab, A.lines, dict(grid=256, block=512, lds=LDS_K2, vgpr=256, sgpr=96)
```

```python
from gen import *
from k2 import mfma

WB = 65536
LDS_K4 = WB + 4 * 8192
ACC0 = 96
def acc(b): return ACC0 + 16 * b
FR = 32
def wf(st, a, cbi): return FR + st * 32 + a * 16 + cbi * 4
def af(st, a, tbi): return FR + st * 32 + a * 16 + 8 + tbi * 4
VA = 2; VW = 4; VDA = 6; VDW = 7; VL16 = 8; VO = 9; VXR = 12; VXC = 10

def reads(st, slot):
    R = []
    for a in range(2):
        def ar(t): return f"ds_read_b128 {vr(af(st,a,t),4)}, v{VA+t} offset:{slot*16384 + a*8192}"
        def wr(c, sec): return f"ds_read_b64_tr_b16 {vr(wf(st,a,c)+2*sec,2)}, v{VW+c} offset:{slot*8192 + a*4096 + sec*2048}"
        R += [ar(0), wr(0, 0), wr(0, 1), wr(1, 0), wr(1, 1), ar(1)]
    return R

def mfmas(st):
    M = []
    for a in range(2):
        for b in range(4):
            M.append(mfma(acc(b), wf(st, a, b & 1), af(st, a, b >> 1)))
    return M

def dma(slot):
    return [([f"s_mov_b32 m0, s{44+slot}"], f"buffer_load_dwordx4 v{VDA}, s[8:11], s64 offen lds", []),
            ([], f"buffer_load_dwordx4 v{VDA}, s[8:11], s64 offen offset:1024 lds", ["s_add_u32 s64, s64, 0x20000"]),
            ([f"s_mov_b32 m0, s{48+slot}"], f"buffer_load_dwordx4 v{VDW}, s[12:15], s65 offen lds", ["s_add_u32 s65, s65, 0x10000"])]

def step(A, h, st, rd, dm, opt):
    M = mfmas(st)
    rd = list(rd)
    nd = len(dm)
    dfirst = (h == 0 and opt.get("k4stag", 1))
    first_d = 0 if dfirst else 8 - nd
    if nd and first_d == 0:
        for p in dm[0][0]: A(p)
    for i, m in enumerate(M):
        A(m)
        nr = 2
        if dfirst and nd: nr = 0 if i < 2 else 2 if i < 6 else 2
        if dfirst and nd: nr = [0, 1, 1, 2, 3, 3, 2, 0][i]
        else: nr = [3, 3, 2, 2, 2, 0, 0, 0][i]
        for _ in range(nr):
            if rd: A(rd.pop(0))
        k = i - first_d
        if 0 <= k < nd:
            A(dm[k][1])
            for p in dm[k][2]: A(p)
        if 0 <= k + 1 < nd:
            for p in dm[k + 1][0]: A(p)
    assert not rd

def run(A, h, opt):
    A("s_waitcnt vmcnt(9)"); A("s_barrier")
    for r in reads(0, 0): A(r)
    A("s_mov_b32 s74, 8")
    A.label(f"L4_loop{h}")
    for slot in range(4):
        A("s_waitcnt vmcnt(6) lgkmcnt(0)"); A("s_barrier")
        step(A, h, slot & 1, reads((slot + 1) & 1, (slot + 1) % 4), dma(slot), opt)
    A("s_cmp_eq_u32 s74, 8")
    A("s_cselect_b32 s12, s16, s12"); A("s_cselect_b32 s13, s17, s13"); A(f"s_cselect_b32 s14, {3584*2048}, s14"); A("s_cselect_b32 s65, s66, s65")
    A("s_sub_u32 s74, s74, 1"); A("s_cmp_lg_u32 s74, 0"); A(f"s_cbranch_scc1 L4_loop{h}")
    for slot in range(4):
        if slot < 3:
            A(f"s_waitcnt vmcnt({6-3*slot}) lgkmcnt(0)"); A("s_barrier")
            step(A, h, slot & 1, reads((slot + 1) & 1, slot + 1), [], opt)
        else:
            A("s_waitcnt lgkmcnt(0)")
            step(A, h, slot & 1, [], [], opt)

def k4(opt):
    A = Asm(); lab = "gemm2_kernel"
    header(A, lab)
    A("s_cmp_ge_u32 s2, 256"); A("s_cbranch_scc1 L4_end")
    A("s_load_dwordx2 s[4:5], s[0:1], 0"); A("s_load_dwordx2 s[6:7], s[0:1], 24")
    A("s_load_dwordx4 s[16:19], s[0:1], 56"); A("s_load_dwordx2 s[20:21], s[0:1], 80")
    A("v_lshrrev_b32 v2, 6, v0"); A("v_and_b32 v1, 63, v0")
    A("v_readfirstlane_b32 s3, v2")
    A("s_and_b32 s33, s2, 7"); A("s_lshr_b32 s22, s33, 1"); A("s_and_b32 s23, s33, 1"); A("s_lshl_b32 s23, s23, 2")
    A("s_lshr_b32 s33, s2, 3"); A("s_and_b32 s32, s33, 7"); A("s_lshr_b32 s33, s33, 3"); A("s_add_u32 s23, s23, s33")
    A(f"v_lshlrev_b32 v{VL16}, 4, v1")
    A("s_lshr_b32 s34, s3, 2"); A("s_and_b32 s35, s3, 3")
    A("s_lshl_b32 s36, s34, 16"); A("s_lshl_b32 s37, s35, 11"); A("s_add_u32 s36, s36, s37")
    A(f"v_add_u32 v{VDA}, s36, v{VL16}")
    A(f"s_mul_i32 s64, s22, {72*65536}"); A("s_lshl_b32 s36, s23, 13"); A("s_add_u32 s64, s64, s36"); A(f"s_add_u32 s64, s64, {ACT_OFF}")
    A("v_lshrrev_b32 v16, 4, v1"); A("v_and_b32 v17, 15, v1"); A("v_lshlrev_b32 v18, 2, v16"); A("v_xor_b32 v17, v17, v18")
    A("v_lshlrev_b32 v16, 11, v16"); A(f"v_lshl_add_u32 v{VDW}, v17, 4, v16")
    A("s_lshl_b32 s36, s3, 13"); A(f"v_add_u32 v{VDW}, s36, v{VDW}")
    A("s_lshl_b32 s36, s32, 8")
    A(f"s_mul_i32 s65, s22, {256*2048}"); A("s_add_u32 s65, s65, s36")
    A(f"s_mul_i32 s66, s22, {896*2048}"); A("s_add_u32 s66, s66, s36")
    A("s_lshl_b32 s44, s3, 11"); A("s_lshl_b32 s48, s3, 10"); A(f"s_add_u32 s48, s48, {WB}")
    for sl in range(1, 4):
        A(f"s_add_u32 s{44+sl}, s44, {sl*16384}"); A(f"s_add_u32 s{48+sl}, s48, {sl*8192}")
    A("s_lshr_b32 s38, s22, 1"); A("s_and_b32 s39, s22, 1")
    A("s_lshl_b32 s36, s35, 1"); A("s_add_u32 s36, s36, s38"); A("s_lshl_b32 s36, s36, 5"); A("s_lshl_b32 s37, s23, 8"); A("s_add_u32 s36, s36, s37")
    A("s_lshl_b32 s36, s36, 11")
    A("s_lshl_b32 s37, s39, 1"); A("s_add_u32 s37, s37, s34"); A("s_lshl_b32 s37, s37, 6"); A("s_add_u32 s36, s36, s37")
    A("s_lshl_b32 s37, s32, 8"); A("s_add_u32 s40, s36, s37")
    A("v_and_b32 v16, 31, v1"); A("v_lshlrev_b32 v16, 11, v16"); A("v_lshrrev_b32 v17, 5, v1"); A(f"v_lshl_add_u32 v{VO}, v17, 5, v16")
    A("s_waitcnt lgkmcnt(0)")
    srd(A, 8, 20, 21, WS_BYTES); srd(A, 12, 6, 7, 1024 * 2048); srd(A, 24, 4, 5, 2048 * 2048); srd(A, 28, 18, 19, 2048 * 2048)
    for sl in range(4):
        for pre, ins, post in dma(sl):
            for p in pre: A(p)
            A(ins)
            for p in post: A(p)
        if sl == 0:
            pass
    for t in range(2):
        A(f"s_xor_b32 s36, s38, {t}"); A("s_lshl_b32 s37, s35, 1"); A("s_add_u32 s36, s36, s37"); A("s_lshl_b32 s36, s36, 10")
        A(f"v_add_u32 v{VA+t}, s36, v{VL16}")
    A("v_lshrrev_b32 v16, 5, v1")
    A("v_bfe_u32 v17, v1, 2, 2")
    A("v_bfe_u32 v18, v1, 4, 1")
    A("v_and_b32 v19, 1, v1")
    A("v_bfe_u32 v20, v1, 1, 1")
    A("v_lshl_add_u32 v21, v16, 2, v17"); A("v_lshlrev_b32 v21, 8, v21")
    A("v_lshl_add_u32 v21, v19, 5, v21"); A("v_lshl_add_u32 v21, v18, 4, v21"); A("v_lshl_add_u32 v21, v20, 3, v21")
    A(f"v_add_u32 v21, {WB}, v21")
    for c in range(2):
        A(f"s_xor_b32 s36, s39, {c}"); A("s_lshl_b32 s36, s36, 1"); A("s_add_u32 s36, s36, s34")
        A("v_xor_b32 v22, s36, v17"); A(f"v_lshl_add_u32 v{VW+c}, v22, 6, v21")
    A("s_lshl_b32 s36, s3, 11"); A(f"v_add_u32 v{VXC}, s36, v{VL16}")
    A("s_lshl_b32 s41, s23, 3"); A("s_add_u32 s41, s41, s32"); A(f"s_mul_i32 s41, s41, {12*16384}"); A(f"s_add_u32 s41, s41, {XCH_OFF}")
    for i in range(64): A(f"v_mov_b32 v{ACC0+i}, 0")
    A("s_cmp_ge_u32 s3, 4"); A("s_cbranch_scc1 L4_h1")
    run(A, 0, opt)
    A("s_branch L4_epi")
    A.label("L4_h1")
    run(A, 1, opt)
    A.label("L4_epi")
    A(f"buffer_load_dwordx4 {vr(VXR,4)}, v{VO}, s[24:27], s40 offen")
    A(f"buffer_load_dwordx4 {vr(VXR+4,4)}, v{VO}, s[24:27], s40 offen offset:16")
    for b in range(1, 4):
        P = acc(b)
        A(f"s_xor_b32 s36, s22, {b}"); A(f"s_mul_i32 s36, s36, {3*16384}"); A("s_add_u32 s36, s36, s41"); A(f"s_add_u32 s36, s36, {(b-1)*16384}")
        for r in range(8): A(f"v_cvt_pk_bf16_f32 v{P+r}, v{P+2*r}, v{P+2*r+1}")
        A(f"buffer_store_dwordx4 {vr(P,4)}, v{VXC}, s[8:11], s36 offen sc1")
        A(f"buffer_store_dwordx4 {vr(P+4,4)}, v{VXC}, s[8:11], s36 offen offset:1024 sc1")
    A(f"s_mul_i32 s36, s22, {3*16384}"); A("s_add_u32 s36, s36, s41"); A("s_add_u32 s37, s36, 16384"); A("s_add_u32 s38, s36, 32768")
    A("s_mov_b32 s42, 0xffff0000")
    A("s_waitcnt vmcnt(6)")
    P = acc(0)
    for r in range(8):
        A(f"v_lshlrev_b32 v20, 16, v{VXR+r}"); A(f"v_and_b32 v21, s42, v{VXR+r}")
        A(f"v_add_f32 v{P+2*r}, v{P+2*r}, v20"); A(f"v_add_f32 v{P+2*r+1}, v{P+2*r+1}, v21")
    A("s_mov_b32 s43, 0")
    R = 32
    A.label("L4_poll")
    for b in range(3):
        for q in range(2):
            A(f"buffer_load_dwordx4 {vr(R+8*b+4*q,4)}, v{VXC}, s[8:11], s{36+b} offen offset:{q*1024} sc1")
    A("s_waitcnt vmcnt(0)")
    A(f"v_max3_u32 v20, v{R}, v{R+1}, v{R+2}")
    for i in range(3, 23, 2): A(f"v_max3_u32 v20, v20, v{R+i}, v{R+i+1}")
    A(f"v_max_u32 v20, v20, v{R+23}")
    A("v_cmp_eq_u32 vcc, -1, v20")
    A("s_cbranch_vccz L4_got")
    A("s_add_u32 s43, s43, 1"); A("s_cmp_lt_u32 s43, 0x40000"); A("s_sleep 1")
    A("s_cbranch_scc1 L4_poll")
    A.label("L4_got")
    for b in range(3):
        for r in range(8):
            A(f"v_lshlrev_b32 v20, 16, v{R+8*b+r}"); A(f"v_and_b32 v21, s42, v{R+8*b+r}")
            A(f"v_add_f32 v{P+2*r}, v{P+2*r}, v20"); A(f"v_add_f32 v{P+2*r+1}, v{P+2*r+1}, v21")
    for r in range(8): A(f"v_cvt_pk_bf16_f32 v{P+r}, v{P+2*r}, v{P+2*r+1}")
    A(f"buffer_store_dwordx4 {vr(P,4)}, v{VO}, s[28:31], s40 offen")
    A(f"buffer_store_dwordx4 {vr(P+4,4)}, v{VO}, s[28:31], s40 offen offset:16")
    A.label("L4_end")
    A("s_endpgm")
    return lab, A.lines, dict(grid=256, block=512, lds=LDS_K4, vgpr=160, sgpr=96)
```

```python
import sys, math, struct
sys.path.insert(0, "work")
from asmlib import Asm, pad, vr, sr

NAME = "parallel_sum__linear_kernel_hedgehog__geglu_ffn__prompt"
WS_BYTES = 268435456
XN_OFF = 0
ACT_OFF = 0x400000
KVP_OFF = 0x1600000
KVP_STRIDE = 8448
XCH_OFF = 0x1A00000
SENT = 0xFFFFFFFF

def f2u(x): return struct.unpack("<I", struct.pack("<f", x))[0]

def srd(A, d, lo, hi, size):
    A(f"s_mov_b32 s{d}, s{lo}"); A(f"s_mov_b32 s{d+1}, s{hi}")
    A(f"s_mov_b32 s{d+2}, {size}"); A(f"s_mov_b32 s{d+3}, 0x20000")

def header(A, lab):
    A(f".globl {lab}"); A(".p2align 8"); A(f".type {lab},@function"); A.label(lab)

def desc(lab, vgpr, sgpr=102):
    acc = (vgpr + 3) // 4 * 4
    return f""".p2align 6
.amdhsa_kernel {lab}
  .amdhsa_next_free_vgpr {vgpr}
  .amdhsa_next_free_sgpr {sgpr}
  .amdhsa_accum_offset {acc}
  .amdhsa_group_segment_fixed_size 0
  .amdhsa_kernarg_size 88
  .amdhsa_user_sgpr_count 2
  .amdhsa_user_sgpr_kernarg_segment_ptr 1
  .amdhsa_system_sgpr_workgroup_id_x 1
.end_amdhsa_kernel
"""

def k1(opt):
    A = Asm(); lab = "ln_kernel"
    header(A, lab)
    A("s_cmp_ge_u32 s2, 256"); A("s_cbranch_scc1 L1_end")
    A("s_load_dwordx2 s[4:5], s[0:1], 0"); A("s_load_dwordx2 s[6:7], s[0:1], 80")
    A("v_and_b32 v1, 63, v0")
    A("v_lshrrev_b32 v2, 6, v0")
    A("v_and_b32 v3, 7, v1")
    A("v_lshrrev_b32 v4, 3, v1")
    A("v_lshlrev_b32 v5, 11, v3"); A("v_lshl_add_u32 v5, v2, 9, v5"); A("v_lshl_add_u32 v5, v4, 4, v5")
    A("s_lshl_b32 s16, s2, 14")
    A("s_waitcnt lgkmcnt(0)")
    srd(A, 8, 4, 5, 2048 * 2048); srd(A, 12, 6, 7, WS_BYTES)
    for q in range(4):
        A(f"buffer_load_dwordx4 v[{8+4*q}:{11+4*q}], v5, s[8:11], s16 offen offset:{q*128}")
    for i in range(4): A(f"v_mov_b32 v{24+i}, -1")
    A("v_lshlrev_b32 v6, 4, v0")
    A(f"s_mul_i32 s17, s2, {KVP_STRIDE}"); A(f"s_add_u32 s17, s17, {KVP_OFF}")
    A("s_add_u32 s18, s17, 4096"); A("s_add_u32 s19, s17, 8192")
    A("buffer_store_dwordx4 v[24:27], v6, s[12:15], s17 offen sc1")
    A("buffer_store_dwordx4 v[24:27], v6, s[12:15], s18 offen sc1")
    A("v_cmp_gt_u32 vcc, 16, v0"); A("s_and_saveexec_b64 s[20:21], vcc")
    A("s_cbranch_execz L1_nz")
    A("buffer_store_dwordx4 v[24:27], v6, s[12:15], s19 offen sc1")
    A.label("L1_nz")
    A("s_mov_b64 exec, s[20:21]")
    A("v_lshrrev_b32 v7, 1, v4"); A("v_lshl_add_u32 v7, v2, 4, v7"); A("v_lshlrev_b32 v7, 16, v7")
    A("v_and_b32 v28, 1, v4"); A("v_lshl_add_u32 v28, v28, 5, v3"); A("v_lshl_add_u32 v7, v28, 4, v7")
    A("s_lshr_b32 s22, s2, 2"); A("s_lshl_b32 s22, s22, 10"); A("s_and_b32 s23, s2, 3"); A("s_lshl_b32 s23, s23, 7")
    A("s_add_u32 s22, s22, s23")
    for q in range(1, 4): A(f"s_add_u32 s{22+q}, s22, {q*262144}")
    A("v_lshlrev_b32 v30, 4, v3"); A("v_lshl_add_u32 v29, v2, 2, v30")
    A("s_mov_b32 s26, 0xffff0000")
    A("s_waitcnt vmcnt(2)")
    for i in range(16):
        A(f"v_lshlrev_b32 v{32+2*i}, 16, v{8+i}"); A(f"v_and_b32 v{33+2*i}, s26, v{8+i}")
    def reduce(src, ldsoff, dst):
        A(f"v_add_f32_dpp v{src}, v{src}, v{src} row_ror:8 row_mask:0xf bank_mask:0xf")
        A(f"v_mov_b32 v31, v{src}"); A(f"v_permlane16_swap_b32 v{src}, v31"); A(f"v_add_f32 v{src}, v{src}, v31")
        A(f"v_mov_b32 v31, v{src}"); A(f"v_permlane32_swap_b32 v{src}, v31"); A(f"v_add_f32 v{src}, v{src}, v31")
        A(f"ds_write_b32 v29, v{src} offset:{ldsoff}")
        A("s_waitcnt lgkmcnt(0)"); A("s_barrier")
        A(f"ds_read_b128 v[24:27], v30 offset:{ldsoff}")
        A("s_waitcnt lgkmcnt(0)")
        A("v_add_f32 v24, v24, v25"); A("v_add_f32 v26, v26, v27"); A(f"v_add_f32 v{dst}, v24, v26")
    for i in range(4):
        A(f"v_add_f32 v{8+i}, v{32+8*i}, v{33+8*i}")
        for k in range(2, 8): A(f"v_add_f32 v{8+i}, v{8+i}, v{32+8*i+k}")
    A("v_add_f32 v8, v8, v9"); A("v_add_f32 v10, v10, v11"); A("v_add_f32 v8, v8, v10")
    reduce(8, 0, 8)
    A(f"v_mul_f32 v8, {hex(f2u(1.0/1024))}, v8")
    for i in range(32): A(f"v_sub_f32 v{32+i}, v{32+i}, v8")
    for i in range(4):
        A(f"v_mul_f32 v{12+i}, v{32+8*i}, v{32+8*i}")
        for k in range(1, 8): A(f"v_fmac_f32 v{12+i}, v{32+8*i+k}, v{32+8*i+k}")
    A("v_add_f32 v12, v12, v13"); A("v_add_f32 v14, v14, v15"); A("v_add_f32 v12, v12, v14")
    reduce(12, 128, 12)
    A(f"v_mov_b32 v13, {hex(f2u(1e-5))}")
    A(f"v_fmac_f32 v13, {hex(f2u(1.0/1024))}, v12")
    A("v_rsq_f32 v13, v13")
    for i in range(32): A(f"v_mul_f32 v{32+i}, v{32+i}, v13")
    for i in range(16): A(f"v_cvt_pk_bf16_f32 v{8+i}, v{32+2*i}, v{33+2*i}")
    for q in range(4):
        A(f"buffer_store_dwordx4 v[{8+4*q}:{11+4*q}], v7, s[12:15], s{22+q} offen")
    A.label("L1_end")
    A("s_endpgm")
    return lab, A.lines, dict(grid=256, block=256, lds=256, vgpr=64, sgpr=32)

def build(kernels, path, verbose=False):
    top = []; body = []; descs = []
    for lab, lines, info in kernels:
        top.append(f"; @launch kernel={lab} grid=({info['grid']},1,1) block=({info['block']},1,1) lds={info['lds']}")
        lines, tot = pad(lines, verbose)
        print(f"{lab}: {len(lines)} lines, {tot} pad states")
        body += lines
        descs.append(desc(lab, info['vgpr'], info['sgpr']))
    txt = "\n".join(top) + '\n.amdgcn_target "amdgcn-amd-amdhsa--gfx950"\n.text\n'
    for l in body:
        txt += (l if (l.endswith(":") or l.startswith(".")) else "    " + l) + "\n"
    txt += '.section .rodata,"a"\n' + "".join(descs)
    open(path, "w").write(txt)

if __name__ == "__main__":
    import k2, k4
    opt = {}
    for a in sys.argv[2:]:
        k, v = a.split("="); opt[k] = int(v)
    build([k1(opt), k2.k2(opt), k4.k4(opt)], sys.argv[1], verbose=opt.get("v", 0))
```

```python
import sys, math, struct
sys.path.insert(0, "work")
from asmlib import Asm, pad, vr, sr
from gen import f2u, srd, header, desc, WS_BYTES, NAME, STAMP_OFF

XN = 0
HACT = 0x400000
OACT = 0x1200000
KVP = 0x1600000; KVS = 8448
XCH = 0x1A00000
FLG = 0x2600000
OOB = 0x40000000

SW = 3; SKS = 4; SNI = 5; SA = 6; SWR = 7
WS = 8; DBG = 12; XS = 16; WO = 20; WD = 24; OUT = 28
SR = 32; M0T = 52; SO = 72; ST = 77
SJ = 82; SMI = 83; SCNT = 84
T0, T1, T2, T3, T4, T5, T6, T7 = range(85, 93)
SIDX = 93; SXCD = 94; SSP = 95
SL = 96; SK1 = 97; SKSH = 98; SKSL = 99
def S4(b): return f"s[{b}:{b+3}]"

QB = 65536; QS = 6144
GB = QB + 4 * QS; GS = 14336; UPO = 7168
PB = GB + 4 * GS
E_KVF = PB + 2048; E_ZF = E_KVF + 4096; E_Z = E_ZF + 256
LDS_BYTES = E_Z + 1024
E_PART = 65536
W2B = 98304

VST = 23
MF = "v_mfma_f32_16x16x32_bf16"
def mfma(d, a, b, c=None):
    cs = vr(d, 4) if c is None else c
    return f"{MF} {vr(d,4)}, {vr(a,4)}, {vr(b,4)}, {cs}"

class Stamper:
    def __init__(self, A, on): self.A = A; self.on = on
    def __call__(self, i, real=False):
        if not self.on: return
        A = self.A
        if i > 0:
            A("s_waitcnt lgkmcnt(0)")
            A(f"v_writelane_b32 v{VST}, s100, {i-1}")
        A("s_memrealtime s[100:101]" if real else "s_memtime s[100:101]")
    def out(self, n):
        if not self.on: return
        A = self.A
        A("s_waitcnt lgkmcnt(0)")
        A(f"v_writelane_b32 v{VST}, s100, {n-1}")
        A(f"s_lshl_b32 s{T0}, s2, 3"); A(f"s_add_u32 s{T0}, s{T0}, s{SW}"); A(f"s_lshl_b32 s{T0}, s{T0}, 8")
        A(f"s_add_u32 s{T0}, s{T0}, {STAMP_OFF}")
        A("v_lshlrev_b32 v22, 2, v1")
        A(f"buffer_store_dword v{VST}, v22, {S4(WS)}, s{T0} offen")

_uid = [0]
def uid(p):
    _uid[0] += 1
    return f"L{p}_{_uid[0]}"

def spin(A, vd, va, srdb, soff, expect, first_loaded=False):
    l0 = uid("sp"); l1 = uid("ok"); l2 = uid("ck")
    A(f"s_mov_b32 s{SSP}, 0")
    if first_loaded: A(f"s_branch {l2}")
    A.label(l0)
    A(f"buffer_load_dword v{vd}, v{va}, {S4(srdb)}, {soff} offen sc1")
    A("s_waitcnt vmcnt(0)")
    A.label(l2)
    A(f"v_cmp_ne_u32 vcc, {expect}, v{vd}")
    A(f"s_cbranch_vccz {l1}")
    A(f"s_add_u32 s{SSP}, s{SSP}, 1"); A(f"s_cmp_lt_u32 s{SSP}, 0x40000"); A("s_sleep 1")
    A(f"s_cbranch_scc1 {l0}")
    A.label(l1)

def flag_off(A, d, kind):
    if kind == "kv":
        A(f"s_lshl_b32 s{d}, s{SJ}, 5"); A(f"s_add_u32 s{d}, s{d}, s{SMI}"); base = 0
    elif kind == "h":
        A(f"s_lshl_b32 s{d}, s{SMI}, 2"); A(f"s_add_u32 s{d}, s{d}, s{SKS}"); A(f"s_lshl_b32 s{d}, s{d}, 5"); A(f"s_add_u32 s{d}, s{d}, s{SNI}"); base = 4096
    elif kind == "o":
        A(f"s_lshl_b32 s{d}, s{SMI}, 5"); A(f"s_add_u32 s{d}, s{d}, s{SJ}"); base = 8192
    else:
        A(f"s_lshl_b32 s{d}, s{SMI}, 3"); A(f"s_add_u32 s{d}, s{d}, s{SNI}"); A(f"s_lshl_b32 s{d}, s{d}, 5"); A(f"s_add_u32 s{d}, s{d}, s{SKS}"); base = 12288
    A(f"s_lshl_b32 s{d}, s{d}, 2"); A(f"s_add_u32 s{d}, s{d}, {FLG + base}")

def signal(A, kind, wave, va, vb):
    l = uid("sg")
    A(f"s_cmp_lg_u32 s{SW}, {wave}"); A(f"s_cbranch_scc1 {l}")
    flag_off(A, T7, kind)
    A(f"v_mov_b32 v{va}, 0"); A(f"v_mov_b32 v{vb}, 1")
    A(f"buffer_store_dword v{vb}, v{va}, {S4(WS)}, s{T7} offen sc1")
    A.label(l)

def line_off(A, d, kind):
    flag_off(A, d, kind)
    A(f"s_and_b32 s{d}, s{d}, 0xffffff80")
NFL = dict(kv=8, h=8, o=32, x=4)
```

```python
from common import *

ACC0 = 96
def acc(b, tb): return ACC0 + (b * 4 + tb) * 4
def afr(hs, i): return 24 + hs * 20 + i * 4
def bfr(par, tb): return 64 + par * 16 + tb * 4
VX = 2; VQ = 4; VG = 6; VD = 7; VPA = 12; VL16 = 13
VT = 8; VTD = 9
PW = 64

def blocks(h):
    if h == 0:
        return [("q", 2), ("q", 3), ("q", 4), ("q", 5), ("g", 0), ("u", 0), ("g", 1), ("u", 1), ("g", 2), ("u", 2)]
    return [("q", 0), ("q", 1), ("g", 3), ("u", 3), ("g", 4), ("u", 4), ("g", 5), ("u", 5), ("g", 6), ("u", 6)]

def a_reads(h, hs, slot):
    R = []
    for i in range(5):
        kind, idx = blocks(h)[hs * 5 + i]
        for sec in range(2):
            d = vr(afr(hs, i) + 2 * sec, 2)
            if kind == "q":
                R.append(f"ds_read_b64_tr_b16 {d}, v{VQ + (idx & 1)} offset:{slot*QS + sec*16*192 + (idx>>1)*64}")
            else:
                R.append(f"ds_read_b64_tr_b16 {d}, v{VG} offset:{slot*GS + (UPO if kind == 'u' else 0) + sec*16*224 + idx*32}")
    return R

def b_reads(s):
    return [f"ds_read_b128 {vr(bfr(s & 1, tb), 4)}, v{VX + (s & 1)} offset:{((s >> 1) & 1)*32768 + tb*2048}" for tb in range(4)]

def next_reads(h, s):
    B = b_reads(s); Ar = a_reads(h, 0, s & 3)
    return [B[0], Ar[0], Ar[1], B[1], B[2], B[3]] + Ar[2:]

def mfmas(h, hs, par):
    M = []
    for i in range(5):
        b = hs * 5 + i
        for tb in range(4):
            if h == 0 and b in (2, 3):
                M.append(mfma(acc(b, tb), bfr(par, tb), afr(hs, i)))
            else:
                M.append(mfma(acc(b, tb), afr(hs, i), bfr(par, tb)))
    return M

def w_dma(slot):
    return [([f"s_mov_b32 m0, s{M0T+slot*5+i}"],
             f"buffer_load_dwordx4 v{VD+i}, {S4(SR+4*i)}, s{SO+i} offen lds",
             [f"s_add_u32 s{SO+i}, s{SO+i}, s{ST+i}"]) for i in range(5)]

def x_dma(opt, xslot, half):
    PS = 1024 if opt["xt"] else 16384
    CS = 262144 if opt["xt"] else 128
    D = []
    for i in range(4):
        pre = [f"s_mov_b32 m0, s{M0T + xslot*2 + half}"] if i == 0 else []
        if i < 3: inc = PS - 1024
        elif half == 0: inc = 4 * PS - 3 * (PS - 1024)
        else: inc = CS - 4 * PS - 3 * (PS - 1024)
        post = [f"s_add_u32 s{SO}, s{SO}, {inc & 0xffffffff:#x}"] if inc else []
        D.append((pre, f"buffer_load_dwordx4 v{VD}, {S4(WS)}, s{SO} offen offset:{i*1024} sc1 lds", post))
    return D

def touch():
    return [([], f"buffer_load_dword v{VTD}, v{VT}, {S4(SR)}, s{SO+1} offen sc1", []),
            ([], f"buffer_load_dword v{VTD}, v{VT}, {S4(SR)}, s{SO+1} offen offset:128 sc1",
             [f"s_add_u32 s{SO+1}, s{SO+1}, s{ST+1}", f"s_min_u32 s{SO+1}, s{SO+1}, s{ST+2}"])]

def emit(A, D):
    for pre, ins, post in D:
        for p in pre: A(p)
        A(ins)
        for p in post: A(p)

def step(A, M, rd, dm, spread=1):
    rd = list(rd); nd = len(dm); n = len(M)
    pos = {}
    for k in range(nd): pos[n - 1 - (nd - 1 - k) * spread] = k
    for i, m in enumerate(M):
        if i in pos:
            for p in dm[pos[i]][0]: A(p)
        A(m)
        if rd: A(rd.pop(0))
        if i in pos:
            A(dm[pos[i]][1])
            for p in dm[pos[i]][2]: A(p)
    assert not rd

def phi_reads():
    return [f"ds_read_b64_tr_b16 {vr(PW + 4*fb + 2*sec, 2)}, v{VPA} offset:{sec*1024 + fb*32}" for fb in range(2) for sec in range(2)]

def mainloop(A, h, opt, hooks):
    sp = opt.get("spread", 2)
    def stage(slot, last):
        d0 = []; d1 = []; vm = None
        if h == 0:
            if not last: d1 = w_dma(slot); vm = 10
            else: vm = [10, 5, 0, None][slot]
        else:
            nt = 2 if opt["touch"] else 0
            if slot == 0:
                d0 = x_dma(opt, 1, 1)
                if not last: d1 = touch() if nt else []
                else: d1 = hooks["t2"]; nt = len(d1)
            elif slot == 1:
                vm = nt if not last else len(hooks["t2"])
                if not last: d1 = x_dma(opt, 0, 0)
            elif slot == 2:
                if not last: d0 = x_dma(opt, 0, 1)
            else:
                if not last: vm = 0; d1 = x_dma(opt, 1, 0)
        step(A, mfmas(h, 0, slot & 1), a_reads(h, 1, slot), d0, sp)
        A(f"s_waitcnt vmcnt({vm}) lgkmcnt(0)" if vm is not None else "s_waitcnt lgkmcnt(0)")
        A("s_barrier")
        if last and slot == 3:
            step(A, mfmas(h, 1, 1), phi_reads(), hooks["w2"], 2)
        else:
            step(A, mfmas(h, 1, slot & 1), next_reads(h, slot + 1), d1, 1 if len(d1) > 3 else sp)
            A("s_waitcnt lgkmcnt(0)")
    A(f"s_mov_b32 s{SCNT}, 7")
    A.label(f"L1_loop{h}")
    for slot in range(4): stage(slot, False)
    A(f"s_sub_u32 s{SCNT}, s{SCNT}, 1"); A(f"s_cmp_lg_u32 s{SCNT}, 0"); A(f"s_cbranch_scc1 L1_loop{h}")
    for l in hooks["pre_last"]: A(l)
    for slot in range(4): stage(slot, True)

def divmod_v(A, q, r, n, d, t):
    m = (65536 + d - 1) // d
    for x in range(1024): assert (x * m) >> 16 == x // d
    A(f"v_mul_u32_u24 v{q}, {m}, v{n}"); A(f"v_lshrrev_b32 v{q}, 16, v{q}")
    A(f"v_mul_u32_u24 v{t}, {d}, v{q}"); A(f"v_sub_u32 v{r}, v{n}, v{t}")

def read_bases(A):
    A("v_lshrrev_b32 v14, 4, v1"); A("v_lshrrev_b32 v15, 2, v1"); A("v_and_b32 v16, 3, v1")
    A("v_and_b32 v17, 15, v1"); A("v_and_b32 v18, 7, v1"); A("v_xor_b32 v18, v14, v18")
    A(f"s_lshl_b32 s{T0}, s{SWR}, 13")
    A(f"v_lshlrev_b32 v17, 7, v17"); A(f"v_add_u32 v17, s{T0}, v17")
    A(f"v_lshl_add_u32 v{VX}, v18, 4, v17"); A("v_xor_b32 v18, 4, v18"); A(f"v_lshl_add_u32 v{VX+1}, v18, 4, v17")
    A("v_mul_u32_u24 v17, 192, v15"); A("v_lshl_add_u32 v17, v16, 3, v17"); A(f"v_add_u32 v17, {QB}, v17")
    A("v_and_b32 v18, 1, v14"); A(f"v_lshl_add_u32 v{VQ}, v18, 5, v17"); A("v_xor_b32 v18, 1, v18"); A(f"v_lshl_add_u32 v{VQ+1}, v18, 5, v17")
    A("v_mul_u32_u24 v17, 224, v15"); A("v_lshl_add_u32 v17, v16, 3, v17"); A(f"v_add_u32 v{VG}, {GB}, v17")
    A("v_lshlrev_b32 v17, 6, v15"); A("v_lshl_add_u32 v17, v16, 3, v17"); A(f"v_add_u32 v{VPA}, {PB}, v17")

def zero_acc(A):
    for i in range(160): A(f"v_mov_b32 v{ACC0+i}, 0")

PX, PQ, PPH, PWO, PG, PU, PD, POUT, PDBG, PWS = 52, 54, 56, 58, 62, 64, 66, 68, 70, 72

def entry(A, st):
    A("s_cmp_ge_u32 s2, 256"); A("s_cbranch_scc1 L_end")
    st(0, True)
    A("s_load_dwordx16 s[52:67], s[0:1], 0"); A("s_load_dwordx4 s[68:71], s[0:1], 64"); A("s_load_dwordx2 s[72:73], s[0:1], 80")
    A("v_lshrrev_b32 v2, 6, v0"); A("v_and_b32 v1, 63, v0")
    A(f"v_readfirstlane_b32 s{SW}, v2")
    A(f"s_and_b32 s{SXCD}, s2, 7"); A(f"s_lshr_b32 s{SIDX}, s2, 3")
    A(f"s_and_b32 s{SA}, s{SIDX}, 3"); A(f"s_lshr_b32 s{SMI}, s{SIDX}, 2")
    A(f"s_lshl_b32 s{SJ}, s{SXCD}, 2"); A(f"s_add_u32 s{SJ}, s{SJ}, s{SA}")
    A(f"s_lshr_b32 s{SKS}, s{SJ}, 3"); A(f"s_and_b32 s{SNI}, s{SJ}, 7")
    A(f"s_lshr_b32 s{SKSH}, s{SKS}, 1"); A(f"s_and_b32 s{SKSL}, s{SKS}, 1")
    A(f"v_lshlrev_b32 v{VL16}, 4, v1")
    A(f"s_and_b32 s{SWR}, s{SW}, 3")
    st(1)
    A("s_waitcnt lgkmcnt(0)")
    srd(A, XS, PX, PX + 1, 2048 * 2048); srd(A, WS, PWS, PWS + 1, WS_BYTES)

def common_srds(A):
    srd(A, DBG, PDBG, PDBG + 1, 256); srd(A, WO, PWO, PWO + 1, 1024 * 2048)
    srd(A, WD, PD, PD + 1, 3584 * 2048); srd(A, OUT, POUT, POUT + 1, 2048 * 2048)

def krow(A, d, rho, t):
    A(f"v_bfe_u32 v{d}, v{rho}, 2, 2"); A(f"v_lshlrev_b32 v{d}, 3, v{d}")
    A(f"v_lshrrev_b32 v{t}, 4, v{rho}"); A(f"v_lshl_add_u32 v{d}, v{t}, 2, v{d}")
    A(f"v_and_b32 v{t}, 3, v{rho}"); A(f"v_add_u32 v{d}, v{d}, v{t}")

def w_setup(A, opt, st):
    common_srds(A)
    for w in range(4):
        if w < 3:
            A(f"s_cmp_lg_u32 s{SW}, {w}"); A(f"s_cbranch_scc1 L0_ws{w+1}")
        pcs = []
        for i in range(5):
            g = 5 * w + i
            kind, idx = (0, g) if g < 6 else (1, g - 6) if g < 13 else (2, g - 13)
            pcs.append((kind, idx))
            p = [PQ, PG, PU][kind]
            srd(A, SR + 4 * i, p, p + 1, 1024 * (6144 if kind == 0 else 7168))
        if w < 3 and opt["touch"]:
            if w == 0:
                divmod_v(A, 14, 15, 1, 6, 16)
                A("v_mul_u32_u24 v17, 6144, v14"); A("v_lshrrev_b32 v16, 1, v15"); A("v_lshl_add_u32 v17, v16, 11, v17")
                A("v_and_b32 v16, 1, v15"); A("v_lshl_add_u32 v17, v16, 7, v17")
                A(f"s_mul_i32 s{T0}, s{SIDX}, {8*6144}"); A(f"s_lshl_b32 s{T1}, s{SXCD}, 8")
            else:
                divmod_v(A, 14, 15, 1, 7, 16)
                A("v_mul_u32_u24 v17, 7168, v14"); A("v_lshl_add_u32 v17, v15, 7, v17")
                A(f"s_mul_i32 s{T0}, s{SIDX}, {8*7168}"); A(f"s_mul_i32 s{T1}, s{SXCD}, 896")
            A(f"s_add_u32 s{T0}, s{T0}, s{T1}")
            A(f"v_mov_b32 v16, {OOB}"); A("v_cmp_gt_u32 vcc, 8, v14"); A("v_cndmask_b32 v17, v16, v17, vcc")
            A(f"buffer_load_dword v24, v17, {S4(SR + 4 * [0, 1, 3][w])}, s{T0} offen")
        if w == 3:
            srd(A, T3, PPH, PPH + 1, 65536)
            A(f"s_mov_b32 m0, {PB}"); A(f"s_lshl_b32 s{T0}, s{SJ}, 11")
            A(f"buffer_load_dwordx4 v{VL16}, {S4(T3)}, s{T0} offen lds")
            A(f"buffer_load_dwordx4 v{VL16}, {S4(T3)}, s{T0} offen offset:1024 lds")
        for i, (kind, idx) in enumerate(pcs):
            A(f"v_add_u32 v14, {idx*64}, v1")
            divmod_v(A, 15, 16, 14, 12 if kind == 0 else 14, 17)
            krow(A, 17, 15, 19)
            if kind == 0:
                A("v_mul_u32_u24 v17, 6144, v17"); A("v_lshrrev_b32 v19, 2, v16"); A("v_lshl_add_u32 v17, v19, 11, v17")
                A("v_and_b32 v16, 3, v16"); A("v_lshrrev_b32 v19, 1, v15"); A("v_and_b32 v19, 2, v19"); A("v_xor_b32 v16, v16, v19")
                A(f"v_lshl_add_u32 v{VD+i}, v16, 4, v17")
                A(f"s_lshl_b32 s{SO+i}, s{SJ}, 6"); A(f"s_mov_b32 s{ST+i}, {32*6144}")
                for sl in range(4): A(f"s_mov_b32 s{M0T+sl*5+i}, {QB + sl*QS + idx*1024}")
            else:
                A("v_mul_u32_u24 v17, 7168, v17"); A(f"v_lshl_add_u32 v{VD+i}, v16, 4, v17")
                A(f"s_mul_i32 s{SO+i}, s{SJ}, 224"); A(f"s_mov_b32 s{ST+i}, {32*7168}")
                for sl in range(4): A(f"s_mov_b32 s{M0T+sl*5+i}, {GB + sl*GS + (UPO if kind == 2 else 0) + idx*1024}")
        if w < 3:
            A("s_branch L0_wgo"); A.label(f"L0_ws{w+1}")
    A.label("L0_wgo")
    read_bases(A); zero_acc(A)
    ne = opt.get("wearly", 2)
    if opt.get("wwait", 1): A("s_waitcnt vmcnt(0)")
    for sl in range(ne): emit(A, w_dma(sl))
    st(2)
    A("s_barrier")
    for sl in range(ne, 2): emit(A, w_dma(sl))
    A("s_barrier")
    st(3)
    for sl in range(max(ne, 2), 4): emit(A, w_dma(sl))
    A("s_waitcnt vmcnt(15)")
    A("s_barrier")

def wave_sum2(A, a, b, t):
    A(f"v_permlane32_swap_b32 v{a}, v{b}"); A(f"v_add_f32 v{a}, v{a}, v{b}")
    A(f"v_mov_b32 v{t}, v{a}"); A(f"v_permlane16_swap_b32 v{a}, v{t}"); A(f"v_add_f32 v{a}, v{a}, v{t}")
    for r in (8, 4, 2, 1): A(f"v_add_f32_dpp v{a}, v{a}, v{a} row_ror:{r} row_mask:0xf bank_mask:0xf")
def bcast2(A, a, b):
    A(f"v_mov_b32 v{b}, v{a}"); A(f"v_permlane32_swap_b32 v{a}, v{b}")

def x_setup(A, opt, st):
    A(f"s_lshl_b32 s{T0}, s{SMI}, 5"); A(f"s_add_u32 s{T0}, s{T0}, s{SJ}"); A(f"s_lshl_b32 s{T0}, s{T0}, 2"); A(f"s_add_u32 s{T0}, s{T0}, s{SWR}")
    A(f"s_lshl_b32 s{T1}, s{T0}, 12")
    for i in range(4): A(f"buffer_load_dwordx4 {vr(24+4*i,4)}, v{VL16}, {S4(XS)}, s{T1} offen offset:{i*1024}")
    common_srds(A)
    for u, kind in enumerate(("kv", "h", "o", "x")):
        flag_off(A, T3, kind)
        if u == 0: A(f"s_mov_b32 s{T2}, s{T3}")
        else:
            A(f"s_cmp_eq_u32 s{SWR}, {u}"); A(f"s_cselect_b32 s{T2}, s{T3}, s{T2}")
    A("v_mov_b32 v14, 0")
    A(f"buffer_store_dword v14, v14, {S4(WS)}, s{T2} offen sc1")
    A(f"s_cmp_lg_u32 s{SWR}, 0"); A("s_cbranch_scc1 L0_xt1")
    srd(A, SR, PWS, PWS + 1, WS_BYTES)
    A(f"s_lshl_b32 s{T2}, s{SMI}, 2"); A(f"s_add_u32 s{T2}, s{T2}, s{SA}")
    if opt["xt"]:
        A("v_lshrrev_b32 v14, 5, v1"); A("v_and_b32 v15, 31, v1"); A("v_lshlrev_b32 v14, 18, v14"); A(f"v_lshl_add_u32 v{VT}, v15, 8, v14")
        A(f"s_lshl_b32 s{T2}, s{T2}, 13"); A(f"s_add_u32 s{SO+1}, s{T2}, {XN + 2*262144}"); A(f"s_mov_b32 s{ST+1}, {2*262144}")
        A(f"s_add_u32 s{ST+2}, s{T2}, {XN + 14*262144}")
    else:
        A(f"v_lshlrev_b32 v{VT}, 11, v1")
        A(f"s_lshl_b32 s{T2}, s{T2}, 17"); A(f"s_add_u32 s{SO+1}, s{T2}, {XN + 256}"); A(f"s_mov_b32 s{ST+1}, 256")
        A(f"s_add_u32 s{ST+2}, s{T2}, {XN + 14*128}")
    A("s_branch L0_xt3")
    A.label("L0_xt1")
    A(f"s_cmp_lg_u32 s{SWR}, 1"); A("s_cbranch_scc1 L0_xt2")
    srd(A, SR, PQ, PQ + 1, 1024 * 6144)
    A("v_lshrrev_b32 v14, 2, v1"); A("v_and_b32 v15, 3, v1")
    A("v_mul_u32_u24 v15, 6144, v15"); A("v_lshl_add_u32 v15, v14, 11, v15")
    A(f"v_mov_b32 v16, {OOB}"); A("v_cmp_gt_u32 vcc, 3, v14"); A(f"v_cndmask_b32 v{VT}, v16, v15, vcc")
    A(f"s_mul_i32 s{T2}, s{SIDX}, {4*6144}"); A(f"s_lshl_b32 s{T3}, s{SXCD}, 8"); A(f"s_add_u32 s{T2}, s{T2}, s{T3}")
    A(f"s_add_u32 s{SO+1}, s{T2}, {128*6144}"); A(f"s_mov_b32 s{ST+1}, {128*6144}"); A(f"s_add_u32 s{ST+2}, s{T2}, {7*128*6144}")
    A("s_branch L0_xt3")
    A.label("L0_xt2")
    A(f"s_cmp_eq_u32 s{SWR}, 2"); A(f"s_cselect_b32 s{T3}, s{PG}, s{PU}"); A(f"s_cselect_b32 s{T4}, s{PG+1}, s{PU+1}")
    srd(A, SR, T3, T4, 1024 * 7168)
    A("v_lshrrev_b32 v14, 2, v1"); A("v_and_b32 v15, 3, v1")
    A("v_mul_u32_u24 v15, 7168, v15"); A("v_lshl_add_u32 v15, v14, 8, v15")
    A(f"v_mov_b32 v16, {OOB}"); A("v_cmp_gt_u32 vcc, 4, v14"); A(f"v_cndmask_b32 v{VT}, v16, v15, vcc")
    A(f"s_mul_i32 s{T2}, s{SIDX}, {4*7168}"); A(f"s_mul_i32 s{T3}, s{SXCD}, 896"); A(f"s_add_u32 s{T2}, s{T2}, s{T3}")
    A(f"s_add_u32 s{SO+1}, s{T2}, {128*7168}"); A(f"s_mov_b32 s{ST+1}, {128*7168}"); A(f"s_add_u32 s{ST+2}, s{T2}, {7*128*7168}")
    A.label("L0_xt3")
    A(f"s_lshl_b32 s{T2}, s{SMI}, 2"); A(f"s_add_u32 s{T2}, s{T2}, s{SWR}")
    if opt["xt"]:
        A(f"v_mov_b32 v{VD}, v{VL16}"); A(f"s_lshl_b32 s{SO}, s{T2}, 13")
    else:
        A("v_lshrrev_b32 v14, 3, v1"); A("v_and_b32 v15, 7, v1"); A("v_xor_b32 v15, v14, v15")
        A("v_lshlrev_b32 v14, 11, v14"); A(f"v_lshl_add_u32 v{VD}, v15, 4, v14"); A(f"s_lshl_b32 s{SO}, s{T2}, 17")
    if XN: A(f"s_add_u32 s{SO}, s{SO}, {XN}")
    A(f"s_lshl_b32 s{M0T}, s{SWR}, 13")
    for k in range(1, 4): A(f"s_add_u32 s{M0T+k}, s{M0T}, {(k>>1)*32768 + (k&1)*4096}")
    read_bases(A)
    if opt["xt"]:
        A("v_lshrrev_b32 v14, 3, v1"); A("v_lshlrev_b32 v14, 18, v14"); A("v_and_b32 v15, 7, v1")
        A(f"s_lshl_b32 s{T2}, s{SWR}, 1"); A(f"v_xor_b32 v15, s{T2}, v15"); A("v_lshl_add_u32 v20, v15, 4, v14")
        A("v_xor_b32 v15, 1, v15"); A("v_lshl_add_u32 v21, v15, 4, v14")
        A(f"s_lshl_b32 s{T1}, s{T0}, 8"); A(f"s_add_u32 s{T2}, s{T1}, {8*262144}")
    A(f"s_mov_b32 s{T3}, 0xffff0000")
    A("s_waitcnt vmcnt(1)")
    F = 40
    for i in range(16):
        A(f"v_lshlrev_b32 v{F+2*i}, 16, v{24+i}"); A(f"v_and_b32 v{F+1+2*i}, s{T3}, v{24+i}")
    for t in range(2):
        for c in range(2):
            d = 14 + 2 * c + t; b = F + 16 * t + 8 * c
            A(f"v_add_f32 v{d}, v{b}, v{b+1}")
    for k in range(2, 8):
        for t in range(2):
            for c in range(2):
                d = 14 + 2 * c + t; b = F + 16 * t + 8 * c
                A(f"v_add_f32 v{d}, v{d}, v{b+k}")
    A("v_add_f32 v14, v14, v16"); A("v_add_f32 v15, v15, v17")
    wave_sum2(A, 14, 15, 16)
    A(f"v_mul_f32 v14, {hex(f2u(1.0/1024))}, v14")
    bcast2(A, 14, 15)
    for i in range(32): A(f"v_sub_f32 v{F+i}, v{F+i}, v{14 + i//16}")
    for k in range(8):
        for t in range(2):
            for c in range(2):
                d = 14 + 2 * c + t; b = F + 16 * t + 8 * c + k
                A(f"v_mul_f32 v{d}, v{b}, v{b}" if k == 0 else f"v_fmac_f32 v{d}, v{b}, v{b}")
    A("v_add_f32 v14, v14, v16"); A("v_add_f32 v15, v15, v17")
    wave_sum2(A, 14, 15, 16)
    A(f"v_mov_b32 v16, {hex(f2u(1e-5))}"); A(f"v_fmac_f32 v16, {hex(f2u(1.0/1024))}, v14")
    A("v_rsq_f32 v14, v16")
    bcast2(A, 14, 15)
    for i in range(32): A(f"v_mul_f32 v{F+i}, v{F+i}, v{14 + i//16}")
    for q in range(4):
        for i in range(4): A(f"v_cvt_pk_bf16_f32 v{24+4*q+i}, v{F+8*q+2*i}, v{F+8*q+2*i+1}")
        if opt["xt"]:
            A(f"buffer_store_dwordx4 {vr(24+4*q,4)}, v{20 + (q>>1)}, {S4(WS)}, s{T1 + (q&1)} offen offset:{(q>>1)*128} sc1")
        else:
            A(f"buffer_store_dwordx4 {vr(24+4*q,4)}, v{VL16}, {S4(WS)}, s{T1} offen offset:{q*1024} sc1")
    zero_acc(A)
    A(f"s_lshl_b32 s{T0}, s{SMI}, 5"); A(f"s_add_u32 s{T1}, s{T0}, s{SJ}")
    A("v_mov_b32 v14, 0"); A("v_mov_b32 v15, 1"); A("v_and_b32 v16, 7, v1"); A("v_lshlrev_b32 v16, 2, v16")
    A(f"s_mov_b32 s{T2}, 0x01010101")
    A("s_waitcnt vmcnt(0)")
    st(2)
    A("s_barrier")
    A(f"s_cmp_lg_u32 s{SWR}, 0"); A("s_cbranch_scc1 L0_xw")
    A(f"buffer_store_byte v15, v14, {S4(DBG)}, s{T1} offen sc1")
    spin(A, 17, 16, DBG, f"s{T0}", f"s{T2}")
    A.label("L0_xw")
    A("s_barrier")
    st(3)
    emit(A, x_dma(opt, 0, 0)); emit(A, x_dma(opt, 0, 1)); emit(A, x_dma(opt, 1, 0))
    nt = 0
    if opt["touch"]:
        emit(A, touch()); nt = 2
    A(f"s_waitcnt vmcnt({4 + nt})")
    A("s_barrier")
```

```python
from common import *
from p1 import acc, blocks, PW, VL16

VK0 = 22
VHS = 20
VHO = 21
SHB = 48
PHQ = 224

def gelu8(A, G, U, T, D):
    for i in range(8): A(f"v_mul_f32 v{T+i}, v{G[i]}, v{G[i]}")
    for i in range(8): A(f"v_fma_f32 v{T+i}, v{T+i}, s{SK1}, v{VK0}")
    for i in range(8): A(f"v_mul_f32 v{T+i}, v{T+i}, v{G[i]}")
    for i in range(8):
        A(f"v_exp_f32 v{T+i}, v{T+i}"); A(f"v_mul_f32 v{G[i]}, v{G[i]}, v{U[i]}")
    for i in range(8): A(f"v_add_f32 v{T+i}, 1.0, v{T+i}")
    for i in range(8): A(f"v_rcp_f32 v{T+i}, v{T+i}")
    for i in range(8): A(f"v_mul_f32 v{G[i]}, v{G[i]}, v{T+i}")
    for r in range(4): A(f"v_cvt_pk_bf16_f32 v{D+r}, v{G[2*r]}, v{G[2*r+1]}")

def gelus(A, h, vm):
    bl = blocks(h); ix = {k: i for i, k in enumerate(bl)}
    pairs = [(0, 1, 0)] if h == 0 else [(3, 4, 1), (5, 6, 2)]
    n = 0
    for ga, gb, t in pairs:
        A(f"s_mul_i32 s{T0}, s{SNI}, {3*16384}"); A(f"s_add_u32 s{T0}, s{T0}, s{SHB}")
        if t: A(f"s_add_u32 s{T0}, s{T0}, {t*16384}")
        for tb in range(4):
            G = [acc(ix[("g", ga)], tb) + i for i in range(4)] + [acc(ix[("g", gb)], tb) + i for i in range(4)]
            U = [acc(ix[("u", ga)], tb) + i for i in range(4)] + [acc(ix[("u", gb)], tb) + i for i in range(4)]
            gelu8(A, G, U, 24 + 8 * (n & 1), U[0]); n += 1
            A(f"buffer_store_dwordx4 {vr(U[0],4)}, v{VHS}, {S4(WS)}, s{T0} offen offset:{tb*1024} sc1")
    if h == 0:
        A(f"s_lshl_b32 s{T0}, s{SNI}, 13"); A(f"s_add_u32 s{T0}, s{T0}, s{SHB}"); A(f"s_add_u32 s{T0}, s{T0}, {24*16384}")
        for tp in range(2):
            G = [acc(ix[("g", 2)], 2 * tp) + i for i in range(8)]
            U = [acc(ix[("u", 2)], 2 * tp) + i for i in range(8)]
            gelu8(A, G, U, 24 + 8 * (n & 1), U[0]); n += 1
            A(f"buffer_store_dwordx4 {vr(U[0],4)}, v{VHO}, {S4(WS)}, s{T0} offen offset:{tp*1024} sc1")

def red8(A, R, op):
    for i in range(4):
        A(f"v_permlane32_swap_b32 v{R+i}, v{R+4+i}")
    for i in range(4):
        A(f"{op} v{R+i}, v{R+i}, v{R+4+i}")
    for i in range(2):
        A(f"v_permlane16_swap_b32 v{R+i}, v{R+2+i}")
    for i in range(2):
        A(f"{op} v{R+i}, v{R+i}, v{R+2+i}")
def bc8(A, R):
    for i in range(2): A(f"v_mov_b32 v{R+2+i}, v{R+i}")
    for i in range(2): A(f"v_permlane16_swap_b32 v{R+i}, v{R+2+i}")
    for i in range(4): A(f"v_mov_b32 v{R+4+i}, v{R+i}")
    for i in range(4): A(f"v_permlane32_swap_b32 v{R+i}, v{R+4+i}")

EP = 160
def feat_a(A):
    KB = 40
    for tb in range(4):
        for b in range(2):
            for r in range(2):
                A(f"v_cvt_pk_bf16_f32 v{KB+4*tb+2*b+r}, v{acc(b,tb)+2*r}, v{acc(b,tb)+2*r+1}")
    for tb in range(4):
        for fb in range(2):
            A(mfma(acc(fb, tb), PW + 4 * fb, KB + 4 * tb, "0"))
def P(tb, k): return acc(k >> 2, tb) + (k & 3)
def E(tb, k): return EP + tb * 8 + k
def feat_b(A):
    R = 72
    for tb in range(4):
        mx = R + 2 * tb; mn = mx + 1
        A(f"v_max3_f32 v{mx}, v{P(tb,0)}, v{P(tb,1)}, v{P(tb,2)}")
        A(f"v_max3_f32 v{mn}, -v{P(tb,0)}, -v{P(tb,1)}, -v{P(tb,2)}")
    for k in (3, 5):
        for tb in range(4):
            mx = R + 2 * tb; mn = mx + 1
            A(f"v_max3_f32 v{mx}, v{mx}, v{P(tb,k)}, v{P(tb,k+1)}")
            A(f"v_max3_f32 v{mn}, v{mn}, -v{P(tb,k)}, -v{P(tb,k+1)}")
    for tb in range(4):
        mx = R + 2 * tb; mn = mx + 1
        A(f"v_max_f32 v{mx}, v{mx}, v{P(tb,7)}")
        A(f"v_max_f32_e64 v{mn}, v{mn}, -v{P(tb,7)}")
    red8(A, R, "v_max_f32")
    for i in range(2): A(f"v_mul_f32_e64 v{R+i}, v{R+i}, -s{SL}")
    bc8(A, R)
    for tb in range(4):
        for k in range(8):
            A(f"v_fma_f32 v{E(tb,k)}, v{P(tb,k)}, s{SL}, v{R+2*tb}")
            A(f"v_fma_f32 v{P(tb,k)}, -v{P(tb,k)}, s{SL}, v{R+2*tb+1}")
        if tb > 0:
            t = tb - 1
    for tb in range(4):
        for k in range(8):
            A(f"v_exp_f32 v{E(tb,k)}, v{E(tb,k)}")
            A(f"v_exp_f32 v{P(tb,k)}, v{P(tb,k)}")
            if tb > 0 and k > 0:
                t = tb - 1
                a0 = (E(t, 0), P(t, 0)) if k == 1 else (R + 2 * t, R + 2 * t + 1)
                A(f"v_add_f32 v{R+2*t}, v{a0[0]}, v{E(t,k)}"); A(f"v_add_f32 v{R+2*t+1}, v{a0[1]}, v{P(t,k)}")
    t = 3
    A(f"v_add_f32 v{R+6}, v{E(t,0)}, v{E(t,1)}"); A(f"v_add_f32 v{R+7}, v{P(t,0)}, v{P(t,1)}")
    A(f"v_add_f32 v80, v{E(t,2)}, v{E(t,3)}"); A(f"v_add_f32 v81, v{P(t,2)}, v{P(t,3)}")
    for k in (4, 6):
        A(f"v_add_f32 v{R+6}, v{R+6}, v{E(t,k)}"); A(f"v_add_f32 v{R+7}, v{R+7}, v{P(t,k)}")
        A(f"v_add_f32 v80, v80, v{E(t,k+1)}"); A(f"v_add_f32 v81, v81, v{P(t,k+1)}")
    A(f"v_add_f32 v{R+6}, v{R+6}, v80"); A(f"v_add_f32 v{R+7}, v{R+7}, v81")
def feat_c(A, PH, after_tb=None):
    R = 72
    red8(A, R, "v_add_f32")
    for i in range(2): A(f"v_rcp_f32 v{R+i}, v{R+i}")
    bc8(A, R)
    for tb in range(4):
        for k in range(8):
            A(f"v_mul_f32 v{E(tb,k)}, v{E(tb,k)}, v{R+2*tb}")
            A(f"v_mul_f32 v{P(tb,k)}, v{P(tb,k)}, v{R+2*tb+1}")
        for r in range(4): A(f"v_cvt_pk_bf16_f32 v{PH+8*tb+r}, v{E(tb,2*r)}, v{E(tb,2*r+1)}")
        for r in range(4): A(f"v_cvt_pk_bf16_f32 v{PH+8*tb+4+r}, v{P(tb,2*r)}, v{P(tb,2*r+1)}")
        if after_tb: after_tb(tb)

VID = 82; VONE = 56; VB = 64
def vb(db, tp): return (64 if db == 0 else 88) + 4 * tp
def k_consts(A):
    A("v_and_b32 v60, 15, v1"); A("v_lshrrev_b32 v61, 4, v1"); A("v_lshlrev_b32 v61, 2, v61"); A("v_sub_u32 v60, v60, v61")
    A("v_mov_b32 v61, 0x3f80"); A("v_mov_b32 v62, 0x3f800000")
    for r in range(2):
        d = VID + 2 + r
        A(f"v_cmp_eq_u32 vcc, {2*r}, v60"); A(f"v_cndmask_b32 v{d}, 0, v61, vcc")
        A(f"v_cmp_eq_u32 vcc, {2*r+1}, v60"); A(f"v_cndmask_b32 v{d}, v{d}, v62, vcc")
    for r in (0, 1, 4, 5): A(f"v_mov_b32 v{VID+r}, 0")
    for r in range(4): A(f"v_mov_b32 v{VONE+r}, 0x3f803f80")
def v_cvt(A):
    for db in (1, 0):
        for tp in range(2):
            for r in range(4):
                s = acc(2 + db, 2 * tp) + 2 * r
                A(f"v_cvt_pk_bf16_f32 v{vb(db,tp)+r}, v{s}, v{s+1}")

TT = 192
def k_tail(A):
    PH = 24
    def T(tb, sg, fb): return TT + ((sg * 2 + fb) * 4 + tb) * 4
    def tr(tb):
        for sg in range(2):
            for fb in range(2):
                A(mfma(T(tb, sg, fb), PH + 8 * tb + 4 * sg, VID + 2 - 2 * fb, "0"))
    feat_c(A, PH, tr)
    PT = 128
    A(f"s_lshl_b32 s{T0}, s{SWR}, 13"); A(f"s_add_u32 s{T0}, s{T0}, {E_PART}"); A(f"v_add_u32 v60, s{T0}, v{VL16}")
    A(f"s_lshl_b32 s{T0}, s{SWR}, 8"); A(f"s_add_u32 s{T0}, s{T0}, {E_Z}"); A("v_lshrrev_b32 v61, 4, v1"); A(f"v_lshl_add_u32 v61, v61, 4, s{T0}")
    for tp in range(2):
        for z in range(4):
            for r in range(4):
                s = T(2 * tp, z >> 1, z & 1) + 2 * r
                A(f"v_cvt_pk_bf16_f32 v{PT + (z*2+tp)*4 + r}, v{s}, v{s+1}")
        for z in range(4):
            sg, fb = z >> 1, z & 1
            c = "0" if tp == 0 else None
            for db in range(2):
                A(mfma(96 + (sg * 4 + db * 2 + fb) * 4, PT + (z * 2 + tp) * 4, vb(db, tp), c))
            A(mfma(EP + 4 * z, PT + (z * 2 + tp) * 4, VONE, c))
    for s in (0, 2, 1, 3, 4, 6, 5, 7):
        A(f"ds_write_b128 v60, {vr(96+4*s,4)} offset:{s*1024}")
    A("s_mov_b32 exec_lo, 0x00010001"); A("s_mov_b32 exec_hi, 0x00010001")
    for z in range(4): A(f"ds_write_b128 v61, {vr(EP+4*z,4)} offset:{z*64}")
    A("s_mov_b64 exec, -1")

def reduce_publish(A, h, vm):
    R = 24
    A(f"s_lshl_b32 s{T0}, s{SW}, 10"); A(f"v_add_u32 v60, s{T0}, v{VL16}"); A(f"v_add_u32 v61, {E_PART}, v60")
    for p in range(4): A(f"ds_read_b128 {vr(R+4*p,4)}, v61 offset:{p*8192}")
    A(f"s_lshl_b32 s{T0}, s{SJ}, 3"); A(f"s_add_u32 s{T0}, s{T0}, s{SMI}"); A(f"s_mul_i32 s{T0}, s{T0}, {KVS}"); A(f"s_add_u32 s{T0}, s{T0}, {KVP}")
    if h == 1:
        A(f"s_cmp_lg_u32 s{SW}, 7"); A("s_cbranch_scc1 L2_noz")
        A("v_lshlrev_b32 v62, 2, v1"); A(f"v_add_u32 v63, {E_Z}, v62")
        for p in range(4): A(f"ds_read_b32 v{40+p}, v63 offset:{p*256}")
        A(f"s_add_u32 s{T1}, s{T0}, 8192")
        A("s_waitcnt lgkmcnt(0)")
        A("v_add_f32 v40, v40, v41"); A("v_add_f32 v42, v42, v43"); A("v_add_f32 v40, v40, v42")
        A(f"buffer_store_dword v40, v62, {S4(WS)}, s{T1} offen sc1")
        A.label("L2_noz")
    A("s_waitcnt lgkmcnt(0)")
    for i in range(4):
        A(f"v_add_f32 v{R+i}, v{R+i}, v{R+4+i}"); A(f"v_add_f32 v{R+8+i}, v{R+8+i}, v{R+12+i}")
    for i in range(4): A(f"v_add_f32 v{R+i}, v{R+i}, v{R+8+i}")
    A(f"buffer_store_dwordx4 {vr(R,4)}, v60, {S4(WS)}, s{T0} offen sc1"); vm.add("kvp")

def consts(A):
    c0 = -2.0 * math.sqrt(2.0 / math.pi) * math.log2(math.e)
    A(f"s_mov_b32 s{SL}, {hex(f2u(math.log2(math.e)))}"); A(f"s_mov_b32 s{SK1}, {hex(f2u(c0*0.044715))}")
    A(f"v_mov_b32 v{VK0}, {hex(f2u(c0))}")
    A(f"s_lshl_b32 s{T0}, s{SWR}, 12"); A(f"v_add_u32 v{VHS}, s{T0}, v{VL16}")
    A(f"s_lshl_b32 s{T0}, s{SWR}, 11"); A(f"v_add_u32 v{VHO}, s{T0}, v{VL16}")

def epilogue(A, h, opt, st, vm, hk):
    A("s_waitcnt lgkmcnt(0)")
    feat_a(A)
    if h == 0: v_cvt(A)
    gelus(A, h, vm)
    st(6)
    if h == 0: k_consts(A)
    else: hk["dbgcheck"](A)
    feat_b(A)
    A("s_waitcnt vmcnt(0)"); vm.clear()
    A("s_barrier")
    st(7)
    signal(A, "h", 0, 60, 61)
    hk["after_bh"](A)
    if h == 0: k_tail(A)
    else: feat_c(A, PHQ)
    hk["poll_h"](A)
    A("s_waitcnt lgkmcnt(0)")
    A("s_barrier")
    st(8)
    reduce_publish(A, h, vm)
```

```python
from common import *
from p1 import VL16, emit
from p2 import SHB, PHQ, VHS, VHO

class VM:
    def __init__(self): self.q = []
    def add(self, tag): self.q.append(tag)
    def clear(self): self.q = []
    def n(self, *tags):
        idx = [i for i, t in enumerate(self.q) if t in tags]
        if not idx: return None
        return min(63, len(self.q) - 1 - max(idx))
    def copy(self):
        v = VM(); v.q = list(self.q); return v

def acc(tbi, cbi): return 96 + (tbi * 4 + cbi) * 4
def af(st, c): return 24 + st * 32 + c * 4
def bf(st, t): return 24 + st * 32 + 16 + t * 4
VB = 2; VB2 = 4; VW = 6; VDW = 10; VDW2 = 11; VDA = 12; VO4 = 14; VOD = 16
VPD = 88; VPA = 89; VS0 = 90; VS1 = 91; VTO = 92; VTDD = 93; VOUT = 94
TW = 32; TA = 40
SW2B = 49; SM0A = 50; SM0W = 51
SU = 56; SOB = 57; SWOB = 58; SODW = 59; SXB = 60; SOUT = 61; SD0 = 62; SD1 = 63
NS = 44
TOFF = [0, 48, 80]

def pre_last():
    A = Asm()
    A(f"s_mul_i32 s{SW2B}, s{SKS}, {896*2048}"); A(f"s_lshl_b32 s{T0}, s{SNI}, 8"); A(f"s_add_u32 s{SW2B}, s{SW2B}, s{T0}")
    A(f"s_lshl_b32 s{SHB}, s{SKS}, 3"); A(f"s_add_u32 s{SHB}, s{SHB}, s{SMI}"); A(f"s_mul_i32 s{SHB}, s{SHB}, {28*16384}"); A(f"s_add_u32 s{SHB}, s{SHB}, {HACT}")
    for n in range(8):
        A(f"s_add_u32 s{T0}, s{SNI}, {n}"); A(f"s_and_b32 s{T0}, s{T0}, 7")
        A(f"s_mul_i32 s{TW+n}, s{T0}, {112*2048}"); A(f"s_add_u32 s{TW+n}, s{TW+n}, s{SW2B}")
        A(f"s_mul_i32 s{TA+n}, s{T0}, {3*16384}"); A(f"s_add_u32 s{TA+n}, s{TA+n}, s{SHB}")
    A(f"s_lshl_b32 s{SM0A}, s{SW}, 11"); A(f"s_lshl_b32 s{SM0W}, s{SW}, 10"); A(f"s_add_u32 s{SM0W}, s{SM0W}, {W2B}")
    A(f"s_lshl_b32 s{T0}, s{SW}, 2"); A("v_lshrrev_b32 v14, 4, v1"); A(f"v_add_u32 v14, s{T0}, v14")
    A("v_and_b32 v15, 7, v14"); A("v_lshlrev_b32 v15, 1, v15"); A("v_and_b32 v16, 15, v1"); A("v_xor_b32 v15, v15, v16")
    A("v_lshlrev_b32 v14, 11, v14"); A(f"v_lshl_add_u32 v{VDW}, v15, 4, v14")
    A("v_lshrrev_b32 v16, 3, v15"); A("v_lshl_add_u32 v14, v16, 16, v14"); A("v_and_b32 v15, 7, v15"); A(f"v_lshl_add_u32 v{VDW2}, v15, 4, v14")
    A("v_lshrrev_b32 v14, 3, v1"); A("v_and_b32 v15, 7, v1"); A("v_lshlrev_b32 v15, 7, v15"); A("v_lshl_add_u32 v15, v14, 11, v15")
    A(f"v_mov_b32 v16, {OOB}"); A("v_cmp_gt_u32 vcc, 7, v14"); A("v_cndmask_b32 v15, v16, v15, vcc")
    A(f"s_lshl_b32 s{T0}, s{SKS}, 5"); A(f"s_add_u32 s{T0}, s{T0}, s{SIDX}"); A(f"s_lshl_b32 s{T0}, s{T0}, 2"); A(f"s_add_u32 s{T0}, s{T0}, s{SWR}")
    A(f"s_mul_i32 s{T0}, s{T0}, {7*2048}"); A(f"s_and_b32 s{T1}, s{SXCD}, 1"); A(f"s_lshl_b32 s{T1}, s{T1}, 10"); A(f"s_add_u32 s{T6}, s{T0}, s{T1}")
    A("v_lshlrev_b32 v16, 2, v1")
    return A.lines
def t2(opt):
    D = [([], f"buffer_load_dword v17, v16, {S4(DBG)}, 0 offen sc1", [])]
    if opt["touch"]: D.append(([], f"buffer_load_dword v18, v15, {S4(WD)}, s{T6} offen", []))
    return D
def dbgcheck(A):
    A(f"s_mov_b32 s{T0}, 0x01010101")
    A("s_waitcnt vmcnt(14)")
    spin(A, 17, 16, DBG, "0", f"s{T0}", first_loaded=True)

def w_dma(s):
    sl = s % 6
    m0 = f"s_add_u32 m0, s{SM0W}, {sl*8192}"
    if s < 24:
        n, t = divmod(s, 3)
        return ([m0, f"s_add_u32 s{SD1}, s{TW+n}, {TOFF[t]*2048}"], f"buffer_load_dwordx4 v{VDW}, {S4(WD)}, s{SD1} offen lds", [])
    if s < 28:
        return ([m0, f"s_add_u32 s{SD1}, s{SA}, {s-24}", f"s_and_b32 s{SD1}, s{SD1}, 3", f"s_mul_i32 s{SD1}, s{SD1}, {224*2048}", f"s_add_u32 s{SD1}, s{SD1}, s{SODW}"],
                f"buffer_load_dwordx4 v{VDW}, {S4(WD)}, s{SD1} offen lds", [])
    return ([m0, f"s_lshl2_add_u32 s{SD1}, s{SU}, s{SWOB}"], f"buffer_load_dwordx4 v{VDW2}, {S4(WO)}, s{SD1} offen lds",
            [f"s_add_u32 s{SU}, s{SU}, 32768", f"s_and_b32 s{SU}, s{SU}, 0x7ffff"])
def a_dma(s):
    sl = s % 6
    m0 = f"s_add_u32 m0, s{SM0A}, {sl*16384}"
    v = VDA
    if s < 24:
        n, t = divmod(s, 3)
        pre = [m0, f"s_add_u32 s{SD0}, s{TA+n}, {t*16384}"]
    elif s < 28:
        pre = [m0, f"s_add_u32 s{SD0}, s{SA}, {s-24}", f"s_and_b32 s{SD0}, s{SD0}, 3", f"s_lshl_b32 s{SD0}, s{SD0}, 14", f"s_add_u32 s{SD0}, s{SD0}, s{SHB}",
               f"s_add_u32 s{SD0}, s{SD0}, {24*16384}"]
    else:
        pre = [m0, f"s_add_u32 s{SD0}, s{SU}, s{SOB}"]; v = VL16
    return [(pre, f"buffer_load_dwordx4 v{v}, {S4(WS)}, s{SD0} offen sc1 lds", []),
            ([], f"buffer_load_dwordx4 v{v}, {S4(WS)}, s{SD0} offen offset:1024 sc1 lds", [])]

def reads(s):
    st = s & 1; sl = s % 6
    def wr(c, sec): return f"ds_read_b64_tr_b16 {vr(af(st,c)+2*sec,2)}, v{VW+c} offset:{sl*8192 + sec*4096}"
    if s < 24:
        def br(t): return f"ds_read_b128 {vr(bf(st,t),4)}, v{(VB if sl < 4 else VB2) + (t>>1)} offset:{(sl & 3)*16384 + (t&1)*1024}"
    elif s < 28:
        def br(t): return f"ds_read2st64_b64 {vr(bf(st,t),4)}, v{VOD+t} offset0:{sl*32} offset1:{sl*32+16}"
    else:
        def br(t): return f"ds_read_b128 {vr(bf(st,t),4)}, v{VO4 + (sl >> 2)} offset:{(sl & 3)*16384 + (t>>1)*8192 + (t&1)*1024}"
    return [br(0), wr(0, 0), wr(0, 1), wr(1, 0), wr(1, 1), br(1), wr(2, 0), wr(2, 1), br(2), wr(3, 0), wr(3, 1), br(3)]

def mfmas(s):
    st = s & 1
    if s < 28:
        order = [(0, 0), (0, 1), (1, 0), (1, 1), (0, 2), (1, 2), (2, 0), (2, 1), (2, 2), (0, 3), (1, 3), (2, 3), (3, 0), (3, 1), (3, 2), (3, 3)]
        return [mfma(acc(t, c), af(st, c), bf(st, t), "0" if s == 0 else None) for t, c in order]
    return [mfma(acc(t, c), af(st, 2 * x + c), bf(st, 2 * x + t)) for x in range(2) for t in range(2) for c in range(2)]

def after_bh(vm):
    def f(A):
        A(f"v_add_u32 v{VDA}, s{SM0A}, v{VL16}")
        for s in range(3):
            emit(A, a_dma(s)); vm.add(f"d{s}"); vm.add(f"d{s}")
        for u in range(2):
            A(f"s_xor_b32 s{T0}, s{SKSH}, {u}"); A(f"s_lshl_b32 s{T1}, s{T0}, 11"); A(f"v_add_u32 v{VB+u}, s{T1}, v{VHS}")
            A(f"v_add_u32 v{VB2+u}, 0x10000, v{VB+u}")
            A(f"s_lshl_b32 s{T1}, s{T0}, 10"); A(f"v_add_u32 v{VOD+2*u}, s{T1}, v{VHO}"); A(f"v_add_u32 v{VOD+2*u+1}, 8, v{VOD+2*u}")
        A("v_lshrrev_b32 v14, 2, v1"); A("v_and_b32 v15, 3, v1"); A("v_lshlrev_b32 v15, 3, v15"); A("v_lshl_add_u32 v15, v14, 8, v15")
        A(f"v_add_u32 v15, {W2B}, v15"); A("v_and_b32 v14, 7, v14")
        A(f"s_lshr_b32 s{T2}, s{SW}, 2")
        for c in range(4):
            A(f"s_xor_b32 s{T0}, s{SKSL}, {c>>1}"); A(f"s_lshl_b32 s{T0}, s{T0}, 1"); A(f"s_add_u32 s{T0}, s{T0}, s{T2}"); A(f"s_lshl_b32 s{T0}, s{T0}, 1")
            if c & 1: A(f"s_add_u32 s{T0}, s{T0}, 1")
            A(f"v_xor_b32 v{VW+c}, s{T0}, v14"); A(f"v_lshl_add_u32 v{VW+c}, v{VW+c}, 5, v15")
        A(f"v_mov_b32 v{VO4}, v{VHO}"); A(f"v_add_u32 v{VO4+1}, 0x10000, v{VHO}")
        A(f"s_mul_i32 s{SODW}, s{T2}, {96*2048}"); A(f"s_add_u32 s{SODW}, s{SODW}, s{SW2B}"); A(f"s_add_u32 s{SODW}, s{SODW}, {32*2048}")
        A(f"s_lshl_b32 s{SU}, s{SA}, 17")
        A(f"s_xor_b32 s{T0}, s{T2}, s{SKSL}"); A(f"s_lshl_b32 s{T1}, s{SMI}, 5"); A(f"s_add_u32 s{T0}, s{T0}, s{T1}"); A(f"s_lshl_b32 s{T0}, s{T0}, 14")
        A(f"s_lshl_b32 s{T1}, s{SWR}, 1"); A(f"s_add_u32 s{T1}, s{T1}, s{SKSH}"); A(f"s_lshl_b32 s{T3}, s{T1}, 11")
        A(f"s_add_u32 s{SOB}, s{T0}, s{T3}"); A(f"s_add_u32 s{SOB}, s{SOB}, {OACT}")
        A(f"s_lshl_b32 s{SWOB}, s{SNI}, 1"); A(f"s_add_u32 s{SWOB}, s{SWOB}, s{SKSL}"); A(f"s_lshl_b32 s{SWOB}, s{SWOB}, 7")
        A(f"s_lshl_b32 s{T0}, s{SMI}, 3"); A(f"s_add_u32 s{T1}, s{T1}, s{T0}"); A(f"s_lshl_b32 s{SOUT}, s{T1}, 16")
        A(f"s_add_u32 s{SOUT}, s{SOUT}, s{SWOB}"); A(f"s_lshl_b32 s{T2}, s{T2}, 6"); A(f"s_add_u32 s{SOUT}, s{SOUT}, s{T2}")
        A(f"s_add_u32 s{T0}, s{T0}, s{SNI}"); A(f"s_mul_i32 s{SXB}, s{T0}, {12*16384}"); A(f"s_add_u32 s{SXB}, s{SXB}, {XCH}")
    return f

SPL = 64
def poll_issue(A, vm, kind):
    line_off(A, SPL, kind)
    A(f"v_and_b32 v{VPA}, {NFL[kind]-1}, v1"); A(f"v_lshlrev_b32 v{VPA}, 2, v{VPA}")
    A(f"buffer_load_dword v{VPD}, v{VPA}, {S4(WS)}, s{SPL} offen sc1"); vm.add("poll")
def poll_check(A, vm):
    A(f"s_waitcnt vmcnt({vm.n('poll')})")
    spin(A, VPD, VPA, WS, f"s{SPL}", "1", first_loaded=True)

G = 160; GZ = 192
def gather_issue(A, vm):
    A(f"s_mul_i32 s{T0}, s{SJ}, {8*KVS}"); A(f"s_add_u32 s{T0}, s{T0}, {KVP}")
    A(f"s_cmp_lg_u32 s{SW}, 0"); A("s_cbranch_scc1 L3_noz1")
    A(f"v_lshlrev_b32 v{VS0}, 2, v1")
    for p in range(8):
        A(f"s_add_u32 s{T1}, s{T0}, {p*KVS + 8192}")
        A(f"buffer_load_dword v{GZ+p}, v{VS0}, {S4(WS)}, s{T1} offen sc1")
    A.label("L3_noz1")
    A(f"s_lshl_b32 s{T1}, s{SW}, 10"); A(f"s_add_u32 s{T0}, s{T0}, s{T1}")
    for p in range(8):
        A(f"buffer_load_dwordx4 {vr(G+4*p,4)}, v{VL16}, {S4(WS)}, s{T0} offen sc1"); vm.add("g")
        if p < 7: A(f"s_add_u32 s{T0}, s{T0}, {KVS}")
def gather_sum(A, vm):
    A(f"s_waitcnt vmcnt({vm.n('g')})")
    for st in (16, 8, 4):
        for i in range(st): A(f"v_add_f32 v{G+i}, v{G+i}, v{G+st+i}")
    A(f"v_cvt_pk_bf16_f32 v{G}, v{G}, v{G+1}"); A(f"v_cvt_pk_bf16_f32 v{G+1}, v{G+2}, v{G+3}")
    A(f"s_lshr_b32 s{T0}, s{SW}, 1"); A(f"s_lshl_b32 s{T0}, s{T0}, 10"); A(f"s_and_b32 s{T1}, s{SW}, 1"); A(f"s_lshl_b32 s{T1}, s{T1}, 3")
    A(f"s_add_u32 s{T0}, s{T0}, s{T1}"); A(f"s_add_u32 s{T0}, s{T0}, {E_KVF}")
    A(f"v_add_u32 v{VS0}, s{T0}, v{VL16}")
    A(f"ds_write_b64 v{VS0}, {vr(G,2)}")
    A(f"s_cmp_lg_u32 s{SW}, 0"); A("s_cbranch_scc1 L3_noz2")
    for st in (4, 2, 1):
        for i in range(st): A(f"v_add_f32 v{GZ+i}, v{GZ+i}, v{GZ+st+i}")
    A(f"v_cvt_pk_bf16_f32 v{GZ}, v{GZ}, v{GZ}")
    A(f"v_lshlrev_b32 v{VS0}, 1, v1"); A(f"v_add_u32 v{VS0}, {E_ZF}, v{VS0}")
    A(f"ds_write_b16 v{VS0}, v{GZ}")
    A.label("L3_noz2")
def o_compute(A):
    A(f"s_cmp_lt_u32 s{SW}, 4"); A("s_cbranch_scc1 L3_noo")
    KA = 160; ZA = 176; N = 184
    A(f"v_add_u32 v{VS0}, {E_KVF}, v{VL16}")
    A(f"v_lshrrev_b32 v{VS1}, 4, v1"); A(f"v_lshlrev_b32 v{VS1}, 3, v{VS1}"); A(f"v_add_u32 v{VS1}, {E_ZF}, v{VS1}")
    for c in range(4): A(f"ds_read_b128 {vr(KA+4*c,4)}, v{VS0} offset:{c*1024}")
    for sg in range(2):
        for sec in range(2): A(f"ds_read_b64 {vr(ZA+4*sg+2*sec,2)}, v{VS1} offset:{sg*64 + sec*32}")
    A(f"s_lshl_b32 s{T0}, s{SMI}, 5"); A(f"s_add_u32 s{T0}, s{T0}, s{SJ}"); A(f"s_lshl_b32 s{T0}, s{T0}, 14"); A(f"s_add_u32 s{T0}, s{T0}, {OACT}")
    A("s_waitcnt lgkmcnt(0)")
    for tb in range(4):
        for db in range(2):
            for sg in range(2):
                A(mfma(N + 8 * tb + 4 * db, KA + 4 * (sg * 2 + db), PHQ + 8 * tb + 4 * sg, "0" if sg == 0 else None))
    D = 160
    for tb in range(4):
        for sg in range(2):
            A(mfma(D + 4 * tb, ZA + 4 * sg, PHQ + 8 * tb + 4 * sg, "0" if sg == 0 else None))
    for tb in range(4): A(f"v_add_f32 v{D+4*tb}, {hex(f2u(1e-6))}, v{D+4*tb}")
    for tb in range(4): A(f"v_rcp_f32 v{D+4*tb}, v{D+4*tb}")
    for tb in range(4):
        for i in range(8): A(f"v_mul_f32 v{N+8*tb+i}, v{N+8*tb+i}, v{D+4*tb}")
        for r in range(4): A(f"v_cvt_pk_bf16_f32 v{N+8*tb+r}, v{N+8*tb+2*r}, v{N+8*tb+2*r+1}")
        A(f"buffer_store_dwordx4 {vr(N+8*tb,4)}, v{VHS}, {S4(WS)}, s{T0} offen offset:{tb*1024} sc1")
    A.label("L3_noo")
def wo_touch(A, vm):
    A(f"v_lshrrev_b32 v{VS0}, 2, v1"); A(f"v_and_b32 v{VTO}, 3, v1"); A(f"v_lshlrev_b32 v{VTO}, 8, v{VTO}"); A(f"v_lshl_add_u32 v{VTO}, v{VS0}, 11, v{VTO}")
    A(f"v_mov_b32 v{VS1}, {OOB}"); A(f"v_cmp_gt_u32 vcc, 4, v{VS0}"); A(f"v_cndmask_b32 v{VTO}, v{VS1}, v{VTO}, vcc")
    A(f"s_lshl_b32 s{T0}, s{SIDX}, 3"); A(f"s_add_u32 s{T0}, s{T0}, s{SW}"); A(f"s_lshl_b32 s{T0}, s{T0}, 13")
    A(f"s_and_b32 s{T1}, s{SWOB}, 0x480"); A(f"s_add_u32 s{T0}, s{T0}, s{T1}")
    A(f"buffer_load_dword v{VTDD}, v{VTO}, {S4(WO)}, s{T0} offen"); vm.add("t")
XR = 160; XX = 184
def xch_send(A, vm):
    for b in range(1, 4):
        u, v = b >> 1, b & 1
        A(f"s_xor_b32 s{T0}, s{SKS}, {b}"); A(f"s_mul_i32 s{T0}, s{T0}, {3*16384}"); A(f"s_add_u32 s{T0}, s{T0}, s{SXB}")
        if b > 1: A(f"s_add_u32 s{T0}, s{T0}, {(b-1)*16384}")
        for t in range(2):
            Pp = acc(2 * u + t, 2 * v)
            for r in range(4): A(f"v_cvt_pk_bf16_f32 v{Pp+r}, v{Pp+2*r}, v{Pp+2*r+1}")
            A(f"buffer_store_dwordx4 {vr(Pp,4)}, v{VDA}, {S4(WS)}, s{T0} offen offset:{t*1024} sc1"); vm.add("xs")
def xch_recv(A, vm):
    A(f"s_mul_i32 s{T0}, s{SKS}, {3*16384}"); A(f"s_add_u32 s{T0}, s{T0}, s{SXB}")
    for b in range(3):
        for t in range(2):
            A(f"buffer_load_dwordx4 {vr(XR+8*b+4*t,4)}, v{VDA}, {S4(WS)}, s{T0} offen offset:{t*1024} sc1"); vm.add("xr")
        if b < 2: A(f"s_add_u32 s{T0}, s{T0}, 16384")
def x_load(A, vm):
    A(f"v_and_b32 v{VOUT}, 15, v1"); A(f"v_lshlrev_b32 v{VOUT}, 11, v{VOUT}")
    A(f"v_bfe_u32 v{VS0}, v1, 4, 1"); A(f"v_lshl_add_u32 v{VOUT}, v{VS0}, 5, v{VOUT}")
    A(f"v_lshrrev_b32 v{VS0}, 5, v1"); A(f"v_lshl_add_u32 v{VOUT}, v{VS0}, 4, v{VOUT}")
    A(f"s_add_u32 s{SOUT+4}, s{SOUT}, 32768")
    for t in range(2):
        A(f"buffer_load_dwordx4 {vr(XX+4*t,4)}, v{VOUT}, {S4(XS)}, s{SOUT+4*t} offen"); vm.add("xr")
def final(A, vm):
    A(f"s_mov_b32 s{T0}, 0xffff0000")
    A("s_waitcnt vmcnt(0)")
    for t in range(2):
        for r in range(2): A(f"v_permlane16_swap_b32 v{XX+4*t+r}, v{XX+4*t+2+r}")
    Fv = 192
    for t in range(2):
        for r in range(4):
            lo = Fv + 8 * t + 2 * r; hi = lo + 1
            A(f"v_lshlrev_b32 v{lo}, 16, v{XX+4*t+r}"); A(f"v_and_b32 v{hi}, s{T0}, v{XX+4*t+r}")
    for b in range(3):
        for t in range(2):
            for r in range(4):
                s = XR + 8 * b + 4 * t + r; lo = Fv + 8 * t + 2 * r; hi = lo + 1
                A(f"v_lshlrev_b32 v{208+(r&1)*2}, 16, v{s}"); A(f"v_and_b32 v{209+(r&1)*2}, s{T0}, v{s}")
                A(f"v_add_f32 v{lo}, v{lo}, v{208+(r&1)*2}"); A(f"v_add_f32 v{hi}, v{hi}, v{209+(r&1)*2}")
def final2(A):
    Fv = 192
    for t in range(2):
        Pp = acc(t, 0)
        for i in range(8): A(f"v_add_f32 v{Pp+i}, v{Pp+i}, v{Fv+8*t+i}")
        for r in range(4): A(f"v_cvt_pk_bf16_f32 v{Pp+r}, v{Pp+2*r}, v{Pp+2*r+1}")
        for r in range(2): A(f"v_permlane16_swap_b32 v{Pp+r}, v{Pp+2+r}")
        A(f"buffer_store_dwordx4 {vr(Pp,4)}, v{VOUT}, {S4(OUT)}, s{SOUT+4*t} offen")

def gemm2(A, opt, st, vm):
    poll_check(A, vm)
    st(9)
    emit(A, a_dma(3)); vm.add("d3"); vm.add("d3")
    A(f"s_waitcnt vmcnt({vm.n('d0')}) lgkmcnt(0)"); A("s_barrier")
    for r in reads(0): A(r)
    for s in (4, 5):
        emit(A, a_dma(s)); vm.add(f"d{s}"); vm.add(f"d{s}")
    H = dict(kvsig=2, kvpoll=5, kvget=8, wot=10, kvsum=11, o=12, osig=15, opoll=18, ochk=21, xsig=32, xpoll=35, xget=38)
    for k in H:
        if k in opt: H[k] = opt[k]
    for s in range(NS):
        if s == 28: st(10)
        tags = [f"d{s+1}"]
        if s == H["kvsig"]: tags.append("kvp")
        if s == H["osig"]: tags.append("omark")
        if s == H["xsig"]: tags.append("xs")
        n = vm.n(*tags)
        if s == NS - 1:
            A("s_waitcnt lgkmcnt(0)")
        else:
            A(f"s_waitcnt vmcnt({n}) lgkmcnt(0)"); A("s_barrier")
        M = mfmas(s)
        rd = reads(s + 1) if s + 1 < NS else []
        dm = a_dma(s + 6) + [w_dma(s + 6)] if s + 6 < NS else []
        nm = len(M)
        per = [1] * 12 + [0] * 4 if nm == 16 else [2, 2, 2, 2, 2, 2, 0, 0]
        dpos = {11: 0, 13: 1, 15: 2} if nm == 16 else {5: 0, 6: 1, 7: 2}
        for i, m in enumerate(M):
            if dm and i in dpos:
                for p in dm[dpos[i]][0]: A(p)
            A(m)
            for _ in range(per[i]):
                if rd: A(rd.pop(0))
            if dm and i in dpos:
                A(dm[dpos[i]][1])
                vm.add("omark" if (s == H["o"] + 1 and dpos[i] == 0) else f"d{s+6}")
                for p in dm[dpos[i]][2]: A(p)
        assert not rd
        if s == H["kvsig"]: signal(A, "kv", 1, VS0, VS1)
        if s == H["kvpoll"]: poll_issue(A, vm, "kv")
        if s == H["kvget"]: poll_check(A, vm); gather_issue(A, vm)
        if s == H["wot"] and opt["touch"]: wo_touch(A, vm)
        if s == H["kvsum"]: gather_sum(A, vm)
        if s == H["o"]: o_compute(A)
        if s == H["osig"]: signal(A, "o", 2, VS0, VS1)
        if s == H["opoll"]: poll_issue(A, vm, "o")
        if s == H["ochk"]: poll_check(A, vm)
        if s == 28: xch_send(A, vm)
        if s == H["xsig"]: signal(A, "x", 3, VS0, VS1)
        if s == H["xpoll"]: poll_issue(A, vm, "x"); x_load(A, vm)
        if s == H["xget"]: poll_check(A, vm); xch_recv(A, vm)
        if s == NS - 2: st(11); final(A, vm)
    final2(A)
```

```python
import sys, math, struct
sys.path.insert(0, "work")
from asmlib import Asm, pad, vr, sr

NAME = "parallel_sum__linear_kernel_hedgehog__geglu_ffn__prompt"
WS_BYTES = 268435456
XN_OFF = 0
ACT_OFF = 0x400000
KVP_OFF = 0x1600000
KVP_STRIDE = 8448
XCH_OFF = 0x1A00000
SENT = 0xFFFFFFFF

def f2u(x): return struct.unpack("<I", struct.pack("<f", x))[0]

def srd(A, d, lo, hi, size):
    A(f"s_mov_b32 s{d}, s{lo}"); A(f"s_mov_b32 s{d+1}, s{hi}")
    A(f"s_mov_b32 s{d+2}, {size}"); A(f"s_mov_b32 s{d+3}, 0x20000")

STAMP_OFF = 0x8000000
def stamp(A, opt, i, real=False):
    if opt.get("st", 0):
        A(f"s_memrealtime s[{86+2*i}:{87+2*i}]" if real else f"s_memtime s[{86+2*i}:{87+2*i}]")
def stamp_out(A, opt, kern, wavereg, srdr, tag):
    if not opt.get("st", 0): return
    A("s_waitcnt lgkmcnt(0)")
    for i in range(8): A(f"v_mov_b32 v{16+i}, s{86+2*i}")
    A(f"s_lshl_b32 s84, s2, 3"); A(f"s_add_u32 s84, s84, s{wavereg}"); A("s_lshl_b32 s84, s84, 5")
    A(f"s_add_u32 s84, s84, {STAMP_OFF + kern*65536}")
    A("v_mov_b32 v24, 0")
    A("s_mov_b64 exec, 1")
    A(f"buffer_store_dwordx4 v[16:19], v24, s[{srdr}:{srdr+3}], s84 offen")
    A(f"buffer_store_dwordx4 v[20:23], v24, s[{srdr}:{srdr+3}], s84 offen offset:16")

def header(A, lab):
    A(f".globl {lab}"); A(".p2align 8"); A(f".type {lab},@function"); A.label(lab)

def desc(lab, vgpr, sgpr=102):
    acc = (vgpr + 3) // 4 * 4
    return f""".p2align 6
.amdhsa_kernel {lab}
  .amdhsa_next_free_vgpr {vgpr}
  .amdhsa_next_free_sgpr {sgpr}
  .amdhsa_accum_offset {acc}
  .amdhsa_group_segment_fixed_size 0
  .amdhsa_kernarg_size 88
  .amdhsa_user_sgpr_count 2
  .amdhsa_user_sgpr_kernarg_segment_ptr 1
  .amdhsa_system_sgpr_workgroup_id_x 1
.end_amdhsa_kernel
"""

def k1(opt):
    A = Asm(); lab = "ln_kernel"
    header(A, lab)
    A("s_cmp_ge_u32 s2, 256"); A("s_cbranch_scc1 L1_end")
    stamp(A, opt, 0, True); stamp(A, opt, 1); stamp(A, opt, 2)
    A("s_load_dwordx2 s[4:5], s[0:1], 0"); A("s_load_dwordx2 s[6:7], s[0:1], 80")
    A("v_and_b32 v1, 63, v0")
    A("v_lshrrev_b32 v2, 6, v0")
    A("v_and_b32 v3, 7, v1")
    A("v_lshrrev_b32 v4, 3, v1")
    A("v_lshlrev_b32 v5, 11, v3"); A("v_lshl_add_u32 v5, v2, 9, v5"); A("v_lshl_add_u32 v5, v4, 4, v5")
    A("s_lshl_b32 s16, s2, 14")
    A("s_waitcnt lgkmcnt(0)")
    srd(A, 8, 4, 5, 2048 * 2048); srd(A, 12, 6, 7, WS_BYTES)
    for q in range(4):
        A(f"buffer_load_dwordx4 v[{8+4*q}:{11+4*q}], v5, s[8:11], s16 offen offset:{q*128}")
    for i in range(4): A(f"v_mov_b32 v{24+i}, -1")
    A("v_lshlrev_b32 v6, 4, v0")
    A(f"s_mul_i32 s17, s2, {KVP_STRIDE}"); A(f"s_add_u32 s17, s17, {KVP_OFF}")
    A("s_add_u32 s18, s17, 4096"); A("s_add_u32 s19, s17, 8192")
    A("buffer_store_dwordx4 v[24:27], v6, s[12:15], s17 offen sc1")
    A("buffer_store_dwordx4 v[24:27], v6, s[12:15], s18 offen sc1")
    A("v_cmp_gt_u32 vcc, 16, v0"); A("s_and_saveexec_b64 s[20:21], vcc")
    A("s_cbranch_execz L1_nz")
    A("buffer_store_dwordx4 v[24:27], v6, s[12:15], s19 offen sc1")
    A.label("L1_nz")
    A("s_mov_b64 exec, s[20:21]")
    A("v_lshrrev_b32 v7, 1, v4"); A("v_lshl_add_u32 v7, v2, 4, v7"); A("v_lshlrev_b32 v7, 16, v7")
    A("v_and_b32 v28, 1, v4"); A("v_lshl_add_u32 v28, v28, 5, v3"); A("v_lshl_add_u32 v7, v28, 4, v7")
    A("s_lshr_b32 s22, s2, 2"); A("s_lshl_b32 s22, s22, 10"); A("s_and_b32 s23, s2, 3"); A("s_lshl_b32 s23, s23, 7")
    A("s_add_u32 s22, s22, s23")
    for q in range(1, 4): A(f"s_add_u32 s{22+q}, s22, {q*262144}")
    A("v_lshlrev_b32 v30, 4, v3"); A("v_lshl_add_u32 v29, v2, 2, v30")
    A("s_mov_b32 s26, 0xffff0000")
    stamp(A, opt, 3)
    A("s_waitcnt vmcnt(2)")
    stamp(A, opt, 4)
    for i in range(16):
        A(f"v_lshlrev_b32 v{32+2*i}, 16, v{8+i}"); A(f"v_and_b32 v{33+2*i}, s26, v{8+i}")
    def reduce(src, ldsoff, dst):
        A(f"v_add_f32_dpp v{src}, v{src}, v{src} row_ror:8 row_mask:0xf bank_mask:0xf")
        A(f"v_mov_b32 v31, v{src}"); A(f"v_permlane16_swap_b32 v{src}, v31"); A(f"v_add_f32 v{src}, v{src}, v31")
        A(f"v_mov_b32 v31, v{src}"); A(f"v_permlane32_swap_b32 v{src}, v31"); A(f"v_add_f32 v{src}, v{src}, v31")
        A(f"ds_write_b32 v29, v{src} offset:{ldsoff}")
        A("s_waitcnt lgkmcnt(0)"); A("s_barrier")
        A(f"ds_read_b128 v[24:27], v30 offset:{ldsoff}")
        A("s_waitcnt lgkmcnt(0)")
        A("v_add_f32 v24, v24, v25"); A("v_add_f32 v26, v26, v27"); A(f"v_add_f32 v{dst}, v24, v26")
    for i in range(4):
        A(f"v_add_f32 v{8+i}, v{32+8*i}, v{33+8*i}")
        for k in range(2, 8): A(f"v_add_f32 v{8+i}, v{8+i}, v{32+8*i+k}")
    A("v_add_f32 v8, v8, v9"); A("v_add_f32 v10, v10, v11"); A("v_add_f32 v8, v8, v10")
    reduce(8, 0, 8)
    A(f"v_mul_f32 v8, {hex(f2u(1.0/1024))}, v8")
    for i in range(32): A(f"v_sub_f32 v{32+i}, v{32+i}, v8")
    for i in range(4):
        A(f"v_mul_f32 v{12+i}, v{32+8*i}, v{32+8*i}")
        for k in range(1, 8): A(f"v_fmac_f32 v{12+i}, v{32+8*i+k}, v{32+8*i+k}")
    A("v_add_f32 v12, v12, v13"); A("v_add_f32 v14, v14, v15"); A("v_add_f32 v12, v12, v14")
    reduce(12, 128, 12)
    A(f"v_mov_b32 v13, {hex(f2u(1e-5))}")
    A(f"v_fmac_f32 v13, {hex(f2u(1.0/1024))}, v12")
    A("v_rsq_f32 v13, v13")
    for i in range(32): A(f"v_mul_f32 v{32+i}, v{32+i}, v13")
    for i in range(16): A(f"v_cvt_pk_bf16_f32 v{8+i}, v{32+2*i}, v{33+2*i}")
    for q in range(4):
        A(f"buffer_store_dwordx4 v[{8+4*q}:{11+4*q}], v7, s[12:15], s{22+q} offen")
    stamp(A, opt, 5)
    if opt.get("st"):
        A("s_waitcnt vmcnt(0)"); A("v_readfirstlane_b32 s3, v2")
    stamp(A, opt, 6); stamp(A, opt, 7, True)
    stamp_out(A, opt, 0, 3, 12, "k1")
    A.label("L1_end")
    A("s_endpgm")
    return lab, A.lines, dict(grid=256, block=256, lds=256, vgpr=64, sgpr=102 if opt.get('st') else 32)

def build(kernels, path, verbose=False):
    top = []; body = []; descs = []
    for lab, lines, info in kernels:
        top.append(f"; @launch kernel={lab} grid=({info['grid']},1,1) block=({info['block']},1,1) lds={info['lds']}")
        lines, tot = pad(lines, verbose)
        print(f"{lab}: {len(lines)} lines, {tot} pad states")
        body += lines
        descs.append(desc(lab, info['vgpr'], info['sgpr']))
    txt = "\n".join(top) + '\n.amdgcn_target "amdgcn-amd-amdhsa--gfx950"\n.text\n'
    for l in body:
        txt += (l if (l.endswith(":") or l.startswith(".")) else "    " + l) + "\n"
    txt += '.section .rodata,"a"\n' + "".join(descs)
    open(path, "w").write(txt)

if __name__ == "__main__":
    import k2, k4
    opt = {}
    for a in sys.argv[2:]:
        k, v = a.split("="); opt[k] = int(v)
    build([k1(opt), k2.k2(opt), k4.k4(opt)], sys.argv[1], verbose=opt.get("v", 0))
```

```python
from gen import *

QB = 65536; QS = 6144
GB = QB + 4 * QS; GS = 14464; UPO = 7296
PB = GB + 4 * GS
LDS_K2 = PB + 2048
E_PART = 0; E_Z = 32768; E_KVF = 40960; E_ZF = 45056

ACC0 = 96
def acc(b, tb): return ACC0 + (b * 2 + tb) * 16
FR = 40
def wfrag(st, b): return FR + st * 28 + b * 4
def xfrag(st, tb): return FR + st * 28 + 20 + tb * 4
VX, VQ, VG = 2, 3, 4
VD = 5
VL16 = 10
VID = 32

MF = "v_mfma_f32_32x32x16_bf16"
def mfma(d, a, b, c=None):
    cs = vr(d, 16) if c is None else c
    return f"{MF} {vr(d,16)}, {vr(a,4)}, {vr(b,4)}, {cs}"

def blocks(h):
    return [("q", 1), ("q", 2), ("g", 0), ("g", 1), ("g", 2)] if h == 0 else [("q", 0), ("g", 3), ("g", 4), ("g", 5), ("g", 6)]

def reads(h, st, slot, a):
    R = []
    def xr(tb): return f"ds_read_b128 {vr(xfrag(st,tb),4)}, v{VX} offset:{slot*16384 + a*8192 + tb*1024}"
    def wr(b, sec):
        kind, idx = blocks(h)[b]
        if kind == "q":
            return f"ds_read_b64_tr_b16 {vr(wfrag(st,b)+2*sec,2)}, v{VQ} offset:{slot*QS + (a*16+sec*4)*192 + idx*64}"
        return f"ds_read_b64_tr_b16 {vr(wfrag(st,b)+2*sec,2)}, v{VG} offset:{slot*GS + (a*16+sec*4)*224 + idx*32}"
    R = [xr(0), wr(0, 0), wr(0, 1), xr(1)]
    for b in range(1, 5): R += [wr(b, 0), wr(b, 1)]
    return R

def mfmas(h, st):
    M = []
    for b in range(5):
        for tb in range(2):
            if h == 0 and b == 1:
                M.append(mfma(acc(b, tb), xfrag(st, tb), wfrag(st, b)))
            else:
                M.append(mfma(acc(b, tb), wfrag(st, b), xfrag(st, tb)))
    return M

def dma(h, slot):
    D = []
    if h == 0:
        for i in range(5):
            D.append(([f"s_mov_b32 m0, s{44+slot*5+i}"],
                      f"buffer_load_dwordx4 v{VD+i}, s[{24+4*i}:{27+4*i}], s{64+i} offen lds",
                      [f"s_add_u32 s{64+i}, s{64+i}, s{69+i}"]))
    else:
        for i in range(4):
            D.append(([f"s_mov_b32 m0, s{44+slot}"] if i == 0 else [],
                      f"buffer_load_dwordx4 v{VD}, s[8:11], s64 offen offset:{i*1024} lds",
                      ["s_add_u32 s64, s64, 0x20000"] if i == 3 else []))
    return D

def step(A, h, st, rd, dm):
    M = mfmas(h, st)
    rd = list(rd); dm = list(dm)
    nd = len(dm)
    first_d = 10 - nd if nd else 99
    for i, m in enumerate(M):
        if i >= first_d - 0 and i - first_d < nd:
            pass
        A(m)
        for _ in range(2):
            if rd: A(rd.pop(0))
        k = i - first_d
        if 0 <= k < nd:
            A(dm[k][1])
            for p in dm[k][2]: A(p)
        if 0 <= k + 1 < nd:
            for p in dm[k + 1][0]: A(p)
    assert not rd

def mainloop(A, h, opt):
    n = 5 if h == 0 else 4
    def stage(slot, s_rel, last):
        dm0 = []; dm1 = []
        if h == 0:
            if last is None: dm1 = dma(0, slot)
        else:
            if last is None or last == 28: dm0 = dma(1, (slot + 3) % 4)
        step(A, h, 0, reads(h, 1, slot, 1), dm0)
        if last is None or last == 28: vm = 2 * n
        elif last == 29: vm = n
        elif last == 30: vm = 0
        else: vm = None
        A(f"s_waitcnt vmcnt({vm}) lgkmcnt(0)" if vm is not None else "s_waitcnt lgkmcnt(0)")
        A("s_barrier")
        if last == 31:
            step(A, h, 1, phi_reads(), [])
        else:
            step(A, h, 1, reads(h, 0, (slot + 1) % 4, 0), dm1)
            A("s_waitcnt lgkmcnt(0)")
    A("s_mov_b32 s74, 7")
    A.label(f"L2_loop{h}")
    for slot in range(4): stage(slot, slot, None)
    A("s_sub_u32 s74, s74, 1"); A("s_cmp_lg_u32 s74, 0"); A(f"s_cbranch_scc1 L2_loop{h}")
    for slot in range(4): stage(slot, slot, 28 + slot)

VPH = 56
VPA = 11
def phi_reads():
    return [f"ds_read_b64_tr_b16 {vr(VPH + 4*c + 2*sec, 2)}, v{VPA} offset:{(16*c + 8*sec)*64}" for c in range(2) for sec in range(2)]

SL, SK1 = 75, 76
VK0 = 12
def PK(tb): return 40 if tb == 0 else 80
EP = 64

def featmap_head(A):
    for tb in range(2):
        for r in range(8):
            A(f"v_cvt_pk_bf16_f32 v{40+8*tb+r}, v{acc(0,tb)+2*r}, v{acc(0,tb)+2*r+1}")
    A("s_waitcnt lgkmcnt(0)")
    for tb in range(2):
        A(mfma(acc(0, tb), VPH, 40 + 8 * tb, "0"))
    for tb in range(2):
        A(mfma(acc(0, tb), VPH + 4, 44 + 8 * tb))

def softmax(A, tb):
    P = acc(0, tb)
    mx, mn, t = 14, 15, 16
    A(f"v_max3_f32 v{mx}, v{P}, v{P+1}, v{P+2}")
    A(f"v_max3_f32 v{mn}, -v{P}, -v{P+1}, -v{P+2}")
    for k in range(3, 15, 2):
        A(f"v_max3_f32 v{mx}, v{mx}, v{P+k}, v{P+k+1}")
        A(f"v_max3_f32 v{mn}, v{mn}, -v{P+k}, -v{P+k+1}")
    A(f"v_max_f32 v{mx}, v{mx}, v{P+15}")
    A(f"v_max_f32_e64 v{mn}, v{mn}, -v{P+15}")
    A(f"v_permlane32_swap_b32 v{mx}, v{mn}")
    A(f"v_max_f32 v{mx}, v{mx}, v{mn}")
    A(f"v_mul_f32_e64 v{mx}, v{mx}, -s{SL}")
    A(f"v_mov_b32 v{mn}, v{mx}")
    A(f"v_permlane32_swap_b32 v{mx}, v{mn}")
    for i in range(16):
        A(f"v_fma_f32 v{EP+i}, v{P+i}, s{SL}, v{mx}")
        A(f"v_fma_f32 v{P+i}, -v{P+i}, s{SL}, v{mn}")
    for i in range(16):
        A(f"v_exp_f32 v{EP+i}, v{EP+i}")
        A(f"v_exp_f32 v{P+i}, v{P+i}")
    sp, sm = 14, 15
    A(f"v_add_f32 v{sp}, v{EP}, v{EP+1}"); A(f"v_add_f32 v{sm}, v{P}, v{P+1}")
    A(f"v_add_f32 v16, v{EP+2}, v{EP+3}"); A(f"v_add_f32 v17, v{P+2}, v{P+3}")
    for i in range(4, 16, 2):
        A(f"v_add_f32 v{sp}, v{sp}, v{EP+i}"); A(f"v_add_f32 v{sm}, v{sm}, v{P+i}")
        A(f"v_add_f32 v16, v16, v{EP+i+1}"); A(f"v_add_f32 v17, v17, v{P+i+1}")
    A(f"v_add_f32 v{sp}, v{sp}, v16"); A(f"v_add_f32 v{sm}, v{sm}, v17")
    A(f"v_permlane32_swap_b32 v{sp}, v{sm}")
    A(f"v_add_f32 v{sp}, v{sp}, v{sm}")
    A(f"v_rcp_f32 v{sp}, v{sp}")
    A(f"v_mov_b32 v{sm}, v{sp}")
    A(f"v_permlane32_swap_b32 v{sp}, v{sm}")
    for i in range(16):
        A(f"v_mul_f32 v{EP+i}, v{EP+i}, v{sp}")
        A(f"v_mul_f32 v{P+i}, v{P+i}, v{sm}")
    for r in range(8):
        A(f"v_cvt_pk_bf16_f32 v{PK(tb)+r}, v{EP+2*r}, v{EP+2*r+1}")
    for r in range(8):
        A(f"v_cvt_pk_bf16_f32 v{PK(tb)+8+r}, v{P+2*r}, v{P+2*r+1}")

def gelu(A, b, gidx):
    A(f"s_add_u32 s78, s77, {(16+gidx)*65536}")
    for tb in range(2):
        G = acc(b, tb); U = G + 8; T = 16
        for i in range(8): A(f"v_mul_f32 v{T+i}, v{G+i}, v{G+i}")
        for i in range(8): A(f"v_fma_f32 v{T+i}, v{T+i}, s{SK1}, v{VK0}")
        for i in range(8): A(f"v_mul_f32 v{T+i}, v{T+i}, v{G+i}")
        for i in range(8): A(f"v_exp_f32 v{T+i}, v{T+i}")
        for i in range(8): A(f"v_mul_f32 v{G+i}, v{G+i}, v{U+i}")
        for i in range(8): A(f"v_add_f32 v{T+i}, 1.0, v{T+i}")
        for i in range(8): A(f"v_rcp_f32 v{T+i}, v{T+i}")
        for i in range(8): A(f"v_mul_f32 v{G+i}, v{G+i}, v{T+i}")
        for r in range(4): A(f"v_cvt_pk_bf16_f32 v{U+r}, v{G+2*r}, v{G+2*r+1}")
        A(f"buffer_store_dwordx4 {vr(U,4)}, v{VX}, s[8:11], s78 offen offset:{tb*1024}")

def reduce_publish(A, h):
    R = 64
    for p in range(4):
        A(f"ds_read_b128 {vr(R+4*p,4)}, v13 offset:{E_PART + p*8192}")
    if h == 0:
        A("s_cmp_lg_u32 s3, 0"); A("s_cbranch_scc1 L2_noz1")
        A("v_lshlrev_b32 v16, 2, v1")
        for p in range(4): A(f"ds_read_b32 v{17+p}, v16 offset:{E_Z + p*256}")
        A("s_waitcnt lgkmcnt(0)")
        A("v_add_f32 v17, v17, v18"); A("v_add_f32 v19, v19, v20"); A("v_add_f32 v17, v17, v19")
        A("s_add_u32 s78, s79, 8192")
        A("buffer_store_dword v17, v16, s[8:11], s78 offen sc1")
        A.label("L2_noz1")
    A("s_waitcnt lgkmcnt(0)")
    for i in range(4):
        A(f"v_add_f32 v{R+i}, v{R+i}, v{R+4+i}"); A(f"v_add_f32 v{R+8+i}, v{R+8+i}, v{R+12+i}")
    for i in range(4): A(f"v_add_f32 v{R+i}, v{R+i}, v{R+8+i}")
    A(f"buffer_store_dwordx4 {vr(R,4)}, v13, s[8:11], s79 offen sc1")

def gather(A, h):
    R = acc(2, 0)
    Z = acc(3, 0)
    A("s_mov_b32 s81, 0")
    if h == 0: A("v_lshlrev_b32 v16, 2, v1")
    A.label(f"L2_poll{h}")
    for p in range(8):
        A(f"s_add_u32 s78, s80, {p*KVP_STRIDE}")
        A(f"buffer_load_dwordx4 {vr(R+4*p,4)}, v13, s[8:11], s78 offen sc1")
    A("v_mov_b32 v17, 0")
    if h == 0:
        A("s_cmp_lg_u32 s3, 0"); A("s_cbranch_scc1 L2_noz2")
        for p in range(8):
            A(f"s_add_u32 s78, s80, {p*KVP_STRIDE+8192}")
            A(f"buffer_load_dword v{Z+p}, v16, s[8:11], s78 offen sc1")
        A("s_waitcnt vmcnt(0)")
        for p in range(0, 8, 2): A(f"v_max3_u32 v17, v17, v{Z+p}, v{Z+p+1}")
        A.label("L2_noz2")
    A("s_waitcnt vmcnt(0)")
    for i in range(0, 32, 2): A(f"v_max3_u32 v17, v17, v{R+i}, v{R+i+1}")
    A("v_cmp_eq_u32 vcc, -1, v17")
    A(f"s_cbranch_vccz L2_got{h}")
    A("s_add_u32 s81, s81, 1"); A("s_cmp_lt_u32 s81, 0x40000"); A("s_sleep 1")
    A(f"s_cbranch_scc1 L2_poll{h}")
    A.label(f"L2_got{h}")
    for st in (16, 8, 4):
        for i in range(st): A(f"v_add_f32 v{R+i}, v{R+i}, v{R+st+i}")
    A(f"v_cvt_pk_bf16_f32 v{R}, v{R}, v{R+1}"); A(f"v_cvt_pk_bf16_f32 v{R+1}, v{R+2}, v{R+3}")
    A("s_lshr_b32 s78, s3, 1"); A("s_lshl_b32 s78, s78, 10"); A("s_and_b32 s82, s3, 1"); A("s_lshl_b32 s82, s82, 3"); A("s_add_u32 s78, s78, s82")
    A(f"v_add_u32 v18, s78, v{VL16}")
    A(f"ds_write_b64 v18, {vr(R,2)} offset:{E_KVF}")
    if h == 0:
        A("s_cmp_lg_u32 s3, 0"); A("s_cbranch_scc1 L2_noz3")
        for st in (4, 2, 1):
            for i in range(st): A(f"v_add_f32 v{Z+i}, v{Z+i}, v{Z+st+i}")
        A(f"v_cvt_pk_bf16_f32 v{Z}, v{Z}, v{Z}")
        A("v_lshlrev_b32 v16, 1, v1")
        A(f"ds_write_b16 v16, v{Z} offset:{E_ZF}")
        A.label("L2_noz3")
    A("s_waitcnt lgkmcnt(0)")
    A("s_barrier")

def epi_k(A, opt):
    featmap_head(A)
    A("v_mov_b32 v24, 0"); A("v_mov_b32 v25, 0")
    for tb in range(2):
        softmax(A, tb)
        T0 = acc(0, tb); T1 = EP
        A(mfma(T0, PK(tb), VID, "0")); A(mfma(T1, PK(tb) + 8, VID, "0"))
        A(mfma(T0, PK(tb) + 4, VID + 4)); A(mfma(T1, PK(tb) + 12, VID + 4))
        V = acc(1, tb)
        for r in range(8): A(f"v_cvt_pk_bf16_f32 v{V+r}, v{V+2*r}, v{V+2*r+1}")
        for i in range(0, 16, 2):
            A(f"v_add_f32 v16, v{T0+i}, v{T0+i+1}"); A(f"v_add_f32 v17, v{T1+i}, v{T1+i+1}")
            A("v_add_f32 v24, v24, v16"); A("v_add_f32 v25, v25, v17")
        for r in range(8): A(f"v_cvt_pk_bf16_f32 v{PK(tb)+r}, v{T0+2*r}, v{T0+2*r+1}")
        for r in range(8): A(f"v_cvt_pk_bf16_f32 v{PK(tb)+8+r}, v{T1+2*r}, v{T1+2*r+1}")
    first = True
    for tb in range(2):
        for c2 in range(2):
            for sg in range(2):
                A(mfma(acc(0, sg), PK(tb) + 8 * sg + 4 * c2, acc(1, tb) + 4 * c2, "0" if first else None))
            first = False
    A("v_permlane32_swap_b32 v24, v25"); A("v_add_f32 v24, v24, v25")
    A("s_lshl_b32 s78, s3, 13"); A(f"v_add_u32 v16, s78, v{VL16}")
    A("s_lshl_b32 s78, s3, 8"); A("v_lshl_add_u32 v17, v1, 2, s78")
    A(f"ds_write_b32 v17, v24 offset:{E_Z}")
    for s in range(8):
        A(f"ds_write_b128 v16, {vr(acc(0, s>>2) + 4*(s&3), 4)} offset:{E_PART + s*1024}")
    A("s_waitcnt lgkmcnt(0)"); A("s_barrier")
    stamp(A, opt, 4)
    reduce_publish(A, 0)
    for b in (2, 3, 4): gelu(A, b, blocks(0)[b][1])
    stamp(A, opt, 5)
    gather(A, 0)

def epi_q(A, opt):
    featmap_head(A)
    for tb in range(2): softmax(A, tb)
    gelu(A, 1, 3)
    A("s_barrier")
    stamp(A, opt, 4)
    reduce_publish(A, 1)
    for b in (2, 3, 4): gelu(A, b, blocks(1)[b][1])
    stamp(A, opt, 5)
    gather(A, 1)
    KA = acc(4, 0); ZA = acc(4, 1)
    for c in range(4): A(f"ds_read_b128 {vr(KA+4*c,4)}, v{VL16} offset:{E_KVF + c*1024}")
    A("v_lshrrev_b32 v16, 5, v1"); A("v_lshlrev_b32 v16, 3, v16")
    for c in range(4):
        for sec in range(2):
            A(f"ds_read_b64 {vr(ZA+4*c+2*sec,2)}, v16 offset:{E_ZF + c*32 + sec*16}")
    A("s_waitcnt lgkmcnt(0)")
    for tb in range(2):
        N = acc(0, tb); D = acc(1, tb)
        for c in range(4):
            A(mfma(N, KA + 4 * c, PK(tb) + 4 * c, "0" if c == 0 else None))
            A(mfma(D, ZA + 4 * c, PK(tb) + 4 * c, "0" if c == 0 else None))
    A("s_add_u32 s78, s83, 65536")
    for tb in range(2):
        N = acc(0, tb); D = acc(1, tb)
        A(f"v_add_f32 v{D}, {hex(f2u(1e-6))}, v{D}")
        A(f"v_rcp_f32 v{D}, v{D}")
        for i in range(16): A(f"v_mul_f32 v{N+i}, v{N+i}, v{D}")
        for r in range(8): A(f"v_cvt_pk_bf16_f32 v{D+4+r}, v{N+2*r}, v{N+2*r+1}")
        A(f"buffer_store_dwordx4 {vr(D+4,4)}, v{VX}, s[8:11], s83 offen offset:{tb*1024}")
        A(f"buffer_store_dwordx4 {vr(D+8,4)}, v{VX}, s[8:11], s78 offen offset:{tb*1024}")

def run(A, h, opt):
    if opt.get("st") == 2: stamp(A, opt, 3)
    A("s_and_b32 s78, s3, 3"); A("s_lshl_b32 s78, s78, 11"); A(f"v_add_u32 v{VX}, s78, v{VL16}")
    A("v_lshrrev_b32 v16, 5, v1")
    A("v_bfe_u32 v17, v1, 2, 2")
    A("v_bfe_u32 v18, v1, 4, 1")
    A("v_and_b32 v19, 3, v1")
    A("v_lshl_add_u32 v20, v16, 3, v17")
    A(f"v_mul_u32_u24 v{VQ}, 192, v20"); A(f"v_lshl_add_u32 v{VQ}, v18, 5, v{VQ}"); A(f"v_lshl_add_u32 v{VQ}, v19, 3, v{VQ}")
    A(f"v_add_u32 v{VQ}, {QB}, v{VQ}")
    A(f"v_mul_u32_u24 v{VG}, 224, v20"); A(f"v_mul_u32_u24 v21, {UPO}, v18"); A(f"v_add_u32 v{VG}, v{VG}, v21")
    A(f"v_lshl_add_u32 v{VG}, v19, 3, v{VG}"); A(f"v_add_u32 v{VG}, {GB}, v{VG}")
    A("v_lshl_add_u32 v20, v16, 2, v17")
    A(f"v_lshlrev_b32 v{VPA}, 6, v20"); A(f"v_lshl_add_u32 v{VPA}, v18, 5, v{VPA}"); A(f"v_lshl_add_u32 v{VPA}, v19, 3, v{VPA}")
    A(f"v_add_u32 v{VPA}, {PB}, v{VPA}")
    A("s_lshl_b32 s78, s3, 10"); A(f"v_add_u32 v13, s78, v{VL16}")
    A("v_and_b32 v17, 31, v1"); A("v_lshlrev_b32 v16, 2, v16"); A("v_sub_u32 v17, v17, v16")
    A("v_mov_b32 v18, 0x3f80"); A("v_mov_b32 v19, 0x3f800000")
    for c in range(2):
        for r in range(4):
            base = 16 * c + 8 * (r >> 1) + 2 * (r & 1)
            d = VID + 4 * c + r
            A(f"v_cmp_eq_u32 vcc, {base}, v17"); A(f"v_cndmask_b32 v{d}, 0, v18, vcc")
            A(f"v_cmp_eq_u32 vcc, {base+1}, v17"); A(f"v_cndmask_b32 v{d}, v{d}, v19, vcc")
    c0 = -2.0 * math.sqrt(2.0 / math.pi) * math.log2(math.e)
    A(f"s_mov_b32 s{SL}, {hex(f2u(math.log2(math.e)))}"); A(f"s_mov_b32 s{SK1}, {hex(f2u(c0*0.044715))}")
    A(f"v_mov_b32 v{VK0}, {hex(f2u(c0))}")
    A("s_lshr_b32 s78, s22, 3"); A("s_mul_i32 s78, s78, 72"); A("s_and_b32 s79, s22, 7")
    A("s_mul_i32 s80, s79, 7"); A("s_add_u32 s80, s80, s78"); A("s_lshl_b32 s80, s80, 16")
    A("s_lshl_b32 s81, s23, 13"); A(f"s_add_u32 s81, s81, {ACT_OFF}"); A("s_add_u32 s77, s80, s81")
    A("s_lshl_b32 s80, s79, 1"); A("s_add_u32 s80, s80, s78"); A("s_lshl_b32 s80, s80, 16"); A("s_add_u32 s83, s80, s81")
    A(f"s_mul_i32 s80, s22, {8*KVP_STRIDE}"); A(f"s_add_u32 s80, s80, {KVP_OFF}")
    A(f"s_mul_i32 s79, s23, {KVP_STRIDE}"); A("s_add_u32 s79, s79, s80")
    if opt.get("clr", 1):
        for i in range(4): A(f"v_mov_b32 v{20+i}, -1")
        A("v_lshlrev_b32 v16, 4, v0")
        A(f"s_mul_i32 s78, s2, 49152"); A(f"s_add_u32 s78, s78, {XCH_OFF}")
        for i in range(6):
            A("buffer_store_dwordx4 v[20:23], v16, s[8:11], s78 offen sc1")
            A("s_add_u32 s78, s78, 8192")
    nclr = 6 if opt.get("clr", 1) else 0
    for i in range(160): A(f"v_mov_b32 v{ACC0+i}, 0")
    if opt.get("st") == 2: stamp(A, opt, 4)
    A(f"s_waitcnt vmcnt({(15 if h == 0 else 8) + nclr})")
    if opt.get("st") == 2: stamp(A, opt, 5)
    A("s_barrier")
    if opt.get("st") == 2:
        stamp(A, opt, 6); opt = dict(opt); opt["st"] = 0; opt["st_final"] = 1
    stamp(A, opt, 2)
    for r in reads(h, 0, 0, 0): A(r)
    A("s_waitcnt lgkmcnt(0)")
    mainloop(A, h, opt)
    stamp(A, opt, 3)
    if h == 0:
        epi_k(A, opt)
    else:
        epi_q(A, opt)
    stamp(A, opt, 6)
    if opt.get("st_final"): opt["st"] = 1
    stamp(A, opt, 7, True)
    stamp_out(A, opt, 1, 3, 8, "k2")
    if h == 0: A("s_endpgm")

def k2(opt):
    A = Asm(); lab = "gemm1_kernel"
    header(A, lab)
    A("s_cmp_ge_u32 s2, 256"); A("s_cbranch_scc1 L2_end")
    stamp(A, opt, 0, True); stamp(A, opt, 1)
    A("s_load_dwordx2 s[4:5], s[0:1], 8"); A("s_load_dwordx2 s[6:7], s[0:1], 16")
    A("s_load_dwordx4 s[16:19], s[0:1], 40"); A("s_load_dwordx2 s[20:21], s[0:1], 80")
    A("v_lshrrev_b32 v2, 6, v0"); A("v_and_b32 v1, 63, v0")
    A("v_readfirstlane_b32 s3, v2")
    A("s_and_b32 s22, s2, 7"); A("s_lshl_b32 s22, s22, 2"); A("s_lshr_b32 s23, s2, 3"); A("s_and_b32 s78, s23, 3")
    A("s_add_u32 s22, s22, s78"); A("s_lshr_b32 s23, s23, 2")
    A(f"v_lshlrev_b32 v{VL16}, 4, v1")
    A("s_waitcnt lgkmcnt(0)")
    srd(A, 8, 20, 21, WS_BYTES); srd(A, 12, 6, 7, 65536)
    A("s_cmp_ge_u32 s3, 4"); A("s_cbranch_scc1 L2_xsetup")
    A("s_lshl_b32 s78, s22, 6")
    A("s_mul_i32 s79, s22, 224")
    for w in range(4):
        if w < 3:
            A(f"s_cmp_lg_u32 s3, {w}"); A(f"s_cbranch_scc1 L2_ws{w+1}")
        for i in range(5):
            g = 5 * w + i
            if g < 6:
                kind, idx = 0, g
                srd(A, 24 + 4 * i, 4, 5, 1024 * 6144)
                A(f"v_add_u32 v16, {idx*64}, v1"); A("v_mul_u32_u24 v17, 5462, v16"); A("v_lshrrev_b32 v17, 16, v17")
                A("v_mul_u32_u24 v18, 12, v17"); A("v_sub_u32 v18, v16, v18")
                A("v_mul_u32_u24 v17, 6144, v17"); A("v_lshrrev_b32 v19, 2, v18"); A("v_lshl_add_u32 v17, v19, 11, v17")
                A("v_and_b32 v18, 3, v18"); A(f"v_lshl_add_u32 v{VD+i}, v18, 4, v17")
                A(f"s_mov_b32 s{64+i}, s78"); A(f"s_mov_b32 s{69+i}, {32*6144}")
                for sl in range(4): A(f"s_mov_b32 s{44+sl*5+i}, {QB + sl*QS + idx*1024}")
            else:
                kind = 1 if g < 13 else 2; idx = g - 6 if g < 13 else g - 13
                srd(A, 24 + 4 * i, 16 if kind == 1 else 18, 17 if kind == 1 else 19, 1024 * 7168)
                A(f"v_add_u32 v16, {idx*64}, v1"); A("v_mul_u32_u24 v17, 4682, v16"); A("v_lshrrev_b32 v17, 16, v17")
                A("v_mul_u32_u24 v18, 14, v17"); A("v_sub_u32 v18, v16, v18")
                A("v_mul_u32_u24 v17, 7168, v17"); A(f"v_lshl_add_u32 v{VD+i}, v18, 4, v17")
                A(f"s_mov_b32 s{64+i}, s79"); A(f"s_mov_b32 s{69+i}, {32*7168}")
                for sl in range(4): A(f"s_mov_b32 s{44+sl*5+i}, {GB + sl*GS + (UPO if kind == 2 else 0) + idx*1024}")
        if w < 3:
            A("s_branch L2_wgo"); A.label(f"L2_ws{w+1}")
    A.label("L2_wgo")
    if opt.get("st") == 2: stamp(A, opt, 2)
    for sl in range(4):
        for pre, ins, post in dma(0, sl):
            for p in pre: A(p)
            A(ins)
            for p in post: A(p)
    run(A, 0, opt)
    A.label("L2_xsetup")
    A("s_sub_u32 s78, s3, 4")
    A("s_and_b32 s79, s78, 1"); A("s_lshl_b32 s79, s79, 10"); A(f"s_add_u32 m0, s79, {PB}")
    A("s_lshl_b32 s80, s22, 11"); A("s_add_u32 s80, s80, s79")
    A(f"buffer_load_dwordx4 v{VL16}, s[12:15], s80 offen lds")
    A("s_lshr_b32 s80, s78, 1"); A("s_lshl_b32 s80, s80, 16"); A("s_lshl_b32 s79, s79, 2"); A("s_add_u32 s80, s80, s79")
    A("s_lshl_b32 s79, s23, 13"); A("s_add_u32 s80, s80, s79")
    A(f"v_add_u32 v{VD}, s80, v{VL16}")
    if opt.get("st") == 2: stamp(A, opt, 2)
    A(f"s_mov_b32 s64, {XN_OFF}")
    A("s_lshl_b32 s44, s78, 12")
    for sl in range(1, 4): A(f"s_add_u32 s{44+sl}, s44, {sl*16384}")
    for sl in range(3):
        for pre, ins, post in dma(1, sl):
            for p in pre: A(p)
            A(ins)
            for p in post: A(p)
    run(A, 1, opt)
    A.label("L2_end")
    A("s_endpgm")
    return lab, A.lines, dict(grid=256, block=512, lds=LDS_K2, vgpr=256, sgpr=102)
```

```python
from gen import *
from k2 import mfma

WB = 65536
LDS_K4 = WB + 4 * 8192
ACC0 = 96
def acc(b): return ACC0 + 16 * b
FR = 32
def wf(st, a, cbi): return FR + st * 32 + a * 16 + cbi * 4
def af(st, a, tbi): return FR + st * 32 + a * 16 + 8 + tbi * 4
VA = 2; VW = 4; VDA = 6; VDW = 7; VL16 = 8; VO = 9; VXR = 12; VXC = 10

def reads(st, slot):
    R = []
    for a in range(2):
        def ar(t): return f"ds_read_b128 {vr(af(st,a,t),4)}, v{VA+t} offset:{slot*16384 + a*8192}"
        def wr(c, sec): return f"ds_read_b64_tr_b16 {vr(wf(st,a,c)+2*sec,2)}, v{VW+c} offset:{slot*8192 + a*4096 + sec*2048}"
        R += [ar(0), wr(0, 0), wr(0, 1), wr(1, 0), wr(1, 1), ar(1)]
    return R

def mfmas(st):
    M = []
    for a in range(2):
        for b in range(4):
            M.append(mfma(acc(b), wf(st, a, b & 1), af(st, a, b >> 1)))
    return M

def dma(slot):
    return [([f"s_mov_b32 m0, s{44+slot}"], f"buffer_load_dwordx4 v{VDA}, s[8:11], s64 offen lds", []),
            ([], f"buffer_load_dwordx4 v{VDA}, s[8:11], s64 offen offset:1024 lds", ["s_add_u32 s64, s64, 0x20000"]),
            ([f"s_mov_b32 m0, s{48+slot}"], f"buffer_load_dwordx4 v{VDW}, s[12:15], s65 offen lds", ["s_add_u32 s65, s65, 0x10000"])]

def step(A, h, st, rd, dm, opt):
    M = mfmas(st)
    rd = list(rd)
    nd = len(dm)
    dfirst = (h == 0 and opt.get("k4stag", 1))
    first_d = 0 if dfirst else 8 - nd
    if nd and first_d == 0:
        for p in dm[0][0]: A(p)
    for i, m in enumerate(M):
        A(m)
        nr = 2
        if dfirst and nd: nr = 0 if i < 2 else 2 if i < 6 else 2
        if dfirst and nd: nr = [0, 1, 1, 2, 3, 3, 2, 0][i]
        else: nr = [3, 3, 2, 2, 2, 0, 0, 0][i]
        for _ in range(nr):
            if rd: A(rd.pop(0))
        k = i - first_d
        if 0 <= k < nd:
            A(dm[k][1])
            for p in dm[k][2]: A(p)
        if 0 <= k + 1 < nd:
            for p in dm[k + 1][0]: A(p)
    assert not rd

def run(A, h, opt):
    A("s_waitcnt vmcnt(9)"); A("s_barrier")
    stamp(A, opt, 2)
    for r in reads(0, 0): A(r)
    A("s_mov_b32 s74, 8")
    A.label(f"L4_loop{h}")
    for slot in range(4):
        A("s_waitcnt vmcnt(6) lgkmcnt(0)"); A("s_barrier")
        step(A, h, slot & 1, reads((slot + 1) & 1, (slot + 1) % 4), dma(slot), opt)
    A("s_cmp_eq_u32 s74, 8")
    A("s_cselect_b32 s12, s16, s12"); A("s_cselect_b32 s13, s17, s13"); A(f"s_cselect_b32 s14, {3584*2048}, s14"); A("s_cselect_b32 s65, s66, s65")
    A("s_sub_u32 s74, s74, 1"); A("s_cmp_lg_u32 s74, 0"); A(f"s_cbranch_scc1 L4_loop{h}")
    for slot in range(4):
        if slot < 3:
            A(f"s_waitcnt vmcnt({6-3*slot}) lgkmcnt(0)"); A("s_barrier")
            step(A, h, slot & 1, reads((slot + 1) & 1, slot + 1), [], opt)
        else:
            A("s_waitcnt lgkmcnt(0)")
            step(A, h, slot & 1, [], [], opt)

def k4(opt):
    A = Asm(); lab = "gemm2_kernel"
    header(A, lab)
    A("s_cmp_ge_u32 s2, 256"); A("s_cbranch_scc1 L4_end")
    stamp(A, opt, 0, True); stamp(A, opt, 1)
    A("s_load_dwordx2 s[4:5], s[0:1], 0"); A("s_load_dwordx2 s[6:7], s[0:1], 24")
    A("s_load_dwordx4 s[16:19], s[0:1], 56"); A("s_load_dwordx2 s[20:21], s[0:1], 80")
    A("v_lshrrev_b32 v2, 6, v0"); A("v_and_b32 v1, 63, v0")
    A("v_readfirstlane_b32 s3, v2")
    A("s_and_b32 s33, s2, 7"); A("s_lshr_b32 s22, s33, 1"); A("s_and_b32 s23, s33, 1"); A("s_lshl_b32 s23, s23, 2")
    A("s_lshr_b32 s33, s2, 3"); A("s_and_b32 s32, s33, 7"); A("s_lshr_b32 s33, s33, 3"); A("s_add_u32 s23, s23, s33")
    A(f"v_lshlrev_b32 v{VL16}, 4, v1")
    A("s_lshr_b32 s34, s3, 2"); A("s_and_b32 s35, s3, 3")
    A("s_lshl_b32 s36, s34, 16"); A("s_lshl_b32 s37, s35, 11"); A("s_add_u32 s36, s36, s37")
    A(f"v_add_u32 v{VDA}, s36, v{VL16}")
    A(f"s_mul_i32 s64, s22, {72*65536}"); A("s_lshl_b32 s36, s23, 13"); A("s_add_u32 s64, s64, s36"); A(f"s_add_u32 s64, s64, {ACT_OFF}")
    A("v_lshrrev_b32 v16, 4, v1"); A("v_and_b32 v17, 15, v1"); A("v_lshlrev_b32 v18, 2, v16"); A("v_xor_b32 v17, v17, v18")
    A("v_lshlrev_b32 v16, 11, v16"); A(f"v_lshl_add_u32 v{VDW}, v17, 4, v16")
    A("s_lshl_b32 s36, s3, 13"); A(f"v_add_u32 v{VDW}, s36, v{VDW}")
    A("s_lshl_b32 s36, s32, 8")
    A(f"s_mul_i32 s65, s22, {256*2048}"); A("s_add_u32 s65, s65, s36")
    A(f"s_mul_i32 s66, s22, {896*2048}"); A("s_add_u32 s66, s66, s36")
    A("s_lshl_b32 s44, s3, 11"); A("s_lshl_b32 s48, s3, 10"); A(f"s_add_u32 s48, s48, {WB}")
    for sl in range(1, 4):
        A(f"s_add_u32 s{44+sl}, s44, {sl*16384}"); A(f"s_add_u32 s{48+sl}, s48, {sl*8192}")
    A("s_lshr_b32 s38, s22, 1"); A("s_and_b32 s39, s22, 1")
    A("s_lshl_b32 s36, s35, 1"); A("s_add_u32 s36, s36, s38"); A("s_lshl_b32 s36, s36, 5"); A("s_lshl_b32 s37, s23, 8"); A("s_add_u32 s36, s36, s37")
    A("s_lshl_b32 s36, s36, 11")
    A("s_lshl_b32 s37, s39, 1"); A("s_add_u32 s37, s37, s34"); A("s_lshl_b32 s37, s37, 6"); A("s_add_u32 s36, s36, s37")
    A("s_lshl_b32 s37, s32, 8"); A("s_add_u32 s40, s36, s37")
    A("v_and_b32 v16, 31, v1"); A("v_lshlrev_b32 v16, 11, v16"); A("v_lshrrev_b32 v17, 5, v1"); A(f"v_lshl_add_u32 v{VO}, v17, 5, v16")
    A("s_waitcnt lgkmcnt(0)")
    srd(A, 8, 20, 21, WS_BYTES); srd(A, 12, 6, 7, 1024 * 2048); srd(A, 24, 4, 5, 2048 * 2048); srd(A, 28, 18, 19, 2048 * 2048)
    for sl in range(4):
        for pre, ins, post in dma(sl):
            for p in pre: A(p)
            A(ins)
            for p in post: A(p)
        if sl == 0:
            pass
    for t in range(2):
        A(f"s_xor_b32 s36, s38, {t}"); A("s_lshl_b32 s37, s35, 1"); A("s_add_u32 s36, s36, s37"); A("s_lshl_b32 s36, s36, 10")
        A(f"v_add_u32 v{VA+t}, s36, v{VL16}")
    A("v_lshrrev_b32 v16, 5, v1")
    A("v_bfe_u32 v17, v1, 2, 2")
    A("v_bfe_u32 v18, v1, 4, 1")
    A("v_and_b32 v19, 1, v1")
    A("v_bfe_u32 v20, v1, 1, 1")
    A("v_lshl_add_u32 v21, v16, 2, v17"); A("v_lshlrev_b32 v21, 8, v21")
    A("v_lshl_add_u32 v21, v19, 5, v21"); A("v_lshl_add_u32 v21, v18, 4, v21"); A("v_lshl_add_u32 v21, v20, 3, v21")
    A(f"v_add_u32 v21, {WB}, v21")
    for c in range(2):
        A(f"s_xor_b32 s36, s39, {c}"); A("s_lshl_b32 s36, s36, 1"); A("s_add_u32 s36, s36, s34")
        A("v_xor_b32 v22, s36, v17"); A(f"v_lshl_add_u32 v{VW+c}, v22, 6, v21")
    A("s_lshl_b32 s36, s3, 11"); A(f"v_add_u32 v{VXC}, s36, v{VL16}")
    A("s_lshl_b32 s41, s23, 3"); A("s_add_u32 s41, s41, s32"); A(f"s_mul_i32 s41, s41, {12*16384}"); A(f"s_add_u32 s41, s41, {XCH_OFF}")
    for i in range(64): A(f"v_mov_b32 v{ACC0+i}, 0")
    A("s_cmp_ge_u32 s3, 4"); A("s_cbranch_scc1 L4_h1")
    run(A, 0, opt)
    A("s_branch L4_epi")
    A.label("L4_h1")
    run(A, 1, opt)
    A.label("L4_epi")
    stamp(A, opt, 3)
    A(f"buffer_load_dwordx4 {vr(VXR,4)}, v{VO}, s[24:27], s40 offen")
    A(f"buffer_load_dwordx4 {vr(VXR+4,4)}, v{VO}, s[24:27], s40 offen offset:16")
    for b in range(1, 4):
        P = acc(b)
        A(f"s_xor_b32 s36, s22, {b}"); A(f"s_mul_i32 s36, s36, {3*16384}"); A("s_add_u32 s36, s36, s41"); A(f"s_add_u32 s36, s36, {(b-1)*16384}")
        for r in range(8): A(f"v_cvt_pk_bf16_f32 v{P+r}, v{P+2*r}, v{P+2*r+1}")
        A(f"buffer_store_dwordx4 {vr(P,4)}, v{VXC}, s[8:11], s36 offen sc1")
        A(f"buffer_store_dwordx4 {vr(P+4,4)}, v{VXC}, s[8:11], s36 offen offset:1024 sc1")
    A(f"s_mul_i32 s36, s22, {3*16384}"); A("s_add_u32 s36, s36, s41"); A("s_add_u32 s37, s36, 16384"); A("s_add_u32 s38, s36, 32768")
    A("s_mov_b32 s42, 0xffff0000")
    A("s_waitcnt vmcnt(6)")
    P = acc(0)
    for r in range(8):
        A(f"v_lshlrev_b32 v20, 16, v{VXR+r}"); A(f"v_and_b32 v21, s42, v{VXR+r}")
        A(f"v_add_f32 v{P+2*r}, v{P+2*r}, v20"); A(f"v_add_f32 v{P+2*r+1}, v{P+2*r+1}, v21")
    A("s_mov_b32 s43, 0")
    stamp(A, opt, 4)
    R = 32
    A.label("L4_poll")
    for b in range(3):
        for q in range(2):
            A(f"buffer_load_dwordx4 {vr(R+8*b+4*q,4)}, v{VXC}, s[8:11], s{36+b} offen offset:{q*1024} sc1")
    A("s_waitcnt vmcnt(0)")
    A(f"v_max3_u32 v20, v{R}, v{R+1}, v{R+2}")
    for i in range(3, 23, 2): A(f"v_max3_u32 v20, v20, v{R+i}, v{R+i+1}")
    A(f"v_max_u32 v20, v20, v{R+23}")
    A("v_cmp_eq_u32 vcc, -1, v20")
    A("s_cbranch_vccz L4_got")
    A("s_add_u32 s43, s43, 1"); A("s_cmp_lt_u32 s43, 0x40000"); A("s_sleep 1")
    A("s_cbranch_scc1 L4_poll")
    A.label("L4_got")
    stamp(A, opt, 5)
    for b in range(3):
        for r in range(8):
            A(f"v_lshlrev_b32 v20, 16, v{R+8*b+r}"); A(f"v_and_b32 v21, s42, v{R+8*b+r}")
            A(f"v_add_f32 v{P+2*r}, v{P+2*r}, v20"); A(f"v_add_f32 v{P+2*r+1}, v{P+2*r+1}, v21")
    for r in range(8): A(f"v_cvt_pk_bf16_f32 v{P+r}, v{P+2*r}, v{P+2*r+1}")
    A(f"buffer_store_dwordx4 {vr(P,4)}, v{VO}, s[28:31], s40 offen")
    A(f"buffer_store_dwordx4 {vr(P+4,4)}, v{VO}, s[28:31], s40 offen offset:16")
    stamp(A, opt, 6); stamp(A, opt, 7, True)
    stamp_out(A, opt, 2, 3, 8, "k4")
    A.label("L4_end")
    A("s_endpgm")
    return lab, A.lines, dict(grid=256, block=512, lds=LDS_K4, vgpr=160, sgpr=102)
```

```python
from common import *
import p1, p2, p3

def kernel(opt):
    A = Asm(); lab = NAME + "_kernel"
    st = Stamper(A, opt.get("st", 0))
    header(A, lab)
    p1.entry(A, st)
    A(f"s_cmp_ge_u32 s{SW}, 4"); A("s_cbranch_scc1 L0_x")
    vms = []
    for h in range(2):
        if h == 0: p1.w_setup(A, opt, st)
        else:
            A.label("L0_x")
            p1.x_setup(A, opt, st)
            if opt.get("prio"): A("s_setprio 1")
        st(4)
        for r in p1.next_reads(h, 0): A(r)
        p2.consts(A)
        A("s_waitcnt lgkmcnt(0)")
        vm = p3.VM()
        hooks = dict(pre_last=p3.pre_last(), t2=p3.t2(opt), w2=[p3.w_dma(s) for s in range(6)])
        p1.mainloop(A, h, opt, hooks)
        st(5)
        hk = dict(dbgcheck=p3.dbgcheck, after_bh=p3.after_bh(vm), poll_h=lambda A: p3.poll_issue(A, vm, "h"))
        p2.epilogue(A, h, opt, st, vm, hk)
        vms.append(vm)
        if h == 0: A("s_branch L3_start")
    assert vms[0].q == vms[1].q
    A.label("L3_start")
    p3.gemm2(A, opt, st, vms[0])
    st(12); st(13, True); st.out(14)
    A.label("L_end")
    A("s_endpgm")
    return lab, A.lines

def build(path, opt):
    lab, lines = kernel(opt)
    lines, tot = pad(lines, opt.get("v", 0))
    print(f"{len(lines)} lines, {tot} pad states, lds {LDS_BYTES}")
    txt = f"; @launch grid=(256,1,1) block=(512,1,1) lds={LDS_BYTES}\n" + '.amdgcn_target "amdgcn-amd-amdhsa--gfx950"\n.text\n'
    for l in lines:
        txt += (l if (l.endswith(":") or l.startswith(".")) else "    " + l) + "\n"
    txt += '.section .rodata,"a"\n' + desc(lab, 256, 102)
    open(path, "w").write(txt)

if __name__ == "__main__":
    opt = dict(xt=0, touch=1)
    for a in sys.argv[2:]:
        k, v = a.split("="); opt[k] = int(v)
    build(sys.argv[1], opt)
```

```python
import sys, math, struct
sys.path.insert(0, "work")
from asmlib import Asm, pad, vr, sr
from gen import f2u, srd, header, desc, WS_BYTES, NAME, STAMP_OFF

HACT = 0x400000
OACT = 0x1200000
KVP = 0x1600000; KVS = 8448
XCH = 0x1A00000
FLG = 0x2600000
STAT = FLG + 0x8000
OOB = 0x40000000

SW = 3; SKS = 4; SNI = 5; SA = 6; SWR = 7
WS = 8; DBG = 12; XS = 16; WO = 20; WD = 24; OUT = 28
SR = 32; M0T = 52; SO = 72; ST = 77
SJ = 82; SMI = 83; SCNT = 84
T0, T1, T2, T3, T4, T5, T6, T7 = range(85, 93)
SIDX = 93; SXCD = 94; SSP = 95
SKEY = 96; SK1 = 97; SKSH = 98; SKSL = 99
def S4(b): return f"s[{b}:{b+3}]"

QB = 65536; QS = 6144
GB = QB + 4 * QS; GS = 14336; UPO = 7168
PB = GB + 4 * GS
E_KVF = PB + 2048; E_ZF = E_KVF + 4096; E_Z = E_ZF + 256
STB = E_Z + 1024
LDS_BYTES = STB + 4096
CSB = 0
E_PART = 65536
W2B = 98304

VST = 23
MF = "v_mfma_f32_16x16x32_bf16"
def mfma(d, a, b, c=None):
    cs = vr(d, 4) if c is None else c
    return f"{MF} {vr(d,4)}, {vr(a,4)}, {vr(b,4)}, {cs}"

class Stamper:
    def __init__(self, A, on): self.A = A; self.on = on; self.last = None
    def __call__(self, i, real=False):
        if not self.on: return
        A = self.A
        if self.last is not None:
            A("s_waitcnt lgkmcnt(0)")
            A(f"v_writelane_b32 v{VST}, s100, {self.last}")
        self.last = i
        A("s_memrealtime s[100:101]" if real else "s_memtime s[100:101]")
    def out(self, n):
        if not self.on: return
        A = self.A
        A("s_waitcnt lgkmcnt(0)")
        A(f"v_writelane_b32 v{VST}, s100, {self.last}")
        A(f"s_lshl_b32 s{T0}, s2, 3"); A(f"s_add_u32 s{T0}, s{T0}, s{SW}"); A(f"s_lshl_b32 s{T0}, s{T0}, 8")
        A(f"s_add_u32 s{T0}, s{T0}, {STAMP_OFF}")
        A("v_lshlrev_b32 v22, 2, v1")
        A(f"buffer_store_dword v{VST}, v22, {S4(WS)}, s{T0} offen")

_uid = [0]
def uid(p):
    _uid[0] += 1
    return f"L{p}_{_uid[0]}"

def spin(A, vd, va, srdb, soff, expect, first_loaded=False):
    l0 = uid("sp"); l1 = uid("ok"); l2 = uid("ck")
    A(f"s_mov_b32 s{SSP}, 0")
    if first_loaded: A(f"s_branch {l2}")
    A.label(l0)
    A(f"buffer_load_dword v{vd}, v{va}, {S4(srdb)}, {soff} offen sc1")
    A("s_waitcnt vmcnt(0)")
    A.label(l2)
    A(f"v_cmp_ne_u32 vcc, {expect}, v{vd}")
    A(f"s_cbranch_vccz {l1}")
    A(f"s_add_u32 s{SSP}, s{SSP}, 1"); A(f"s_cmp_lt_u32 s{SSP}, 0x40000"); A("s_sleep 1")
    A(f"s_cbranch_scc1 {l0}")
    A.label(l1)

def flag_off(A, d, kind):
    if kind == "kv":
        A(f"s_lshl_b32 s{d}, s{SJ}, 5"); A(f"s_add_u32 s{d}, s{d}, s{SMI}"); base = 0
    elif kind == "h":
        A(f"s_lshl_b32 s{d}, s{SMI}, 2"); A(f"s_add_u32 s{d}, s{d}, s{SKS}"); A(f"s_lshl_b32 s{d}, s{d}, 5"); A(f"s_add_u32 s{d}, s{d}, s{SNI}"); base = 4096
    elif kind == "o":
        A(f"s_lshl_b32 s{d}, s{SMI}, 5"); A(f"s_add_u32 s{d}, s{d}, s{SJ}"); base = 8192
    else:
        A(f"s_lshl_b32 s{d}, s{SMI}, 3"); A(f"s_add_u32 s{d}, s{d}, s{SNI}"); A(f"s_lshl_b32 s{d}, s{d}, 5"); A(f"s_add_u32 s{d}, s{d}, s{SKS}"); base = 12288
    A(f"s_lshl_b32 s{d}, s{d}, 2"); A(f"s_add_u32 s{d}, s{d}, {FLG + base}")

def signal(A, kind, wave, va, vb):
    l = uid("sg")
    A(f"s_cmp_lg_u32 s{SW}, {wave}"); A(f"s_cbranch_scc1 {l}")
    flag_off(A, T7, kind)
    A(f"v_mov_b32 v{va}, 0"); A(f"v_mov_b32 v{vb}, 1")
    A(f"buffer_store_dword v{vb}, v{va}, {S4(WS)}, s{T7} offen sc1")
    A.label(l)

def line_off(A, d, kind):
    flag_off(A, d, kind)
    A(f"s_and_b32 s{d}, s{d}, 0xffffff80")
NFL = dict(kv=8, h=8, o=32, x=4)
```

```python
from common import *

ACC0 = 96
def acc(b, tb): return ACC0 + (b * 4 + tb) * 4
def afr(hs, i): return 24 + hs * 20 + i * 4
def bfr(par, tb): return 64 + par * 16 + tb * 4
VX = 2; VQ = 4; VG = 6; VD = 7; VPA = 21; VL16 = 0
SEL = 12; CSA = 16; VSA = 22; VCW = 9
SV = 24; CV = 40
VT = 8; VTD = 9
PW = 64

def blocks(h):
    if h == 0:
        return [("q", 2), ("q", 3), ("q", 4), ("q", 5), ("g", 0), ("u", 0), ("g", 1), ("u", 1), ("g", 2), ("u", 2)]
    return [("q", 0), ("q", 1), ("g", 3), ("u", 3), ("g", 4), ("u", 4), ("g", 5), ("u", 5), ("g", 6), ("u", 6)]

def a_reads(h, hs, slot):
    R = []
    for i in range(5):
        kind, idx = blocks(h)[hs * 5 + i]
        for sec in range(2):
            d = vr(afr(hs, i) + 2 * sec, 2)
            if kind == "q":
                R.append(f"ds_read_b64_tr_b16 {d}, v{VQ + (idx & 1)} offset:{slot*QS + sec*16*192 + (idx>>1)*64}")
            else:
                R.append(f"ds_read_b64_tr_b16 {d}, v{VG} offset:{slot*GS + (UPO if kind == 'u' else 0) + sec*16*224 + idx*32}")
    return R

def b_reads(s):
    return [f"ds_read_b128 {vr(bfr(s & 1, tb), 4)}, v{VX + (s & 1)} offset:{((s >> 1) & 1)*32768 + tb*2048}" for tb in range(4)]

def next_reads(h, s):
    B = b_reads(s); Ar = a_reads(h, 0, s & 3)
    return [B[0], Ar[0], Ar[1], B[1], B[2], B[3]] + Ar[2:]

def mfmas(h, hs, par):
    M = []
    for i in range(5):
        b = hs * 5 + i
        for tb in range(4):
            if h == 0 and b in (2, 3):
                M.append(mfma(acc(b, tb), bfr(par, tb), afr(hs, i)))
            else:
                M.append(mfma(acc(b, tb), afr(hs, i), bfr(par, tb)))
    return M

def w_dma(slot):
    return [([f"s_mov_b32 m0, s{M0T+slot*5+i}"],
             f"buffer_load_dwordx4 v{VD+i}, {S4(SR+4*i)}, s{SO+i} offen lds",
             [f"s_add_u32 s{SO+i}, s{SO+i}, s{ST+i}"]) for i in range(5)]

def x_dma(opt, xslot, half):
    PS = 16384; CS = 128
    D = []
    for i in range(4):
        pre = [f"s_mov_b32 m0, s{M0T + xslot*2 + half}"] if i == 0 else []
        if i < 3: inc = PS - 1024
        elif half == 0: inc = 4 * PS - 3 * (PS - 1024)
        else: inc = CS - 4 * PS - 3 * (PS - 1024)
        post = [f"s_add_u32 s{SO}, s{SO}, {inc & 0xffffffff:#x}"] if inc else []
        D.append((pre, f"buffer_load_dwordx4 v{VD}, {S4(XS)}, s{SO} offen offset:{i*1024} lds", post))
    return D

def touch():
    return [([], f"buffer_load_dword v{VTD}, v{VT}, {S4(SR)}, s{SO+1} offen sc1", []),
            ([], f"buffer_load_dword v{VTD}, v{VT}, {S4(SR)}, s{SO+1} offen offset:128 sc1",
             [f"s_add_u32 s{SO+1}, s{SO+1}, s{ST+1}", f"s_min_u32 s{SO+1}, s{SO+1}, s{ST+2}"])]

def emit(A, D):
    for pre, ins, post in D:
        for p in pre: A(p)
        A(ins)
        for p in post: A(p)

def step(A, M, rd, dm, spread=1, ins={}):
    rd = list(rd); nd = len(dm); n = len(M)
    pos = {}
    for k in range(nd): pos[n - 1 - (nd - 1 - k) * spread] = k
    if -1 in ins: ins[-1]()
    for i, m in enumerate(M):
        if i in pos:
            for p in dm[pos[i]][0]: A(p)
        A(m)
        if rd: A(rd.pop(0))
        if i in pos:
            A(dm[pos[i]][1])
            for p in dm[pos[i]][2]: A(p)
        if i in ins: ins[i]()
    assert not rd

def phi_reads():
    return [f"ds_read_b64_tr_b16 {vr(PW + 4*fb + 2*sec, 2)}, v{VPA} offset:{sec*1024 + fb*32}" for fb in range(2) for sec in range(2)]
def stat_reads():
    return [f"ds_read_b128 {vr(SV + 4*tb, 4)}, v{VSA} offset:{tb*256}" for tb in range(4)]

def colsum(A, O, h, hs, par):
    lo = uid("cs"); l2 = uid("cs"); lb = uid("cb")
    A(f"s_cmp_lt_u32 s{SWR}, 2" if hs == 0 else f"s_cmp_ge_u32 s{SWR}, 2")
    A(f"s_cbranch_scc1 {lo}"); A.label(lb)
    O.label(lo)
    O(f"s_bitcmp1_b32 s{SWR}, 0"); O(f"s_cbranch_scc1 {l2}")
    for odd in range(2):
        if odd: O.label(l2)
        sl = [0, 1, 2] if (odd ^ h) == 0 else [3, 4]
        if par: sl = sl[::-1]
        for n, i in enumerate(sl):
            if n:
                for r in range(4): O(f"v_mov_b32_dpp v{SEL+r}, v{SEL+r} row_ror:{15 if par else 1} row_mask:0xf bank_mask:0xf")
            O(mfma(CSA, SEL, afr(hs, i)))
        O(f"s_branch {lb}")
def cs_src(h, b):
    hs, slot = divmod(b, 5); e = int(slot >= 3)
    return CV + 4 * (2 * hs + (e ^ h)) + slot - 3 * e

def dbg_signal(A, O):
    lo = uid("dg"); lb = uid("db")
    A(f"s_sub_u32 s{SKEY}, s{SKEY}, 1"); A(f"s_cbranch_scc1 {lo}"); A.label(lb)
    O.label(lo)
    O("v_mov_b32 v20, 0"); O("v_mov_b32 v21, 1")
    O(f"buffer_store_byte v21, v20, {S4(DBG)}, s2 offen sc1")
    O(f"s_branch {lb}")

def mainloop(A, O, h, opt, hooks):
    sp = opt.get("spread", 2); cp = opt.get("cspos", 19)
    def stage(slot, last):
        d0 = []; d1 = []; vm = None
        i0 = {cp: lambda: colsum(A, O, h, 0, slot & 1)}; i1 = {cp: lambda: colsum(A, O, h, 1, slot & 1)}
        if h == 0:
            if not last: d1 = w_dma(slot); vm = 10
            else: vm = [10, 5, 0, None][slot]
        else:
            nt = 2 if opt["touch"] else 0
            if not last: i0[2] = lambda: dbg_signal(A, O)
            if slot == 0:
                d0 = x_dma(opt, 1, 1)
                if not last: d1 = touch() if nt else []
                else: d0 = hooks["dbg"] + d0; d1 = hooks["t2"]
            elif slot == 1:
                vm = nt if not last else len(hooks["t2"])
                if not last: d1 = x_dma(opt, 0, 0)
                else: i1[1] = lambda: hooks["dbgcheck"](A)
            elif slot == 2:
                if not last: d0 = x_dma(opt, 0, 1)
            else:
                vm = 0
                if not last: d1 = x_dma(opt, 1, 0)
        step(A, mfmas(h, 0, slot & 1), a_reads(h, 1, slot), d0, sp, i0)
        A(f"s_waitcnt vmcnt({vm}) lgkmcnt(0)" if vm is not None else "s_waitcnt lgkmcnt(0)")
        A("s_barrier")
        if last and slot == 3:
            def cw():
                A(f"s_lshl_b32 s{T0}, s{SW}, 10"); A(f"v_add_u32 v{VCW}, s{T0}, v{VL16}")
                A(f"ds_write_b128 v{VCW}, {vr(CSA,4)} offset:{CSB}")
            step(A, mfmas(h, 1, 1), phi_reads() + stat_reads(), hooks["w2"], 2, {-1: i1[cp], 8: cw})
            A("s_waitcnt lgkmcnt(0)"); A("s_barrier")
            for p in range(4): A(f"ds_read_b128 {vr(CV+4*p,4)}, v{VL16} offset:{CSB + h*4096 + p*1024}")
        else:
            step(A, mfmas(h, 1, slot & 1), next_reads(h, slot + 1), d1, 1 if len(d1) > 3 else sp, i1)
            A("s_waitcnt lgkmcnt(0)")
    A(f"s_mov_b32 s{SCNT}, 7")
    A.label(f"L1_loop{h}")
    for slot in range(4): stage(slot, False)
    A(f"s_sub_u32 s{SCNT}, s{SCNT}, 1"); A(f"s_cmp_lg_u32 s{SCNT}, 0"); A(f"s_cbranch_scc1 L1_loop{h}")
    for l in hooks["pre_last"]: A(l)
    for slot in range(4): stage(slot, True)

def divmod_v(A, q, r, n, d, t):
    m = (65536 + d - 1) // d
    for x in range(1024): assert (x * m) >> 16 == x // d
    A(f"v_mul_u32_u24 v{q}, {m}, v{n}"); A(f"v_lshrrev_b32 v{q}, 16, v{q}")
    A(f"v_mul_u32_u24 v{t}, {d}, v{q}"); A(f"v_sub_u32 v{r}, v{n}, v{t}")

def read_bases(A):
    A("v_lshrrev_b32 v14, 4, v1"); A("v_lshrrev_b32 v15, 2, v1"); A("v_and_b32 v16, 3, v1")
    A("v_and_b32 v17, 15, v1"); A("v_and_b32 v18, 7, v1"); A("v_xor_b32 v18, v14, v18")
    A(f"s_lshl_b32 s{T0}, s{SWR}, 13")
    A(f"v_lshlrev_b32 v17, 7, v17"); A(f"v_add_u32 v17, s{T0}, v17")
    A(f"v_lshl_add_u32 v{VX}, v18, 4, v17"); A("v_xor_b32 v18, 4, v18"); A(f"v_lshl_add_u32 v{VX+1}, v18, 4, v17")
    A("v_mul_u32_u24 v17, 192, v15"); A("v_lshl_add_u32 v17, v16, 3, v17"); A(f"v_add_u32 v17, {QB}, v17")
    A("v_and_b32 v18, 1, v14"); A(f"v_lshl_add_u32 v{VQ}, v18, 5, v17"); A("v_xor_b32 v18, 1, v18"); A(f"v_lshl_add_u32 v{VQ+1}, v18, 5, v17")
    A("v_mul_u32_u24 v17, 224, v15"); A("v_lshl_add_u32 v17, v16, 3, v17"); A(f"v_add_u32 v{VG}, {GB}, v17")
    A("v_and_b32 v17, 15, v1"); A("v_cmp_eq_u32 vcc, 0, v17"); A("v_mov_b32 v17, 0x3f803f80")
    for r in range(4): A(f"v_cndmask_b32 v{SEL+r}, 0, v17, vcc")
    for r in range(4): A(f"v_mov_b32 v{CSA+r}, 0")

def zero_acc(A):
    for i in range(160): A(f"v_mov_b32 v{ACC0+i}, 0")

PX, PQ, PPH, PWO, PG, PU, PD, POUT, PDBG, PWS = 52, 54, 56, 58, 62, 64, 66, 68, 70, 72

def entry(A, st):
    A("s_cmp_ge_u32 s2, 256"); A("s_cbranch_scc1 L_end")
    st(0, True)
    A("s_load_dwordx16 s[52:67], s[0:1], 0"); A("s_load_dwordx4 s[68:71], s[0:1], 64"); A("s_load_dwordx2 s[72:73], s[0:1], 80")
    A("v_lshrrev_b32 v2, 6, v0"); A("v_and_b32 v1, 63, v0")
    A(f"v_readfirstlane_b32 s{SW}, v2")
    A(f"s_and_b32 s{SXCD}, s2, 7"); A(f"s_lshr_b32 s{SIDX}, s2, 3")
    A(f"s_and_b32 s{SA}, s{SIDX}, 3"); A(f"s_lshr_b32 s{SMI}, s{SIDX}, 2")
    A(f"s_lshl_b32 s{SJ}, s{SXCD}, 2"); A(f"s_add_u32 s{SJ}, s{SJ}, s{SA}")
    A(f"s_lshr_b32 s{SKS}, s{SJ}, 3"); A(f"s_and_b32 s{SNI}, s{SJ}, 7")
    A(f"s_lshr_b32 s{SKSH}, s{SKS}, 1"); A(f"s_and_b32 s{SKSL}, s{SKS}, 1")
    A(f"v_lshlrev_b32 v{VL16}, 4, v1")
    A(f"s_and_b32 s{SWR}, s{SW}, 3")
    A(f"s_lshl_b32 s{SK1}, s{SMI}, 5"); A(f"s_add_u32 s{SK1}, s{SK1}, s{SJ}"); A(f"s_lshl_b32 s{SK1}, s{SK1}, 3"); A(f"s_add_u32 s{SK1}, s{SK1}, s{SW}")
    A(f"s_lshl_b32 s{T1}, s{SK1}, 11")
    st(1)
    A("s_waitcnt lgkmcnt(0)")
    srd(A, XS, PX, PX + 1, 2048 * 2048)
    for i in range(2): A(f"buffer_load_dwordx4 {vr(24+4*i,4)}, v{VL16}, {S4(XS)}, s{T1} offen offset:{i*1024}")
    srd(A, WS, PWS, PWS + 1, WS_BYTES)

def common_srds(A):
    srd(A, DBG, PDBG, PDBG + 1, 256); srd(A, WO, PWO, PWO + 1, 1024 * 2048)
    srd(A, WD, PD, PD + 1, 3584 * 2048); srd(A, OUT, POUT, POUT + 1, 2048 * 2048)

def krow(A, d, rho, t):
    A(f"v_bfe_u32 v{d}, v{rho}, 2, 2"); A(f"v_lshlrev_b32 v{d}, 3, v{d}")
    A(f"v_lshrrev_b32 v{t}, 4, v{rho}"); A(f"v_lshl_add_u32 v{d}, v{t}, 2, v{d}")
    A(f"v_and_b32 v{t}, 3, v{rho}"); A(f"v_add_u32 v{d}, v{d}, v{t}")

def w_setup(A, opt, st):
    common_srds(A)
    for w in range(4):
        if w < 3:
            A(f"s_cmp_lg_u32 s{SW}, {w}"); A(f"s_cbranch_scc1 L0_ws{w+1}")
        pcs = []
        for i in range(5):
            g = 5 * w + i
            kind, idx = (0, g) if g < 6 else (1, g - 6) if g < 13 else (2, g - 13)
            pcs.append((kind, idx))
            p = [PQ, PG, PU][kind]
            srd(A, SR + 4 * i, p, p + 1, 1024 * (6144 if kind == 0 else 7168))
        if w == 3:
            srd(A, T3, PPH, PPH + 1, 65536)
            A(f"s_mov_b32 m0, {PB}"); A(f"s_lshl_b32 s{T0}, s{SJ}, 11")
            A(f"buffer_load_dwordx4 v{VL16}, {S4(T3)}, s{T0} offen lds")
            A(f"buffer_load_dwordx4 v{VL16}, {S4(T3)}, s{T0} offen offset:1024 lds")
        for i, (kind, idx) in enumerate(pcs):
            A(f"v_add_u32 v14, {idx*64}, v1")
            divmod_v(A, 15, 16, 14, 12 if kind == 0 else 14, 17)
            krow(A, 17, 15, 19)
            if kind == 0:
                A("v_mul_u32_u24 v17, 6144, v17"); A("v_lshrrev_b32 v19, 2, v16"); A("v_lshl_add_u32 v17, v19, 11, v17")
                A("v_and_b32 v16, 3, v16"); A("v_lshrrev_b32 v19, 1, v15"); A("v_and_b32 v19, 2, v19"); A("v_xor_b32 v16, v16, v19")
                A(f"v_lshl_add_u32 v{VD+i}, v16, 4, v17")
                A(f"s_lshl_b32 s{SO+i}, s{SJ}, 6"); A(f"s_mov_b32 s{ST+i}, {32*6144}")
                for sl in range(4): A(f"s_mov_b32 s{M0T+sl*5+i}, {QB + sl*QS + idx*1024}")
            else:
                A("v_mul_u32_u24 v17, 7168, v17"); A(f"v_lshl_add_u32 v{VD+i}, v16, 4, v17")
                A(f"s_mul_i32 s{SO+i}, s{SJ}, 224"); A(f"s_mov_b32 s{ST+i}, {32*7168}")
                for sl in range(4): A(f"s_mov_b32 s{M0T+sl*5+i}, {GB + sl*GS + (UPO if kind == 2 else 0) + idx*1024}")
        if w < 3:
            A("s_branch L0_wgo"); A.label(f"L0_ws{w+1}")
    A.label("L0_wgo")
    read_bases(A)
    ne = opt.get("wearly", 0)
    for sl in range(ne): emit(A, w_dma(sl))
    zero_acc(A)
    A(f"s_waitcnt vmcnt({5*ne})")
    st(2)
    for sl in range(ne, 4): emit(A, w_dma(sl))
    stats(A)
    st(3)
    A("s_waitcnt vmcnt(16)")
    A("s_barrier")

def wave_sum(A, a, t):
    A(f"v_mov_b32 v{t}, v{a}"); A(f"v_permlane32_swap_b32 v{a}, v{t}"); A(f"v_add_f32 v{a}, v{a}, v{t}")
    A(f"v_mov_b32 v{t}, v{a}"); A(f"v_permlane16_swap_b32 v{a}, v{t}"); A(f"v_add_f32 v{a}, v{a}, v{t}")
    for r in (8, 4, 2, 1): A(f"v_add_f32_dpp v{a}, v{a}, v{a} row_ror:{r} row_mask:0xf bank_mask:0xf")

C0 = -2.0 * math.sqrt(2.0 / math.pi) * math.log2(math.e)
def stats(A):
    F = 40; R = 32
    A(f"s_mov_b32 s{T3}, 0xffff0000")
    for i in range(8):
        A(f"v_lshlrev_b32 v{F+2*i}, 16, v{24+i}"); A(f"v_and_b32 v{F+1+2*i}, s{T3}, v{24+i}")
    for c in range(4): A(f"v_add_f32 v{R+c}, v{F+c}, v{F+4+c}")
    for k in (8, 12):
        for c in range(4): A(f"v_add_f32 v{R+c}, v{R+c}, v{F+k+c}")
    A(f"v_add_f32 v{R}, v{R}, v{R+1}"); A(f"v_add_f32 v{R+2}, v{R+2}, v{R+3}"); A(f"v_add_f32 v{R}, v{R}, v{R+2}")
    wave_sum(A, R, R + 1)
    A(f"v_mul_f32 v{R}, {hex(f2u(-1.0/1024))}, v{R}")
    for i in range(16): A(f"v_add_f32 v{F+i}, v{F+i}, v{R}")
    Q = 36
    for k in range(4):
        for c in range(4):
            b = F + 4 * k + c
            A(f"v_mul_f32 v{Q+c}, v{b}, v{b}" if k == 0 else f"v_fmac_f32 v{Q+c}, v{b}, v{b}")
    A(f"v_add_f32 v{Q}, v{Q}, v{Q+1}"); A(f"v_add_f32 v{Q+2}, v{Q+2}, v{Q+3}"); A(f"v_add_f32 v{Q}, v{Q}, v{Q+2}")
    wave_sum(A, Q, Q + 1)
    A(f"v_mov_b32 v{R+3}, {hex(f2u(1e-5))}"); A(f"v_fmac_f32 v{R+3}, {hex(f2u(1.0/1024))}, v{Q}")
    A(f"v_rsq_f32 v{Q}, v{R+3}")
    A(f"s_lshl_b32 s{T3}, s{SK1}, 4")
    if STAT: A(f"s_add_u32 s{T3}, s{T3}, {STAT}")
    A(f"v_mul_f32 v{R+1}, {hex(f2u(C0))}, v{Q}"); A(f"v_mul_f32 v{Q}, v{Q}, v{Q}")
    A(f"v_mul_f32 v{Q}, {hex(f2u(0.044715))}, v{Q}"); A(f"v_mul_f32 v{R+2}, v{Q}, v{R+1}")
    A("s_mov_b64 exec, 1")
    A(f"buffer_store_dwordx4 {vr(R,4)}, v{VL16}, {S4(WS)}, s{T3} offen sc1")
    A("s_mov_b64 exec, -1")

def x_setup(A, opt, st):
    A(f"s_cmp_lg_u32 s{SWR}, 0"); A("s_cbranch_scc1 L0_xt1")
    srd(A, SR, PX, PX + 1, 2048 * 2048)
    A(f"s_lshl_b32 s{T2}, s{SMI}, 2"); A(f"s_add_u32 s{T2}, s{T2}, s{SA}")
    A(f"v_lshlrev_b32 v{VT}, 11, v1")
    A(f"s_lshl_b32 s{SO+1}, s{T2}, 17"); A(f"s_mov_b32 s{ST+1}, 256")
    A(f"s_add_u32 s{ST+2}, s{SO+1}, {14*128}")
    A("s_branch L0_xt3")
    A.label("L0_xt1")
    A(f"s_cmp_lg_u32 s{SWR}, 1"); A("s_cbranch_scc1 L0_xt2")
    srd(A, SR, PQ, PQ + 1, 1024 * 6144)
    A("v_lshrrev_b32 v14, 2, v1"); A("v_and_b32 v15, 3, v1")
    A("v_mul_u32_u24 v15, 6144, v15"); A("v_lshl_add_u32 v15, v14, 11, v15")
    A(f"v_mov_b32 v16, {OOB}"); A("v_cmp_gt_u32 vcc, 3, v14"); A(f"v_cndmask_b32 v{VT}, v16, v15, vcc")
    A(f"s_mul_i32 s{T2}, s{SIDX}, {4*6144}"); A(f"s_lshl_b32 s{T3}, s{SXCD}, 8"); A(f"s_add_u32 s{SO+1}, s{T2}, s{T3}")
    A(f"s_mov_b32 s{ST+1}, {128*6144}"); A(f"s_add_u32 s{ST+2}, s{SO+1}, {7*128*6144}")
    A("s_branch L0_xt3")
    A.label("L0_xt2")
    A(f"s_cmp_eq_u32 s{SWR}, 2"); A(f"s_cselect_b32 s{T3}, s{PG}, s{PU}"); A(f"s_cselect_b32 s{T4}, s{PG+1}, s{PU+1}")
    srd(A, SR, T3, T4, 1024 * 7168)
    A("v_lshrrev_b32 v14, 2, v1"); A("v_and_b32 v15, 3, v1")
    A("v_mul_u32_u24 v15, 7168, v15"); A("v_lshl_add_u32 v15, v14, 8, v15")
    A(f"v_mov_b32 v16, {OOB}"); A("v_cmp_gt_u32 vcc, 4, v14"); A(f"v_cndmask_b32 v{VT}, v16, v15, vcc")
    A(f"s_mul_i32 s{T2}, s{SIDX}, {4*7168}"); A(f"s_mul_i32 s{T3}, s{SXCD}, 896"); A(f"s_add_u32 s{SO+1}, s{T2}, s{T3}")
    A(f"s_mov_b32 s{ST+1}, {128*7168}"); A(f"s_add_u32 s{ST+2}, s{SO+1}, {7*128*7168}")
    A.label("L0_xt3")
    nt = 0
    if opt["touch"]:
        emit(A, touch()); emit(A, touch()); nt = 2
    common_srds(A)
    for u, kind in enumerate(("kv", "h", "o", "x")):
        flag_off(A, T3, kind)
        if u == 0: A(f"s_mov_b32 s{T2}, s{T3}")
        else:
            A(f"s_cmp_eq_u32 s{SWR}, {u}"); A(f"s_cselect_b32 s{T2}, s{T3}, s{T2}")
    A(f"s_lshl_b32 s{T3}, s{SMI}, 2"); A(f"s_add_u32 s{T3}, s{T3}, s{SWR}")
    A("v_lshrrev_b32 v14, 3, v1"); A("v_and_b32 v15, 7, v1"); A("v_xor_b32 v15, v14, v15")
    A("v_lshlrev_b32 v14, 11, v14"); A(f"v_lshl_add_u32 v{VD}, v15, 4, v14"); A(f"s_lshl_b32 s{SO}, s{T3}, 17")
    A(f"s_lshl_b32 s{M0T}, s{SWR}, 13")
    for k in range(1, 4): A(f"s_add_u32 s{M0T+k}, s{M0T}, {(k>>1)*32768 + (k&1)*4096}")
    A(f"s_and_b32 s{SKEY}, s{SIDX}, 15"); A(f"s_add_u32 s{SKEY}, s{SKEY}, 4")
    A(f"s_cmp_eq_u32 s{SWR}, 3"); A(f"s_cselect_b32 s{SKEY}, s{SKEY}, 0x10000")
    read_bases(A)
    xe = opt.get("xearly", 0)
    X = x_dma(opt, 0, 0) + x_dma(opt, 0, 1) + x_dma(opt, 1, 0)
    emit(A, X[:xe])
    zero_acc(A)
    A(f"s_waitcnt vmcnt({xe + (nt if opt.get('xwait', 1) else 2 * nt)})")
    st(2)
    emit(A, X[xe:])
    A("v_mov_b32 v20, 0")
    A(f"buffer_store_dword v20, v20, {S4(WS)}, s{T2} offen sc1")
    stats(A)
    st(3)
    A("s_waitcnt vmcnt(6)")
    A("s_barrier")
```

```python
from common import *
from p1 import acc, blocks, PW, VL16, SV, CV, cs_src, C0

VHS = 20
VHO = 21
VRC = 22
SHB = 48
PHQ = 224
SG = "v_mfma_f32_16x16x4_f32"

def cor(h, b, tb):
    d = vr(acc(b, tb), 4); c = cs_src(h, b); m = SV + 4 * tb
    if h == 0 and b in (2, 3): c, m = m, c
    return f"{SG} {d}, v{c}, v{m}, {d}"
def rT(tb): return acc(4, tb)
def rT_mfma(tb): return f"{SG} {vr(rT(tb),4)}, v{SV+4*tb+1}, v{VRC}, 0"

def gelu8(G, U, TB, T, D):
    A = Asm()
    for i in range(8): A(f"v_mul_f32 v{T+i}, v{G[i]}, v{G[i]}")
    for i in range(8): A(f"v_fma_f32 v{T+i}, v{T+i}, v{SV+4*TB[i]+2}, v{SV+4*TB[i]+1}")
    for i in range(8): A(f"v_mul_f32 v{T+i}, v{T+i}, v{G[i]}")
    for i in range(8):
        A(f"v_exp_f32 v{T+i}, v{T+i}"); A(f"v_mul_f32 v{G[i]}, v{G[i]}, v{U[i]}")
    for i in range(8): A(f"v_fma_f32 v{T+i}, v{T+i}, v{SV+4*TB[i]+3}, v{SV+4*TB[i]+3}")
    for i in range(8): A(f"v_rcp_f32 v{T+i}, v{T+i}")
    for i in range(8): A(f"v_mul_f32 v{G[i]}, v{G[i]}, v{T+i}")
    for r in range(4): A(f"v_cvt_pk_bf16_f32 v{D+r}, v{G[2*r]}, v{G[2*r+1]}")
    return A.lines

def gelus(A, h, opt):
    bl = blocks(h); ix = {k: i for i, k in enumerate(bl)}
    pairs = [(0, 1, 0)] if h == 0 else [(3, 4, 1), (5, 6, 2)]
    groups = []
    for ga, gb, t in pairs:
        for tb in range(4):
            B = [ix[("g", ga)], ix[("g", gb)], ix[("u", ga)], ix[("u", gb)]]
            G = [acc(B[0], tb) + i for i in range(4)] + [acc(B[1], tb) + i for i in range(4)]
            U = [acc(B[2], tb) + i for i in range(4)] + [acc(B[3], tb) + i for i in range(4)]
            pre = []
            if tb == 0:
                pre = [f"s_mul_i32 s{T0}, s{SNI}, {3*16384}", f"s_add_u32 s{T0}, s{T0}, s{SHB}"]
                if t: pre.append(f"s_add_u32 s{T0}, s{T0}, {t*16384}")
            groups.append(([cor(h, b, tb) for b in B], G, U, [tb] * 8, pre,
                           f"buffer_store_dwordx4 {vr(U[0],4)}, v{VHS}, {S4(WS)}, s{T0} offen offset:{tb*1024} sc1"))
    if h == 0:
        for tp in range(2):
            g = ix[("g", 2)]; u = ix[("u", 2)]
            G = [acc(g, 2 * tp) + i for i in range(8)]
            U = [acc(u, 2 * tp) + i for i in range(8)]
            pre = [f"s_lshl_b32 s{T0}, s{SNI}, 13", f"s_add_u32 s{T0}, s{T0}, s{SHB}", f"s_add_u32 s{T0}, s{T0}, {24*16384}"] if tp == 0 else []
            groups.append(([cor(h, b, 2 * tp + x) for b in (g, u) for x in range(2)], G, U, [2 * tp] * 4 + [2 * tp + 1] * 4, pre,
                           f"buffer_store_dwordx4 {vr(U[0],4)}, v{VHO}, {S4(WS)}, s{T0} offen offset:{tp*1024} sc1"))
    ex = {0: [cor(h, b, tb) for tb in (0, 1) for b in (0, 1)], 1: [cor(h, b, tb) for tb in (2, 3) for b in (0, 1)]}
    if h == 0:
        ex[2] = [cor(h, 2, tb) for tb in range(4)]; ex[3] = [cor(h, 3, tb) for tb in range(4)]
        ex[4] = [rT_mfma(tb) for tb in range(4)]
    for m in groups[0][0]: A(m)
    consts(A, h)
    gap = opt.get("ggap", 7)
    for n, (cs, G, U, TB, pre, store) in enumerate(groups):
        M = (list(groups[n + 1][0]) if n + 1 < len(groups) else []) + ex.get(n, [])
        for x in pre: A(x)
        for k, l in enumerate(gelu8(G, U, TB, (56, 88)[n & 1], U[0])):
            A(l)
            if M and k % gap == 1: A(M.pop(0))
        assert not M
        A(store)
        if n == 2: feat_a(A)
    if h == 0: v_cvt(A)
    for tb in range(4): A(f"v_mul_f32 v{SV+4*tb}, {hex(f2u(math.log2(math.e)/C0))}, v{SV+4*tb+1}")

def red8(A, R, op):
    for i in range(4):
        A(f"v_permlane32_swap_b32 v{R+i}, v{R+4+i}")
    for i in range(4):
        A(f"{op} v{R+i}, v{R+i}, v{R+4+i}")
    for i in range(2):
        A(f"v_permlane16_swap_b32 v{R+i}, v{R+2+i}")
    for i in range(2):
        A(f"{op} v{R+i}, v{R+i}, v{R+2+i}")
def bc8(A, R):
    for i in range(2): A(f"v_mov_b32 v{R+2+i}, v{R+i}")
    for i in range(2): A(f"v_permlane16_swap_b32 v{R+i}, v{R+2+i}")
    for i in range(4): A(f"v_mov_b32 v{R+4+i}, v{R+i}")
    for i in range(4): A(f"v_permlane32_swap_b32 v{R+i}, v{R+4+i}")

EP = 160
def feat_a(A):
    KB = 72
    for tb in range(4):
        for b in range(2):
            for r in range(2):
                A(f"v_cvt_pk_bf16_f32 v{KB+4*tb+2*b+r}, v{acc(b,tb)+2*r}, v{acc(b,tb)+2*r+1}")
    for tb in range(4):
        for fb in range(2):
            A(mfma(acc(fb, tb), PW + 4 * fb, KB + 4 * tb, "0"))
def P(tb, k): return acc(k >> 2, tb) + (k & 3)
def E(tb, k): return EP + tb * 8 + k
def feat_b(A):
    R = 64
    for tb in range(4):
        mx = R + 2 * tb; mn = mx + 1
        A(f"v_max3_f32 v{mx}, v{P(tb,0)}, v{P(tb,1)}, v{P(tb,2)}")
        A(f"v_max3_f32 v{mn}, -v{P(tb,0)}, -v{P(tb,1)}, -v{P(tb,2)}")
    for k in (3, 5):
        for tb in range(4):
            mx = R + 2 * tb; mn = mx + 1
            A(f"v_max3_f32 v{mx}, v{mx}, v{P(tb,k)}, v{P(tb,k+1)}")
            A(f"v_max3_f32 v{mn}, v{mn}, -v{P(tb,k)}, -v{P(tb,k+1)}")
    for tb in range(4):
        mx = R + 2 * tb; mn = mx + 1
        A(f"v_max_f32 v{mx}, v{mx}, v{P(tb,7)}")
        A(f"v_max_f32_e64 v{mn}, v{mn}, -v{P(tb,7)}")
    red8(A, R, "v_max_f32")
    bc8(A, R)
    for i in range(8): A(f"v_mul_f32_e64 v{R+i}, v{R+i}, -v{SV+4*(i>>1)}")
    for tb in range(4):
        for k in range(8):
            A(f"v_fma_f32 v{E(tb,k)}, v{P(tb,k)}, v{SV+4*tb}, v{R+2*tb}")
            A(f"v_fma_f32 v{P(tb,k)}, -v{P(tb,k)}, v{SV+4*tb}, v{R+2*tb+1}")
    for tb in range(4):
        for k in range(8):
            A(f"v_exp_f32 v{E(tb,k)}, v{E(tb,k)}")
            A(f"v_exp_f32 v{P(tb,k)}, v{P(tb,k)}")
            if tb > 0 and k > 0:
                t = tb - 1
                a0 = (E(t, 0), P(t, 0)) if k == 1 else (R + 2 * t, R + 2 * t + 1)
                A(f"v_add_f32 v{R+2*t}, v{a0[0]}, v{E(t,k)}"); A(f"v_add_f32 v{R+2*t+1}, v{a0[1]}, v{P(t,k)}")
    t = 3
    A(f"v_add_f32 v{R+6}, v{E(t,0)}, v{E(t,1)}"); A(f"v_add_f32 v{R+7}, v{P(t,0)}, v{P(t,1)}")
    A(f"v_add_f32 v56, v{E(t,2)}, v{E(t,3)}"); A(f"v_add_f32 v57, v{P(t,2)}, v{P(t,3)}")
    for k in (4, 6):
        A(f"v_add_f32 v{R+6}, v{R+6}, v{E(t,k)}"); A(f"v_add_f32 v{R+7}, v{R+7}, v{P(t,k)}")
        A(f"v_add_f32 v56, v56, v{E(t,k+1)}"); A(f"v_add_f32 v57, v57, v{P(t,k+1)}")
    A(f"v_add_f32 v{R+6}, v{R+6}, v56"); A(f"v_add_f32 v{R+7}, v{R+7}, v57")
def feat_c(A, PH, after_tb=None):
    R = 64
    red8(A, R, "v_add_f32")
    for i in range(2): A(f"v_rcp_f32 v{R+i}, v{R+i}")
    bc8(A, R)
    for tb in range(4):
        for k in range(8):
            A(f"v_mul_f32 v{E(tb,k)}, v{E(tb,k)}, v{R+2*tb}")
            A(f"v_mul_f32 v{P(tb,k)}, v{P(tb,k)}, v{R+2*tb+1}")
        for r in range(4): A(f"v_cvt_pk_bf16_f32 v{PH+8*tb+r}, v{E(tb,2*r)}, v{E(tb,2*r+1)}")
        for r in range(4): A(f"v_cvt_pk_bf16_f32 v{PH+8*tb+4+r}, v{P(tb,2*r)}, v{P(tb,2*r+1)}")
        if after_tb: after_tb(tb)

VID = 58; VONE = 88
def vb(db, tp): return 72 + 8 * db + 4 * tp
def k_consts(A):
    A("v_and_b32 v92, 15, v1"); A("v_lshrrev_b32 v93, 4, v1"); A("v_lshlrev_b32 v93, 2, v93"); A("v_sub_u32 v92, v92, v93")
    A("v_mov_b32 v93, 0x3f80"); A("v_mov_b32 v94, 0x3f800000")
    for r in range(2):
        d = VID + 2 + r
        A(f"v_cmp_eq_u32 vcc, {2*r}, v92"); A(f"v_cndmask_b32 v{d}, 0, v93, vcc")
        A(f"v_cmp_eq_u32 vcc, {2*r+1}, v92"); A(f"v_cndmask_b32 v{d}, v{d}, v94, vcc")
    for r in (0, 1, 4, 5): A(f"v_mov_b32 v{VID+r}, 0")
    for r in range(4): A(f"v_mov_b32 v{VONE+r}, 0x3f803f80")
def v_cvt(A):
    for db in range(2):
        for tb in range(4):
            for i in range(4): A(f"v_mul_f32 v{acc(2+db,tb)+i}, v{acc(2+db,tb)+i}, v{rT(tb)+i}")
        for tp in range(2):
            for r in range(4):
                s = acc(2 + db, 2 * tp) + 2 * r
                A(f"v_cvt_pk_bf16_f32 v{vb(db,tp)+r}, v{s}, v{s+1}")

TT = 192
def k_tail(A):
    PH = 24
    def T(tb, sg, fb): return TT + ((sg * 2 + fb) * 4 + tb) * 4
    def tr(tb):
        for sg in range(2):
            for fb in range(2):
                A(mfma(T(tb, sg, fb), PH + 8 * tb + 4 * sg, VID + 2 - 2 * fb, "0"))
    feat_c(A, PH, tr)
    PT = 128
    A(f"s_lshl_b32 s{T0}, s{SWR}, 13"); A(f"s_add_u32 s{T0}, s{T0}, {E_PART}"); A(f"v_add_u32 v92, s{T0}, v{VL16}")
    A(f"s_lshl_b32 s{T0}, s{SWR}, 8"); A(f"s_add_u32 s{T0}, s{T0}, {E_Z}"); A("v_lshrrev_b32 v93, 4, v1"); A(f"v_lshl_add_u32 v93, v93, 4, s{T0}")
    for tp in range(2):
        for z in range(4):
            for r in range(4):
                s = T(2 * tp, z >> 1, z & 1) + 2 * r
                A(f"v_cvt_pk_bf16_f32 v{PT + (z*2+tp)*4 + r}, v{s}, v{s+1}")
        for z in range(4):
            sg, fb = z >> 1, z & 1
            c = "0" if tp == 0 else None
            for db in range(2):
                A(mfma(96 + (sg * 4 + db * 2 + fb) * 4, PT + (z * 2 + tp) * 4, vb(db, tp), c))
            A(mfma(EP + 4 * z, PT + (z * 2 + tp) * 4, VONE, c))
    for s in (0, 2, 1, 3, 4, 6, 5, 7):
        A(f"ds_write_b128 v92, {vr(96+4*s,4)} offset:{s*1024}")
    A("s_mov_b32 exec_lo, 0x00010001"); A("s_mov_b32 exec_hi, 0x00010001")
    for z in range(4): A(f"ds_write_b128 v93, {vr(EP+4*z,4)} offset:{z*64}")
    A("s_mov_b64 exec, -1")

def reduce_publish(A, h, vm):
    R = 24
    A(f"s_lshl_b32 s{T0}, s{SW}, 10"); A(f"v_add_u32 v60, s{T0}, v{VL16}"); A(f"v_add_u32 v61, {E_PART}, v60")
    for p in range(4): A(f"ds_read_b128 {vr(R+4*p,4)}, v61 offset:{p*8192}")
    A(f"s_lshl_b32 s{T0}, s{SJ}, 3"); A(f"s_add_u32 s{T0}, s{T0}, s{SMI}"); A(f"s_mul_i32 s{T0}, s{T0}, {KVS}"); A(f"s_add_u32 s{T0}, s{T0}, {KVP}")
    if h == 1:
        A(f"s_cmp_lg_u32 s{SW}, 7"); A("s_cbranch_scc1 L2_noz")
        A("v_lshlrev_b32 v62, 2, v1"); A(f"v_add_u32 v63, {E_Z}, v62")
        for p in range(4): A(f"ds_read_b32 v{40+p}, v63 offset:{p*256}")
        A(f"s_add_u32 s{T1}, s{T0}, 8192")
        A("s_waitcnt lgkmcnt(0)")
        A("v_add_f32 v40, v40, v41"); A("v_add_f32 v42, v42, v43"); A("v_add_f32 v40, v40, v42")
        A(f"buffer_store_dword v40, v62, {S4(WS)}, s{T1} offen sc1")
        A.label("L2_noz")
    A("s_waitcnt lgkmcnt(0)")
    for i in range(4):
        A(f"v_add_f32 v{R+i}, v{R+i}, v{R+4+i}"); A(f"v_add_f32 v{R+8+i}, v{R+8+i}, v{R+12+i}")
    for i in range(4): A(f"v_add_f32 v{R+i}, v{R+i}, v{R+8+i}")
    A(f"buffer_store_dwordx4 {vr(R,4)}, v60, {S4(WS)}, s{T0} offen sc1"); vm.add("kvp")

def consts(A, h):
    A(f"s_lshl_b32 s{T0}, s{SWR}, 12"); A(f"v_add_u32 v{VHS}, s{T0}, v{VL16}")
    A(f"s_lshl_b32 s{T0}, s{SWR}, 11"); A(f"v_add_u32 v{VHO}, s{T0}, v{VL16}")
    if h == 0:
        A(f"v_mov_b32 v{VRC}, {hex(f2u(1.0/C0))}"); A("v_cmp_gt_u32 vcc, 16, v1"); A(f"v_cndmask_b32 v{VRC}, 0, v{VRC}, vcc")

def epilogue(A, h, opt, st, vm, hk):
    A("s_waitcnt lgkmcnt(0)")
    gelus(A, h, opt)
    st(6)
    if h == 0: k_consts(A)
    feat_b(A)
    A("s_waitcnt vmcnt(0)"); vm.clear()
    A("s_barrier")
    st(7)
    signal(A, "h", 0, 94, 95)
    hk["after_bh"](A)
    if h == 0: k_tail(A)
    else: feat_c(A, PHQ)
    hk["poll_h"](A)
    A("s_waitcnt lgkmcnt(0)")
    A("s_barrier")
    st(8)
    reduce_publish(A, h, vm)
```

```python
from common import *
import p1
from p1 import VL16, emit
from p2 import SHB, PHQ, VHS, VHO

class VM:
    def __init__(self): self.q = []
    def add(self, tag): self.q.append(tag)
    def clear(self): self.q = []
    def n(self, *tags):
        idx = [i for i, t in enumerate(self.q) if t in tags]
        if not idx: return None
        return min(63, len(self.q) - 1 - max(idx))
    def copy(self):
        v = VM(); v.q = list(self.q); return v

def acc(tbi, cbi): return 96 + (tbi * 4 + cbi) * 4
def af(st, c): return 24 + st * 32 + c * 4
def bf(st, t): return 24 + st * 32 + 16 + t * 4
VB = 2; VB2 = 4; VW = 6; VDW = 10; VDW2 = 11; VDA = 12; VO4 = 14; VOD = 16
VPD = 88; VPA = 89; VS0 = 90; VS1 = 91; VTO = 92; VTDD = 93; VOUT = 94
TW = 32; TA = 40
SW2B = 49; SM0A = 50; SM0W = 51
SU = 56; SOB = 57; SWOB = 58; SODW = 59; SXB = 60; SOUT = 61; SD0 = 62; SD1 = 63
NS = 44
TOFF = [0, 48, 80]

def pre_last():
    A = Asm()
    A(f"s_mul_i32 s{SW2B}, s{SKS}, {896*2048}"); A(f"s_lshl_b32 s{T0}, s{SNI}, 8"); A(f"s_add_u32 s{SW2B}, s{SW2B}, s{T0}")
    A(f"s_lshl_b32 s{SHB}, s{SKS}, 3"); A(f"s_add_u32 s{SHB}, s{SHB}, s{SMI}"); A(f"s_mul_i32 s{SHB}, s{SHB}, {28*16384}"); A(f"s_add_u32 s{SHB}, s{SHB}, {HACT}")
    for n in range(8):
        A(f"s_add_u32 s{T0}, s{SNI}, {n}"); A(f"s_and_b32 s{T0}, s{T0}, 7")
        A(f"s_mul_i32 s{TW+n}, s{T0}, {112*2048}"); A(f"s_add_u32 s{TW+n}, s{TW+n}, s{SW2B}")
        A(f"s_mul_i32 s{TA+n}, s{T0}, {3*16384}"); A(f"s_add_u32 s{TA+n}, s{TA+n}, s{SHB}")
    A(f"s_lshl_b32 s{SM0A}, s{SW}, 11"); A(f"s_lshl_b32 s{SM0W}, s{SW}, 10"); A(f"s_add_u32 s{SM0W}, s{SM0W}, {W2B}")
    A(f"s_lshl_b32 s{T0}, s{SW}, 2"); A("v_lshrrev_b32 v20, 4, v1"); A(f"v_add_u32 v20, s{T0}, v20")
    A("v_and_b32 v21, 7, v20"); A("v_lshlrev_b32 v21, 1, v21"); A("v_and_b32 v22, 15, v1"); A("v_xor_b32 v21, v21, v22")
    A("v_lshlrev_b32 v20, 11, v20"); A(f"v_lshl_add_u32 v{VDW}, v21, 4, v20")
    A("v_lshrrev_b32 v22, 3, v21"); A("v_lshl_add_u32 v20, v22, 16, v20"); A("v_and_b32 v21, 7, v21"); A(f"v_lshl_add_u32 v{VDW2}, v21, 4, v20")
    A("v_lshrrev_b32 v20, 3, v1"); A("v_and_b32 v21, 7, v1"); A("v_lshlrev_b32 v21, 7, v21"); A("v_lshl_add_u32 v21, v20, 11, v21")
    A(f"v_mov_b32 v22, {OOB}"); A("v_cmp_gt_u32 vcc, 7, v20"); A("v_cndmask_b32 v8, v22, v21, vcc")
    A(f"s_lshl_b32 s{T0}, s{SKS}, 5"); A(f"s_add_u32 s{T0}, s{T0}, s{SIDX}"); A(f"s_lshl_b32 s{T0}, s{T0}, 2"); A(f"s_add_u32 s{T0}, s{T0}, s{SWR}")
    A(f"s_mul_i32 s{T0}, s{T0}, {7*2048}"); A(f"s_and_b32 s{T1}, s{SXCD}, 1"); A(f"s_lshl_b32 s{T1}, s{T1}, 10"); A(f"s_add_u32 s{T6}, s{T0}, s{T1}")
    A("v_lshlrev_b32 v9, 2, v1")
    A("v_lshrrev_b32 v20, 2, v1"); A("v_lshlrev_b32 v20, 6, v20"); A("v_and_b32 v21, 3, v1"); A("v_lshl_add_u32 v20, v21, 3, v20")
    A(f"v_add_u32 v{p1.VPA}, {PB}, v20")
    A(f"s_lshl_b32 s{T5}, s{SWR}, 10"); A(f"s_add_u32 s{T5}, s{T5}, {STB}")
    A("v_and_b32 v20, 15, v1"); A(f"v_lshl_add_u32 v{p1.VSA}, v20, 4, s{T5}")
    return A.lines
def dbg_load():
    return [([], f"buffer_load_dword v20, v9, {S4(DBG)}, 0 offen sc1", [])]
def t2(opt):
    return [([], f"buffer_load_dword v8, v8, {S4(WD)}, s{T6} offen", [])] if opt["touch"] else []
def dbgcheck(A):
    A(f"s_mov_b32 s{T0}, 0x01010101")
    spin(A, 20, 9, DBG, "0", f"s{T0}", first_loaded=True)
    A(f"s_mov_b32 m0, s{T5}")
    A(f"s_lshl_b32 s{T0}, s{SMI}, 2"); A(f"s_add_u32 s{T0}, s{T0}, s{SWR}"); A(f"s_lshl_b32 s{T0}, s{T0}, 10"); A(f"s_add_u32 s{T0}, s{T0}, {STAT}")
    A(f"buffer_load_dwordx4 v{VL16}, {S4(WS)}, s{T0} offen sc1 lds")

def w_dma(s):
    sl = s % 6
    m0 = f"s_add_u32 m0, s{SM0W}, {sl*8192}"
    if s < 24:
        n, t = divmod(s, 3)
        return ([m0, f"s_add_u32 s{SD1}, s{TW+n}, {TOFF[t]*2048}"], f"buffer_load_dwordx4 v{VDW}, {S4(WD)}, s{SD1} offen lds", [])
    if s < 28:
        return ([m0, f"s_add_u32 s{SD1}, s{SA}, {s-24}", f"s_and_b32 s{SD1}, s{SD1}, 3", f"s_mul_i32 s{SD1}, s{SD1}, {224*2048}", f"s_add_u32 s{SD1}, s{SD1}, s{SODW}"],
                f"buffer_load_dwordx4 v{VDW}, {S4(WD)}, s{SD1} offen lds", [])
    return ([m0, f"s_lshl2_add_u32 s{SD1}, s{SU}, s{SWOB}"], f"buffer_load_dwordx4 v{VDW2}, {S4(WO)}, s{SD1} offen lds",
            [f"s_add_u32 s{SU}, s{SU}, 32768", f"s_and_b32 s{SU}, s{SU}, 0x7ffff"])
def a_dma(s):
    sl = s % 6
    m0 = f"s_add_u32 m0, s{SM0A}, {sl*16384}"
    v = VDA
    if s < 24:
        n, t = divmod(s, 3)
        pre = [m0, f"s_add_u32 s{SD0}, s{TA+n}, {t*16384}"]
    elif s < 28:
        pre = [m0, f"s_add_u32 s{SD0}, s{SA}, {s-24}", f"s_and_b32 s{SD0}, s{SD0}, 3", f"s_lshl_b32 s{SD0}, s{SD0}, 14", f"s_add_u32 s{SD0}, s{SD0}, s{SHB}",
               f"s_add_u32 s{SD0}, s{SD0}, {24*16384}"]
    else:
        pre = [m0, f"s_add_u32 s{SD0}, s{SU}, s{SOB}"]; v = VL16
    return [(pre, f"buffer_load_dwordx4 v{v}, {S4(WS)}, s{SD0} offen sc1 lds", []),
            ([], f"buffer_load_dwordx4 v{v}, {S4(WS)}, s{SD0} offen offset:1024 sc1 lds", [])]

def reads(s):
    st = s & 1; sl = s % 6
    def wr(c, sec): return f"ds_read_b64_tr_b16 {vr(af(st,c)+2*sec,2)}, v{VW+c} offset:{sl*8192 + sec*4096}"
    if s < 24:
        def br(t): return f"ds_read_b128 {vr(bf(st,t),4)}, v{(VB if sl < 4 else VB2) + (t>>1)} offset:{(sl & 3)*16384 + (t&1)*1024}"
    elif s < 28:
        def br(t): return f"ds_read2st64_b64 {vr(bf(st,t),4)}, v{VOD+t} offset0:{sl*32} offset1:{sl*32+16}"
    else:
        def br(t): return f"ds_read_b128 {vr(bf(st,t),4)}, v{VO4 + (sl >> 2)} offset:{(sl & 3)*16384 + (t>>1)*8192 + (t&1)*1024}"
    return [br(0), wr(0, 0), wr(0, 1), wr(1, 0), wr(1, 1), br(1), wr(2, 0), wr(2, 1), br(2), wr(3, 0), wr(3, 1), br(3)]

def mfmas(s):
    st = s & 1
    if s < 28:
        order = [(0, 0), (0, 1), (1, 0), (1, 1), (0, 2), (1, 2), (2, 0), (2, 1), (2, 2), (0, 3), (1, 3), (2, 3), (3, 0), (3, 1), (3, 2), (3, 3)]
        return [mfma(acc(t, c), af(st, c), bf(st, t), "0" if s == 0 else None) for t, c in order]
    return [mfma(acc(t, c), af(st, 2 * x + c), bf(st, 2 * x + t)) for x in range(2) for t in range(2) for c in range(2)]

def after_bh(vm):
    def f(A):
        A(f"v_add_u32 v{VDA}, s{SM0A}, v{VL16}")
        for s in range(3):
            emit(A, a_dma(s)); vm.add(f"d{s}"); vm.add(f"d{s}")
        for u in range(2):
            A(f"s_xor_b32 s{T0}, s{SKSH}, {u}"); A(f"s_lshl_b32 s{T1}, s{T0}, 11"); A(f"v_add_u32 v{VB+u}, s{T1}, v{VHS}")
            A(f"v_add_u32 v{VB2+u}, 0x10000, v{VB+u}")
            A(f"s_lshl_b32 s{T1}, s{T0}, 10"); A(f"v_add_u32 v{VOD+2*u}, s{T1}, v{VHO}"); A(f"v_add_u32 v{VOD+2*u+1}, 8, v{VOD+2*u}")
        A("v_lshrrev_b32 v14, 2, v1"); A("v_and_b32 v15, 3, v1"); A("v_lshlrev_b32 v15, 3, v15"); A("v_lshl_add_u32 v15, v14, 8, v15")
        A(f"v_add_u32 v15, {W2B}, v15"); A("v_and_b32 v14, 7, v14")
        A(f"s_lshr_b32 s{T2}, s{SW}, 2")
        for c in range(4):
            A(f"s_xor_b32 s{T0}, s{SKSL}, {c>>1}"); A(f"s_lshl_b32 s{T0}, s{T0}, 1"); A(f"s_add_u32 s{T0}, s{T0}, s{T2}"); A(f"s_lshl_b32 s{T0}, s{T0}, 1")
            if c & 1: A(f"s_add_u32 s{T0}, s{T0}, 1")
            A(f"v_xor_b32 v{VW+c}, s{T0}, v14"); A(f"v_lshl_add_u32 v{VW+c}, v{VW+c}, 5, v15")
        A(f"v_mov_b32 v{VO4}, v{VHO}"); A(f"v_add_u32 v{VO4+1}, 0x10000, v{VHO}")
        A(f"s_mul_i32 s{SODW}, s{T2}, {96*2048}"); A(f"s_add_u32 s{SODW}, s{SODW}, s{SW2B}"); A(f"s_add_u32 s{SODW}, s{SODW}, {32*2048}")
        A(f"s_lshl_b32 s{SU}, s{SA}, 17")
        A(f"s_xor_b32 s{T0}, s{T2}, s{SKSL}"); A(f"s_lshl_b32 s{T1}, s{SMI}, 5"); A(f"s_add_u32 s{T0}, s{T0}, s{T1}"); A(f"s_lshl_b32 s{T0}, s{T0}, 14")
        A(f"s_lshl_b32 s{T1}, s{SWR}, 1"); A(f"s_add_u32 s{T1}, s{T1}, s{SKSH}"); A(f"s_lshl_b32 s{T3}, s{T1}, 11")
        A(f"s_add_u32 s{SOB}, s{T0}, s{T3}"); A(f"s_add_u32 s{SOB}, s{SOB}, {OACT}")
        A(f"s_lshl_b32 s{SWOB}, s{SNI}, 1"); A(f"s_add_u32 s{SWOB}, s{SWOB}, s{SKSL}"); A(f"s_lshl_b32 s{SWOB}, s{SWOB}, 7")
        A(f"s_lshl_b32 s{T0}, s{SMI}, 3"); A(f"s_add_u32 s{T1}, s{T1}, s{T0}"); A(f"s_lshl_b32 s{SOUT}, s{T1}, 16")
        A(f"s_add_u32 s{SOUT}, s{SOUT}, s{SWOB}"); A(f"s_lshl_b32 s{T2}, s{T2}, 6"); A(f"s_add_u32 s{SOUT}, s{SOUT}, s{T2}")
        A(f"s_add_u32 s{T0}, s{T0}, s{SNI}"); A(f"s_mul_i32 s{SXB}, s{T0}, {12*16384}"); A(f"s_add_u32 s{SXB}, s{SXB}, {XCH}")
    return f

SPL = 64
def poll_issue(A, vm, kind):
    line_off(A, SPL, kind)
    A(f"v_and_b32 v{VPA}, {NFL[kind]-1}, v1"); A(f"v_lshlrev_b32 v{VPA}, 2, v{VPA}")
    A(f"buffer_load_dword v{VPD}, v{VPA}, {S4(WS)}, s{SPL} offen sc1"); vm.add("poll")
def poll_check(A, vm):
    A(f"s_waitcnt vmcnt({vm.n('poll')})")
    spin(A, VPD, VPA, WS, f"s{SPL}", "1", first_loaded=True)

G = 160; GZ = 192
def gather_issue(A, vm):
    A(f"s_mul_i32 s{T0}, s{SJ}, {8*KVS}"); A(f"s_add_u32 s{T0}, s{T0}, {KVP}")
    A(f"s_cmp_lg_u32 s{SW}, 0"); A("s_cbranch_scc1 L3_noz1")
    A(f"v_lshlrev_b32 v{VS0}, 2, v1")
    for p in range(8):
        A(f"s_add_u32 s{T1}, s{T0}, {p*KVS + 8192}")
        A(f"buffer_load_dword v{GZ+p}, v{VS0}, {S4(WS)}, s{T1} offen sc1")
    A.label("L3_noz1")
    A(f"s_lshl_b32 s{T1}, s{SW}, 10"); A(f"s_add_u32 s{T0}, s{T0}, s{T1}")
    for p in range(8):
        A(f"buffer_load_dwordx4 {vr(G+4*p,4)}, v{VL16}, {S4(WS)}, s{T0} offen sc1"); vm.add("g")
        if p < 7: A(f"s_add_u32 s{T0}, s{T0}, {KVS}")
def gather_sum(A, vm):
    A(f"s_waitcnt vmcnt({vm.n('g')})")
    for st in (16, 8, 4):
        for i in range(st): A(f"v_add_f32 v{G+i}, v{G+i}, v{G+st+i}")
    A(f"v_cvt_pk_bf16_f32 v{G}, v{G}, v{G+1}"); A(f"v_cvt_pk_bf16_f32 v{G+1}, v{G+2}, v{G+3}")
    A(f"s_lshr_b32 s{T0}, s{SW}, 1"); A(f"s_lshl_b32 s{T0}, s{T0}, 10"); A(f"s_and_b32 s{T1}, s{SW}, 1"); A(f"s_lshl_b32 s{T1}, s{T1}, 3")
    A(f"s_add_u32 s{T0}, s{T0}, s{T1}"); A(f"s_add_u32 s{T0}, s{T0}, {E_KVF}")
    A(f"v_add_u32 v{VS0}, s{T0}, v{VL16}")
    A(f"ds_write_b64 v{VS0}, {vr(G,2)}")
    A(f"s_cmp_lg_u32 s{SW}, 0"); A("s_cbranch_scc1 L3_noz2")
    for st in (4, 2, 1):
        for i in range(st): A(f"v_add_f32 v{GZ+i}, v{GZ+i}, v{GZ+st+i}")
    A(f"v_cvt_pk_bf16_f32 v{GZ}, v{GZ}, v{GZ}")
    A(f"v_lshlrev_b32 v{VS0}, 1, v1"); A(f"v_add_u32 v{VS0}, {E_ZF}, v{VS0}")
    A(f"ds_write_b16 v{VS0}, v{GZ}")
    A.label("L3_noz2")
def o_compute(A):
    A(f"s_cmp_lt_u32 s{SW}, 4"); A("s_cbranch_scc1 L3_noo")
    KA = 160; ZA = 176; N = 184
    A(f"v_add_u32 v{VS0}, {E_KVF}, v{VL16}")
    A(f"v_lshrrev_b32 v{VS1}, 4, v1"); A(f"v_lshlrev_b32 v{VS1}, 3, v{VS1}"); A(f"v_add_u32 v{VS1}, {E_ZF}, v{VS1}")
    for c in range(4): A(f"ds_read_b128 {vr(KA+4*c,4)}, v{VS0} offset:{c*1024}")
    for sg in range(2):
        for sec in range(2): A(f"ds_read_b64 {vr(ZA+4*sg+2*sec,2)}, v{VS1} offset:{sg*64 + sec*32}")
    A(f"s_lshl_b32 s{T0}, s{SMI}, 5"); A(f"s_add_u32 s{T0}, s{T0}, s{SJ}"); A(f"s_lshl_b32 s{T0}, s{T0}, 14"); A(f"s_add_u32 s{T0}, s{T0}, {OACT}")
    A("s_waitcnt lgkmcnt(0)")
    for tb in range(4):
        for db in range(2):
            for sg in range(2):
                A(mfma(N + 8 * tb + 4 * db, KA + 4 * (sg * 2 + db), PHQ + 8 * tb + 4 * sg, "0" if sg == 0 else None))
    D = 160
    for tb in range(4):
        for sg in range(2):
            A(mfma(D + 4 * tb, ZA + 4 * sg, PHQ + 8 * tb + 4 * sg, "0" if sg == 0 else None))
    for tb in range(4): A(f"v_add_f32 v{D+4*tb}, {hex(f2u(1e-6))}, v{D+4*tb}")
    for tb in range(4): A(f"v_rcp_f32 v{D+4*tb}, v{D+4*tb}")
    for tb in range(4):
        for i in range(8): A(f"v_mul_f32 v{N+8*tb+i}, v{N+8*tb+i}, v{D+4*tb}")
        for r in range(4): A(f"v_cvt_pk_bf16_f32 v{N+8*tb+r}, v{N+8*tb+2*r}, v{N+8*tb+2*r+1}")
        A(f"buffer_store_dwordx4 {vr(N+8*tb,4)}, v{VHS}, {S4(WS)}, s{T0} offen offset:{tb*1024} sc1")
    A.label("L3_noo")
def wo_touch(A, vm):
    A(f"v_lshrrev_b32 v{VS0}, 2, v1"); A(f"v_and_b32 v{VTO}, 3, v1"); A(f"v_lshlrev_b32 v{VTO}, 8, v{VTO}"); A(f"v_lshl_add_u32 v{VTO}, v{VS0}, 11, v{VTO}")
    A(f"v_mov_b32 v{VS1}, {OOB}"); A(f"v_cmp_gt_u32 vcc, 4, v{VS0}"); A(f"v_cndmask_b32 v{VTO}, v{VS1}, v{VTO}, vcc")
    A(f"s_lshl_b32 s{T0}, s{SIDX}, 3"); A(f"s_add_u32 s{T0}, s{T0}, s{SW}"); A(f"s_lshl_b32 s{T0}, s{T0}, 13")
    A(f"s_and_b32 s{T1}, s{SWOB}, 0x480"); A(f"s_add_u32 s{T0}, s{T0}, s{T1}")
    A(f"buffer_load_dword v{VTDD}, v{VTO}, {S4(WO)}, s{T0} offen"); vm.add("t")
XR = 160; XX = 184
def xch_send(A, vm):
    for b in range(1, 4):
        u, v = b >> 1, b & 1
        A(f"s_xor_b32 s{T0}, s{SKS}, {b}"); A(f"s_mul_i32 s{T0}, s{T0}, {3*16384}"); A(f"s_add_u32 s{T0}, s{T0}, s{SXB}")
        if b > 1: A(f"s_add_u32 s{T0}, s{T0}, {(b-1)*16384}")
        for t in range(2):
            Pp = acc(2 * u + t, 2 * v)
            for r in range(4): A(f"v_cvt_pk_bf16_f32 v{Pp+r}, v{Pp+2*r}, v{Pp+2*r+1}")
            A(f"buffer_store_dwordx4 {vr(Pp,4)}, v{VDA}, {S4(WS)}, s{T0} offen offset:{t*1024} sc1"); vm.add("xs")
def xch_recv(A, vm):
    A(f"s_mul_i32 s{T0}, s{SKS}, {3*16384}"); A(f"s_add_u32 s{T0}, s{T0}, s{SXB}")
    for b in range(3):
        for t in range(2):
            A(f"buffer_load_dwordx4 {vr(XR+8*b+4*t,4)}, v{VDA}, {S4(WS)}, s{T0} offen offset:{t*1024} sc1"); vm.add("xr")
        if b < 2: A(f"s_add_u32 s{T0}, s{T0}, 16384")
def x_load(A, vm):
    A(f"v_and_b32 v{VOUT}, 15, v1"); A(f"v_lshlrev_b32 v{VOUT}, 11, v{VOUT}")
    A(f"v_bfe_u32 v{VS0}, v1, 4, 1"); A(f"v_lshl_add_u32 v{VOUT}, v{VS0}, 5, v{VOUT}")
    A(f"v_lshrrev_b32 v{VS0}, 5, v1"); A(f"v_lshl_add_u32 v{VOUT}, v{VS0}, 4, v{VOUT}")
    A(f"s_add_u32 s{SOUT+4}, s{SOUT}, 32768")
    for t in range(2):
        A(f"buffer_load_dwordx4 {vr(XX+4*t,4)}, v{VOUT}, {S4(XS)}, s{SOUT+4*t} offen"); vm.add("xr")
def final(A, vm):
    A(f"s_mov_b32 s{T0}, 0xffff0000")
    A("s_waitcnt vmcnt(0)")
    for t in range(2):
        for r in range(2): A(f"v_permlane16_swap_b32 v{XX+4*t+r}, v{XX+4*t+2+r}")
    Fv = 192
    for t in range(2):
        for r in range(4):
            lo = Fv + 8 * t + 2 * r; hi = lo + 1
            A(f"v_lshlrev_b32 v{lo}, 16, v{XX+4*t+r}"); A(f"v_and_b32 v{hi}, s{T0}, v{XX+4*t+r}")
    for b in range(3):
        for t in range(2):
            for r in range(4):
                s = XR + 8 * b + 4 * t + r; lo = Fv + 8 * t + 2 * r; hi = lo + 1
                A(f"v_lshlrev_b32 v{208+(r&1)*2}, 16, v{s}"); A(f"v_and_b32 v{209+(r&1)*2}, s{T0}, v{s}")
                A(f"v_add_f32 v{lo}, v{lo}, v{208+(r&1)*2}"); A(f"v_add_f32 v{hi}, v{hi}, v{209+(r&1)*2}")
def final2(A):
    Fv = 192
    for t in range(2):
        Pp = acc(t, 0)
        for i in range(8): A(f"v_add_f32 v{Pp+i}, v{Pp+i}, v{Fv+8*t+i}")
        for r in range(4): A(f"v_cvt_pk_bf16_f32 v{Pp+r}, v{Pp+2*r}, v{Pp+2*r+1}")
        for r in range(2): A(f"v_permlane16_swap_b32 v{Pp+r}, v{Pp+2+r}")
        A(f"buffer_store_dwordx4 {vr(Pp,4)}, v{VOUT}, {S4(OUT)}, s{SOUT+4*t} offen")

def gemm2(A, opt, st, vm):
    poll_check(A, vm)
    st(9)
    emit(A, a_dma(3)); vm.add("d3"); vm.add("d3")
    A(f"s_waitcnt vmcnt({vm.n('d0')}) lgkmcnt(0)"); A("s_barrier")
    for r in reads(0): A(r)
    for s in (4, 5):
        emit(A, a_dma(s)); vm.add(f"d{s}"); vm.add(f"d{s}")
    H = dict(kvsig=2, kvpoll=5, kvget=8, wot=10, kvsum=11, o=12, osig=15, opoll=18, ochk=21, xsig=32, xpoll=35, xget=38)
    for k in H:
        if k in opt: H[k] = opt[k]
    for s in range(NS):
        if s == 28: st(10)
        tags = [f"d{s+1}"]
        if s == H["kvsig"]: tags.append("kvp")
        if s == H["osig"]: tags.append("omark")
        if s == H["xsig"]: tags.append("xs")
        n = vm.n(*tags)
        if s == NS - 1:
            A("s_waitcnt lgkmcnt(0)")
        else:
            A(f"s_waitcnt vmcnt({n}) lgkmcnt(0)"); A("s_barrier")
        if opt.get("st") == 2: st(14 + s)
        M = mfmas(s)
        rd = reads(s + 1) if s + 1 < NS else []
        dm = a_dma(s + 6) + [w_dma(s + 6)] if s + 6 < NS else []
        nm = len(M)
        per = [1] * 12 + [0] * 4 if nm == 16 else [2, 2, 2, 2, 2, 2, 0, 0]
        dpos = {11: 0, 13: 1, 15: 2} if nm == 16 else {5: 0, 6: 1, 7: 2}
        for i, m in enumerate(M):
            if dm and i in dpos:
                for p in dm[dpos[i]][0]: A(p)
            A(m)
            for _ in range(per[i]):
                if rd: A(rd.pop(0))
            if dm and i in dpos:
                A(dm[dpos[i]][1])
                vm.add("omark" if (s == H["o"] + 1 and dpos[i] == 0) else f"d{s+6}")
                for p in dm[dpos[i]][2]: A(p)
        assert not rd
        if s == H["kvsig"]: signal(A, "kv", 1, VS0, VS1)
        if s == H["kvpoll"]: poll_issue(A, vm, "kv")
        if s == H["kvget"]: poll_check(A, vm); gather_issue(A, vm)
        if s == H["wot"] and opt["touch"]: wo_touch(A, vm)
        if s == H["kvsum"]: gather_sum(A, vm)
        if s == H["o"]: o_compute(A)
        if s == H["osig"]: signal(A, "o", 2, VS0, VS1)
        if s == H["opoll"]: poll_issue(A, vm, "o")
        if s == H["ochk"]: poll_check(A, vm)
        if s == 28: xch_send(A, vm)
        if s == H["xsig"]: signal(A, "x", 3, VS0, VS1)
        if s == H["xpoll"]: poll_issue(A, vm, "x"); x_load(A, vm)
        if s == H["xget"]: poll_check(A, vm); xch_recv(A, vm)
        if s == NS - 2: st(11); final(A, vm)
    final2(A)
```

```python
from common import *
import p1, p2, p3

def kernel(opt):
    A = Asm(); O = Asm(); lab = NAME + "_kernel"
    st = Stamper(A, opt.get("st", 0))
    header(A, lab)
    p1.entry(A, st)
    A(f"s_cmp_ge_u32 s{SW}, 4"); A("s_cbranch_scc1 L0_x")
    vms = []
    for h in range(2):
        if h == 0: p1.w_setup(A, opt, st)
        else:
            A.label("L0_x"); st.last = 1
            p1.x_setup(A, opt, st)
            if opt.get("prio"): A("s_setprio 1")
        st(4)
        for r in p1.next_reads(h, 0): A(r)
        A("s_waitcnt lgkmcnt(0)")
        vm = p3.VM()
        hooks = dict(pre_last=p3.pre_last(), t2=p3.t2(opt), dbg=p3.dbg_load(), dbgcheck=p3.dbgcheck, w2=[p3.w_dma(s) for s in range(6)])
        p1.mainloop(A, O, h, opt, hooks)
        st(5)
        hk = dict(after_bh=p3.after_bh(vm), poll_h=lambda A: p3.poll_issue(A, vm, "h"))
        p2.epilogue(A, h, opt, st, vm, hk)
        vms.append(vm)
        if h == 0: A("s_branch L3_start")
    assert vms[0].q == vms[1].q
    A.label("L3_start")
    p3.gemm2(A, opt, st, vms[0])
    st(12); st(13, True); st.out(14)
    A.label("L_end")
    A("s_endpgm")
    return lab, A.lines + O.lines

def build(path, opt):
    lab, lines = kernel(opt)
    lines, tot = pad(lines, opt.get("v", 0))
    print(f"{len(lines)} lines, {tot} pad states, lds {LDS_BYTES}")
    txt = f"; @launch grid=(256,1,1) block=(512,1,1) lds={LDS_BYTES}\n" + '.amdgcn_target "amdgcn-amd-amdhsa--gfx950"\n.text\n'
    for l in lines:
        txt += (l if (l.endswith(":") or l.startswith(".")) else "    " + l) + "\n"
    txt += '.section .rodata,"a"\n' + desc(lab, 256, 102)
    open(path, "w").write(txt)

if __name__ == "__main__":
    opt = dict(touch=1)
    for a in sys.argv[2:]:
        k, v = a.split("="); opt[k] = int(v)
    build(sys.argv[1], opt)
```

```python
import re

class Asm:
    def __init__(self):
        self.lines = []
    def __call__(self, s):
        for l in s.split("\n"):
            l = l.strip()
            if l:
                self.lines.append(l)
    def label(self, n):
        self.lines.append(n + ":")
    def c(self, s):
        self.lines.append("; " + s)

def vr(a, n=1):
    return f"v{a}" if n == 1 else f"v[{a}:{a+n-1}]"
def sr(a, n=1):
    return f"s{a}" if n == 1 else f"s[{a}:{a+n-1}]"

_reg = re.compile(r"^(-|abs\(|\|)?\s*([vsa])(\d+)\)?\|?$")
_rng = re.compile(r"^(-|abs\(|\|)?\s*([vsa])\[(\d+):(\d+)\]\)?\|?$")

def regs_of(op):
    op = op.strip()
    m = _reg.match(op)
    if m:
        return {(m.group(2), int(m.group(3)))}
    m = _rng.match(op)
    if m:
        return {(m.group(2), i) for i in range(int(m.group(3)), int(m.group(4)) + 1)}
    if op == "vcc":
        return {("s", "vcc_lo"), ("s", "vcc_hi")}
    if op in ("vcc_lo", "vcc_hi"):
        return {("s", op)}
    if op == "exec":
        return {("s", "exec_lo"), ("s", "exec_hi")}
    if op in ("exec_lo", "exec_hi"):
        return {("s", op)}
    if op == "m0":
        return {("s", "m0")}
    return set()

TRANS = ("v_exp_f32", "v_log_f32", "v_rcp_f32", "v_rsq_f32", "v_sqrt_f32", "v_sin_f32", "v_cos_f32", "v_rcp_iflag_f32")
VCC = {("s", "vcc_lo"), ("s", "vcc_hi")}
EXEC = {("s", "exec_lo"), ("s", "exec_hi")}

class Ins:
    def __init__(self, text):
        self.text = text
        t = text.split(";")[0].strip()
        self.label = t[:-1] if t.endswith(":") else None
        self.op = None
        self.kind = None
        self.w = set(); self.r = set()
        self.states = 0
        if self.label or not t or t.startswith("."):
            return
        parts = t.split(None, 1)
        op = parts[0]
        self.op = op
        rest = parts[1] if len(parts) > 1 else ""
        ops = []; cur = ""; d = 0
        for ch in rest:
            if ch == "[": d += 1
            if ch == "]": d -= 1
            if ch == "," and d == 0:
                ops.append(cur.strip()); cur = ""
            else:
                cur += ch
        if cur.strip(): ops.append(cur.strip())
        mods = ""
        if ops:
            last = ops[-1].split(None, 1)
            ops[-1] = last[0]
            mods = last[1] if len(last) > 1 else ""
        self.ops = ops; self.mods = mods
        self.states = 1
        R = regs_of
        if op == "s_nop":
            self.kind = "nop"; self.states = int(ops[0], 0) + 1
        elif op.startswith("v_smfmac"):
            self.kind = "mfma"
            self.w = R(ops[0]); self.A = R(ops[1]) | R(ops[3]); self.B = R(ops[2]); self.C = R(ops[0])
            self.r = self.A | self.B | self.C
            self.passes = 4
        elif op.startswith("v_mfma"):
            self.kind = "mfma"
            self.w = R(ops[0]); self.A = R(ops[1]); self.B = R(ops[2]); self.C = R(ops[3])
            self.r = self.A | self.B | self.C
            self.passes = 8 if ("32x32x16" in op or "16x16x4_f32" in op) else 4 if ("16x16x32" in op or "16x16x16" in op) else None
            assert self.passes, op
        elif op.startswith("v_"):
            self.kind = "valu"
            base = op.replace("_e32", "").replace("_e64", "").replace("_dpp", "").replace("_sdwa", "")
            self.dpp = ("row_" in mods or "quad_perm" in mods or "wave_" in mods or "_dpp" in op)
            self.trans = base in TRANS
            self.perm = base.startswith("v_permlane")
            self.rl = base in ("v_readlane_b32", "v_readfirstlane_b32")
            self.opsel = ("op_sel" in mods and not base.startswith("v_pk_")) or "_sdwa" in op or "dst_sel" in mods
            if self.perm:
                self.w = R(ops[0]) | R(ops[1]); self.r = set(self.w)
            elif base.startswith("v_cmpx"):
                self.w = R(ops[0]) | EXEC
                for o in ops[1:]: self.r |= R(o)
            elif base in ("v_add_co_u32", "v_sub_co_u32", "v_addc_co_u32", "v_subb_co_u32", "v_subrev_co_u32", "v_div_scale_f32", "v_mad_u64_u32"):
                self.w = R(ops[0]) | R(ops[1])
                for o in ops[2:]: self.r |= R(o)
            else:
                self.w = R(ops[0])
                for o in ops[1:]: self.r |= R(o)
                if base in ("v_fmac_f32", "v_pk_fmac_f16", "v_dot2c_f32_bf16", "v_writelane_b32") or self.dpp:
                    self.r |= R(ops[0])
                if base == "v_div_fmas_f32": self.r |= VCC
            if base in ("v_readlane_b32", "v_writelane_b32"):
                self.lanesel = R(ops[2])
            else:
                self.lanesel = set()
        elif op.startswith("ds_"):
            self.kind = "ds"
            if op.startswith("ds_read") or op.startswith("ds_bpermute") or op.startswith("ds_permute") or op.startswith("ds_swizzle") or "_rtn" in op:
                self.w = R(ops[0])
                for o in ops[1:]: self.r |= R(o)
            else:
                for o in ops: self.r |= R(o)
        elif op.startswith("buffer_") or op.startswith("global_"):
            self.kind = "vmem"
            self.lds = bool(re.search(r"\blds\b", mods))
            self.wide_store = set()
            if op.startswith("buffer_load") or op.startswith("global_load"):
                if self.lds:
                    for o in ops: self.r |= R(o)
                    self.r |= {("s", "m0")}
                else:
                    self.w = R(ops[0])
                    for o in ops[1:]: self.r |= R(o)
            elif op in ("buffer_inv", "buffer_wbl2"):
                pass
            else:
                for o in ops: self.r |= R(o)
                if op.startswith("buffer_store") and ("x3" in op or "x4" in op):
                    self.wide_store = R(ops[0])
                if op.startswith("global_store") and ("x3" in op or "x4" in op):
                    self.wide_store = R(ops[1])
                if "atomic" in op and "sc0" in mods:
                    self.w = R(ops[0])
        elif op.startswith("s_"):
            self.kind = "salu"
            if op in ("s_branch",) or op.startswith("s_cbranch"):
                self.kind = "branch"; self.target = ops[0]
            elif op == "s_endpgm":
                self.kind = "end"
            elif op.startswith("s_cmp") or op in ("s_waitcnt", "s_barrier", "s_setprio", "s_sleep", "s_bitcmp1_b32", "s_bitcmp0_b32"):
                for o in ops: self.r |= R(o)
            elif op.startswith("s_load") or op.startswith("s_mem") or op.startswith("s_getreg"):
                self.kind = "smem"; self.w = R(ops[0])
                for o in ops[1:]: self.r |= R(o)
            else:
                self.w = R(ops[0])
                for o in ops[1:]: self.r |= R(o)
                if "saveexec" in op: self.w |= EXEC
        else:
            raise ValueError("unknown op " + op)

def isv(x): return x[0] == "v" or x[0] == "a"
def iss(x): return x[0] == "s"

def need(p, c):
    n = 0
    pk, ck = p.kind, c.kind
    if pk == "valu":
        pwv = {x for x in p.w if isv(x)}; pws = {x for x in p.w if iss(x)}
        if ck == "vmem" and pws & c.r: n = max(n, 5)
        if ck == "valu":
            if c.dpp and pwv & c.r: n = max(n, 2)
            if c.dpp and pws & EXEC: n = max(n, 5)
            if pws & c.r: n = max(n, 2)
            if pws & c.lanesel: n = max(n, 4)
            if c.op.startswith("v_div_fmas") and pws & VCC: n = max(n, 4)
            if c.rl and pwv & c.r: n = max(n, 1)
            if (c.rl or c.perm or c.op.startswith("v_writelane")) and pws & EXEC: n = max(n, 4)
            if p.opsel and pwv & (c.r | c.w): n = max(n, 1)
            if p.trans and not c.trans and pwv & c.r: n = max(n, 1)
            if c.perm and pwv & c.r: n = max(n, 2)
        if ck == "mfma":
            if pwv & c.r: n = max(n, 2)
            if pws & EXEC: n = max(n, 4)
        if ck in ("ds", "vmem") and p.trans and pwv & c.r: n = max(n, 1)
    if pk == "vmem" and p.wide_store:
        if p.wide_store & c.w:
            n = max(n, 2 if ck in ("valu", "mfma") else 1)
    if pk == "salu" and ("s", "m0") in p.w:
        if ck == "vmem" and c.lds: n = max(n, 1)
    if pk == "mfma":
        P = p.passes
        if ck == "mfma":
            if p.w & c.C:
                if p.w == c.C and p.passes == c.passes: pass
                else: n = max(n, {4: 6, 8: 10}[P])
            if p.w & (c.A | c.B): n = max(n, {4: 8, 8: 12}[P])
            if p.w & c.w and not (p.w == c.C): n = max(n, {4: 8, 8: 12}[P])
        elif ck in ("valu", "ds", "vmem"):
            if p.w & (c.r | c.w): n = max(n, {4: 8, 8: 12}[P])
            if ck == "valu" and p.C & c.w: n = max(n, {4: 3, 8: 7}[P])
    return n

def pad(lines, verbose=False):
    ins = [Ins(l) for l in lines]
    lab = {x.label: i for i, x in enumerate(ins) if x.label}
    preds = [[] for _ in ins]
    for i, x in enumerate(ins):
        if x.kind == "branch":
            assert x.target in lab, x.target
            preds[lab[x.target]].append(i)
            if x.op != "s_branch" and i + 1 < len(ins): preds[i + 1].append(i)
        elif x.kind == "end":
            pass
        elif i + 1 < len(ins):
            preds[i + 1].append(i)
    pre = [0] * len(ins)
    total = 0
    for i, c in enumerate(ins):
        if c.kind in (None, "nop", "branch", "end", "salu", "smem"): continue
        worst = 0
        stack = [(p, 0) for p in preds[i]]
        seen = {}
        while stack:
            j, d = stack.pop()
            if d >= 12: continue
            if seen.get(j, 99) <= d: continue
            seen[j] = d
            p = ins[j]
            if p.kind not in (None, "nop"):
                n = need(p, c)
                if n > d: worst = max(worst, n - d)
            for q in preds[j]:
                stack.append((q, d + p.states + pre[j]))
        if worst:
            pre[i] = worst; total += worst
            if verbose: print(f"pad {worst} before: {c.text}")
    out = []
    for i, x in enumerate(ins):
        if pre[i]: out.append(f"s_nop {pre[i]-1}")
        out.append(x.text)
    return out, total
```

```python
import sys, math, struct
sys.path.insert(0, "work")
from asmlib import Asm, pad, vr, sr
from gen import f2u, srd, header, desc, WS_BYTES, NAME, STAMP_OFF

HACT = 0x400000
OACT = 0x1200000
KVP = 0x1600000; KVS = 8448
XCH = 0x1A00000
FLG = 0x2600000
STAT = FLG + 0x10000
OOB = 0x40000000

SW = 3; SKS = 4; SNI = 5; SA = 6; SWR = 7
WS = 8; DBG = 12; XS = 16; WO = 20; WD = 24; OUT = 28
SR = 32; M0T = 52; SO = 72; ST = 77
SJ = 82; SMI = 83; SCNT = 84
T0, T1, T2, T3, T4, T5, T6, T7 = range(85, 93)
SIDX = 93; SXCD = 94; SSP = 95
SKEY = 96; SK1 = 97; SKSH = 98; SKSL = 99
def S4(b): return f"s[{b}:{b+3}]"

QB = 65536; QS = 6144
GB = QB + 4 * QS; GS = 14336; UPO = 7168
PB = GB + 4 * GS
E_KVF = PB + 2048; E_ZF = E_KVF + 4096; E_Z = E_ZF + 256
LDS_BYTES = E_Z + 1024
CSB = 0
STB = 24576
RTB = E_KVF
E_PART = 65536
W2B = 98304

VST = 23
MF = "v_mfma_f32_16x16x32_bf16"
def mfma(d, a, b, c=None):
    cs = vr(d, 4) if c is None else c
    return f"{MF} {vr(d,4)}, {vr(a,4)}, {vr(b,4)}, {cs}"

class Stamper:
    def __init__(self, A, on): self.A = A; self.on = on; self.last = None
    def __call__(self, i, real=False):
        if not self.on: return
        A = self.A
        if self.last is not None:
            A("s_waitcnt lgkmcnt(0)")
            A(f"v_writelane_b32 v{VST}, s100, {self.last}")
        self.last = i
        A("s_memrealtime s[100:101]" if real else "s_memtime s[100:101]")
    def out(self, n):
        if not self.on: return
        A = self.A
        A("s_waitcnt lgkmcnt(0)")
        A(f"v_writelane_b32 v{VST}, s100, {self.last}")
        A(f"s_lshl_b32 s{T0}, s2, 3"); A(f"s_add_u32 s{T0}, s{T0}, s{SW}"); A(f"s_lshl_b32 s{T0}, s{T0}, 8")
        A(f"s_add_u32 s{T0}, s{T0}, {STAMP_OFF}")
        A("v_lshlrev_b32 v22, 2, v1")
        A(f"buffer_store_dword v{VST}, v22, {S4(WS)}, s{T0} offen")

_uid = [0]
def uid(p):
    _uid[0] += 1
    return f"L{p}_{_uid[0]}"

def spin(A, vd, va, srdb, soff, expect, first_loaded=False):
    l0 = uid("sp"); l1 = uid("ok"); l2 = uid("ck")
    A(f"s_mov_b32 s{SSP}, 0")
    if first_loaded: A(f"s_branch {l2}")
    A.label(l0)
    A(f"buffer_load_dword v{vd}, v{va}, {S4(srdb)}, {soff} offen sc1")
    A("s_waitcnt vmcnt(0)")
    A.label(l2)
    A(f"v_cmp_ne_u32 vcc, {expect}, v{vd}")
    A(f"s_cbranch_vccz {l1}")
    A(f"s_add_u32 s{SSP}, s{SSP}, 1"); A(f"s_cmp_lt_u32 s{SSP}, 0x40000"); A("s_sleep 1")
    A(f"s_cbranch_scc1 {l0}")
    A.label(l1)

def flag_off(A, d, kind):
    if kind == "kv":
        A(f"s_lshl_b32 s{d}, s{SJ}, 5"); A(f"s_add_u32 s{d}, s{d}, s{SMI}"); base = 0
    elif kind == "h":
        A(f"s_lshl_b32 s{d}, s{SMI}, 2"); A(f"s_add_u32 s{d}, s{d}, s{SKS}"); A(f"s_lshl_b32 s{d}, s{d}, 5"); A(f"s_add_u32 s{d}, s{d}, s{SNI}"); base = 4096
    elif kind == "o":
        A(f"s_lshl_b32 s{d}, s{SMI}, 5"); A(f"s_add_u32 s{d}, s{d}, s{SJ}"); base = 8192
    else:
        A(f"s_lshl_b32 s{d}, s{SMI}, 3"); A(f"s_add_u32 s{d}, s{d}, s{SNI}"); A(f"s_lshl_b32 s{d}, s{d}, 5"); A(f"s_add_u32 s{d}, s{d}, s{SKS}"); base = 12288
    A(f"s_lshl_b32 s{d}, s{d}, 2"); A(f"s_add_u32 s{d}, s{d}, {FLG + base}")

def signal(A, kind, wave, va, vb):
    l = uid("sg")
    A(f"s_cmp_lg_u32 s{SW}, {wave}"); A(f"s_cbranch_scc1 {l}")
    flag_off(A, T7, kind)
    A(f"v_mov_b32 v{va}, 0"); A(f"v_mov_b32 v{vb}, 1")
    A(f"buffer_store_dword v{vb}, v{va}, {S4(WS)}, s{T7} offen sc1")
    A.label(l)

def line_off(A, d, kind):
    flag_off(A, d, kind)
    A(f"s_and_b32 s{d}, s{d}, 0xffffff80")
NFL = dict(kv=8, h=8, o=32, x=4)
```

```python
from common import *

ACC0 = 96
def acc(b, tb): return ACC0 + (b * 4 + tb) * 4
def afr(hs, i): return 24 + hs * 20 + i * 4
def bfr(par, tb): return 64 + par * 16 + tb * 4
VX = 2; VQ = 4; VG = 6; VD = 7; VL16 = 0
SEL = 12; CSA = 16; VCW = 9
VPA = 2; VSA = 3; VMA = 4
SV = 24
MV = 72
CV = 40
SPERM = 65
VT = 8; VTD = 9
PW = 64

def blocks(h):
    if h == 0:
        return [("q", 2), ("q", 3), ("q", 4), ("q", 5), ("g", 0), ("u", 0), ("g", 1), ("u", 1), ("g", 2), ("u", 2)]
    return [("q", 0), ("q", 1), ("g", 3), ("u", 3), ("g", 4), ("u", 4), ("g", 5), ("u", 5), ("g", 6), ("u", 6)]

def a_reads(h, hs, slot):
    R = []
    for i in range(5):
        kind, idx = blocks(h)[hs * 5 + i]
        for sec in range(2):
            d = vr(afr(hs, i) + 2 * sec, 2)
            if kind == "q":
                R.append(f"ds_read_b64_tr_b16 {d}, v{VQ + (idx & 1)} offset:{slot*QS + sec*16*192 + (idx>>1)*64}")
            else:
                R.append(f"ds_read_b64_tr_b16 {d}, v{VG} offset:{slot*GS + (UPO if kind == 'u' else 0) + sec*16*224 + idx*32}")
    return R

def b_reads(s):
    return [f"ds_read_b128 {vr(bfr(s & 1, tb), 4)}, v{VX + (s & 1)} offset:{((s >> 1) & 1)*32768 + tb*2048}" for tb in range(4)]

def next_reads(h, s):
    B = b_reads(s); Ar = a_reads(h, 0, s & 3)
    return [B[0], Ar[0], Ar[1], B[1], B[2], B[3]] + Ar[2:]

def mfmas(h, hs, par, c=None):
    M = []
    for i in range(5):
        b = hs * 5 + i
        for tb in range(4):
            if h == 0 and b in (2, 3):
                M.append(mfma(acc(b, tb), bfr(par, tb), afr(hs, i), c))
            else:
                M.append(mfma(acc(b, tb), afr(hs, i), bfr(par, tb), c))
    return M

def w_dma(slot):
    return [([f"s_mov_b32 m0, s{M0T+slot*5+i}"],
             f"buffer_load_dwordx4 v{VD+i}, {S4(SR+4*i)}, s{SO+i} offen lds",
             [f"s_add_u32 s{SO+i}, s{SO+i}, s{ST+i}"]) for i in range(5)]

def x_dma(opt, xslot, half):
    PS = 16384; CS = 128
    D = []
    for i in range(4):
        pre = [f"s_mov_b32 m0, s{M0T + xslot*2 + half}"] if i == 0 else []
        if i < 3: inc = PS - 1024
        elif half == 0: inc = 4 * PS - 3 * (PS - 1024)
        else: inc = CS - 4 * PS - 3 * (PS - 1024)
        post = [f"s_add_u32 s{SO}, s{SO}, {inc & 0xffffffff:#x}"] if inc else []
        D.append((pre, f"buffer_load_dwordx4 v{VD}, {S4(XS)}, s{SO} offen offset:{i*1024} lds", post))
    return D

def touch():
    return [([], f"buffer_load_dword v{VTD}, v{VT}, {S4(SR)}, s{SO+1} offen sc1", []),
            ([], f"buffer_load_dword v{VTD}, v{VT}, {S4(SR)}, s{SO+1} offen offset:128 sc1",
             [f"s_add_u32 s{SO+1}, s{SO+1}, s{ST+1}", f"s_min_u32 s{SO+1}, s{SO+1}, s{ST+2}"])]

def emit(A, D):
    for pre, ins, post in D:
        for p in pre: A(p)
        A(ins)
        for p in post: A(p)

def step(A, M, rd, dm, spread=1, ins={}, fill=(), first=False, fper=2, start=None):
    rd = list(rd); nd = len(dm); n = len(M); fill = list(fill)
    pos = {}
    if first: emit(A, dm)
    else:
        if start is not None and start + (nd - 1) * spread <= n - 1:
            for k in range(nd): pos[start + k * spread] = k
        else:
            if (nd - 1) * spread > n - 1: spread = 2
            for k in range(nd): pos[n - 1 - (nd - 1 - k) * spread] = k
    if -1 in ins: ins[-1]()
    for i, m in enumerate(M):
        if i in pos:
            for p in dm[pos[i]][0]: A(p)
        A(m)
        if rd: A(rd.pop(0))
        if i in pos:
            A(dm[pos[i]][1])
            for p in dm[pos[i]][2]: A(p)
        if i in ins: ins[i]()
        for _ in range(fper):
            if fill: A(fill.pop(0))
    assert not rd and not fill, (len(rd), len(fill))

def phi_reads():
    return [f"ds_read_b64_tr_b16 {vr(PW + 4*fb + 2*sec, 2)}, v{VPA} offset:{sec*1024 + fb*32}" for fb in range(2) for sec in range(2)]
def stat_reads():
    return ([f"ds_read_b64 {vr(MV + 2*tb, 2)}, v{VMA} offset:{tb*512}" for tb in range(4)] +
            [f"ds_read_b128 {vr(SV + 4*tb, 4)}, v{VSA} offset:{tb*512 + 16}" for tb in range(4)])
def split3(A, c, d, t):
    A(f"v_and_b32 v{t}, 0xffff0000, v{c}"); A(f"v_sub_f32 v{t}, v{c}, v{t}")
    A(f"v_perm_b32 v{d}, v{t}, v{c}, s{SPERM}")
    A(f"v_and_b32 v{d+2}, 0xffff0000, v{t}"); A(f"v_sub_f32 v{t}, v{t}, v{d+2}")
    A(f"v_perm_b32 v{d+2}, v{c}, v{t}, s{SPERM}")
    A(f"v_mov_b32 v{d+1}, v{d}")

SIX = 20
def smf(b): return f"v_smfmac_f32_16x16x64_bf16 {vr(CSA,4)}, {vr(SEL,4)}, {vr(afr(0,0)+4*b,8)}, v{SIX}"
def cs_pairs(h, wr):
    return [[0], [2], [6, 4] if h == 0 else [6], [8] if h == 0 else [8, 4]][wr]
def colsum(A, O, h, wrs, par):
    lb = uid("cb"); lab = {w: uid("cs") for w in wrs}
    if len(wrs) == 2:
        A(f"s_cmp_lt_u32 s{SWR}, 2" if wrs[0] == 0 else f"s_cmp_ge_u32 s{SWR}, 2")
        A(f"s_cbranch_scc1 {lab[wrs[0]]}"); A.label(lb)
        grp = [wrs]
    else:
        A(f"s_cmp_ge_u32 s{SWR}, 2"); A(f"s_cbranch_scc1 {lab[2]}")
        A(f"s_bitcmp1_b32 s{SWR}, 0"); A(f"s_cbranch_scc1 {lab[1]}")
        A(smf(0)); A.label(lb)
        O.label(lab[1]); O(smf(2)); O(f"s_branch {lb}")
        grp = [[2, 3]]
    for g in grp:
        O.label(lab[g[0]])
        O(f"s_bitcmp1_b32 s{SWR}, 0"); O(f"s_cbranch_scc1 {lab[g[1]]}")
        for w in g:
            if w & 1: O.label(lab[w])
            sl = cs_pairs(h, w)
            if par: sl = sl[::-1]
            for n, b in enumerate(sl):
                if n:
                    for r in range(4): O(f"v_mov_b32_dpp v{SEL+r}, v{SEL+r} row_ror:{12 if par else 4} row_mask:0xf bank_mask:0xf")
                O(smf(b))
            O(f"s_branch {lb}")
def cs_off(h, b):
    for wr in range(4):
        sl = cs_pairs(h, wr)
        if b & ~1 in sl: return CSB + (4 * h + wr) * 2048 + (b & 1) * 1024 + sl.index(b & ~1) * 256
def cs_src(h, b): return CV + 2 * b

def dbg_signal(A, O):
    lo = uid("dg"); lb = uid("db")
    A(f"s_sub_u32 s{SKEY}, s{SKEY}, 1"); A(f"s_cbranch_scc1 {lo}"); A.label(lb)
    O.label(lo)
    O("v_mov_b32 v22, 0"); O("v_mov_b32 v21, 1")
    O(f"buffer_store_byte v21, v22, {S4(DBG)}, s2 offen sc1")
    O(f"s_branch {lb}")

def late_addrs():
    A = Asm()
    A("v_lshrrev_b32 v21, 2, v1"); A("v_lshlrev_b32 v21, 6, v21"); A("v_and_b32 v22, 3, v1"); A("v_lshl_add_u32 v21, v22, 3, v21")
    A(f"v_add_u32 v{VPA}, {PB}, v21")
    A("v_and_b32 v21, 15, v1"); A(f"v_lshl_add_u32 v{VSA}, v21, 5, s{T5}")
    A("v_bfe_u32 v22, v1, 4, 1"); A(f"v_lshl_add_u32 v{VMA}, v22, 3, v{VSA}")
    A("v_lshlrev_b32 v21, 4, v21"); A("v_lshl_add_u32 v21, v22, 3, v21")
    A("v_lshrrev_b32 v22, 5, v1"); A("v_lshl_add_u32 v5, v22, 9, v21")
    A(f"s_lshl_b32 s{T0}, s{SW}, 11"); A(f"v_add_u32 v{VCW}, s{T0}, v{VL16}")
    return A.lines
VCR = 5

def cs_inline(A, h, wr, par):
    sl = cs_pairs(h, wr)
    if par: sl = sl[::-1]
    def first():
        A(smf(sl[0]))
    def rot():
        for r in range(4): A(f"v_mov_b32_dpp v{SEL+r}, v{SEL+r} row_ror:{12 if par else 4} row_mask:0xf bank_mask:0xf")
    def second():
        A(smf(sl[1]))
    return [first] if len(sl) == 1 else [first, rot, second]

def mainloop(A, O, h, opt, hooks):
    sp = opt.get("spread", 2)
    c0 = opt.get(f"cs{h}a", 4); c1 = opt.get(f"cs{h}b", 4)
    nt = 2 if opt["touch"] else 0
    npw = opt.get("npw", 2); npx = opt.get("npx", 2)
    def stage(slot, mode, wr=None):
        last = mode == "last"; first = mode == "first"
        d0 = []; d1 = []; vm = None; f0 = []; par = slot & 1; s0 = sp
        if wr is None:
            i0 = {c0: lambda: colsum(A, O, h, [0, 1], par)}; i1 = {c1: lambda: colsum(A, O, h, [2, 3], par)}
        else:
            L = cs_inline(A, h, wr, par); c = c0 if wr < 2 else c1
            ii = {c + 2 * n: f for n, f in enumerate(L)}
            i0, i1 = (ii, {}) if wr < 2 else ({}, ii)
        if opt.get("nocs"): i0 = {}; i1 = {}
        if last and slot == 0: f0 = hooks["pre_last"][0]
        if last and slot == 2: f0 = hooks["pre_last"][1]
        if last and slot == 3: f0 = late_addrs()
        if h == 0:
            if not last: d1 = w_dma(slot); vm = 10
            else: vm = [10, 5, 0, None][slot]
            if first:
                g = npw + 2 * slot if npw + slot < 4 else None
                if g is not None:
                    d0 = w_dma(g & 3); d1 = w_dma((g + 1) & 3)
                    vm = 5 * (g - slot - 1) + (1 if slot + 1 < npw else 0)
                elif slot + 1 < npw: vm = 11
        else:
            if wr == 3: i0[2 if c0 != 2 else 3] = lambda: dbg_signal(A, O)
            if slot == 0:
                d0 = x_dma(opt, 1, 1)
                if not last: d1 = touch() if nt else []
                else: d1 = hooks["dbg"] + hooks["t2"]
                if first and npx == 2: d0 = x_dma(opt, 1, 0) + d0
                if first and opt.get("t1late"): d1 = d1 + touch()
            elif slot == 1:
                vm = nt if not last else len(hooks["t2"])
                if first and opt.get("t1late"): vm = 2 * nt
                if not last: d1 = x_dma(opt, 0, 0)
                else: i1[1 if c1 != 1 else 2] = lambda: hooks["dbgcheck"](A)
            elif slot == 2:
                if not last: d0 = x_dma(opt, 0, 1)
            else:
                vm = 0
                if not last: d1 = x_dma(opt, 1, 0)
        cz = "0" if first and slot == 0 else None
        step(A, mfmas(h, 0, par, cz), a_reads(h, 1, slot), d0, opt.get(f"sp{h}a", s0), i0, f0, fper=4, start=opt.get(f"s{h}a"))
        A(f"s_waitcnt vmcnt({vm}) lgkmcnt(0)" if vm is not None else "s_waitcnt lgkmcnt(0)")
        A("s_barrier")
        if opt.get("st") == 3:
            A(f"s_mov_b32 m0, s{T7}"); A("s_nop 3"); A(f"v_writelane_b32 v{VST}, s100, m0"); A("s_memtime s[100:101]")
            if first and slot == 0: A(f"s_mov_b32 s{T7}, 14")
            else: A(f"s_add_u32 s{T7}, s{T7}, 1")
        if last and slot == 3:
            F = Asm()
            F(f"v_add_f32 v{CSA}, v{CSA}, v{CSA+1}"); F(f"v_add_f32 v{CSA+2}, v{CSA+2}, v{CSA+3}")
            F(f"v_mov_b32 v{SEL+3}, 0"); F("v_mov_b32 v43, 0")
            for g in range(2):
                d = (SEL, 40)[g]
                split3(F, CSA + 2 * g, d, CSA + 2 * g + 1)
                F(f"ds_write_b128 v{VCW}, {vr(d,4)} offset:{CSB + g*1024}")
            ii = {-1: list(i1.values())[0]} if i1 else {}
            step(A, mfmas(h, 1, 1), phi_reads() + stat_reads(), hooks["w2"], 2, ii, ["s_nop 0"] * 4 + F.lines)
            A("s_waitcnt lgkmcnt(0)"); A("s_barrier")
            for b in hooks["corder"]: A(f"ds_read_b64 {vr(cs_src(h,b),2)}, v{VCR} offset:{cs_off(h,b)}")
        else:
            step(A, mfmas(h, 1, par, cz), next_reads(h, slot + 1), d1, opt.get(f"sp{h}b", 1 if len(d1) > 3 else sp), i1, start=opt.get(f"s{h}b"))
            if not (first and slot == 3): A("s_waitcnt lgkmcnt(0)")
    if opt.get("st") == 3: A(f"s_mov_b32 s{T7}, 4")
    for slot in range(4): stage(slot, "first")
    A(f"s_mov_b32 s{SCNT}, 6")
    A(f"s_cmp_ge_u32 s{SWR}, 2"); A(f"s_cbranch_scc1 L1_d{h}")
    for wr in range(4):
        if wr == 2: A.label(f"L1_d{h}")
        if wr in (0, 2):
            A(f"s_bitcmp1_b32 s{SWR}, 0"); A("s_waitcnt lgkmcnt(0)"); A(f"s_cbranch_scc1 L1_loop{h}{wr+1}")
        A.label(f"L1_loop{h}{wr}")
        for slot in range(4): stage(slot, "mid", wr)
        A(f"s_sub_u32 s{SCNT}, s{SCNT}, 1"); A(f"s_cmp_lg_u32 s{SCNT}, 0"); A(f"s_cbranch_scc1 L1_loop{h}{wr}")
        if wr < 3: A(f"s_branch L1_last{h}")
    A.label(f"L1_last{h}")
    for slot in range(4): stage(slot, "last")

def divmod_v(A, q, r, n, d, t):
    m = (65536 + d - 1) // d
    for x in range(1024): assert (x * m) >> 16 == x // d
    A(f"v_mul_u32_u24 v{q}, {m}, v{n}"); A(f"v_lshrrev_b32 v{q}, 16, v{q}")
    A(f"v_mul_u32_u24 v{t}, {d}, v{q}"); A(f"v_sub_u32 v{r}, v{n}, v{t}")

def read_bases(A):
    A("v_lshrrev_b32 v14, 4, v1"); A("v_lshrrev_b32 v15, 2, v1"); A("v_and_b32 v16, 3, v1")
    A("v_and_b32 v17, 15, v1"); A("v_and_b32 v18, 7, v1"); A("v_xor_b32 v18, v14, v18")
    A(f"s_lshl_b32 s{T0}, s{SWR}, 13")
    A(f"v_lshlrev_b32 v17, 7, v17"); A(f"v_add_u32 v17, s{T0}, v17")
    A(f"v_lshl_add_u32 v{VX}, v18, 4, v17"); A("v_xor_b32 v18, 4, v18"); A(f"v_lshl_add_u32 v{VX+1}, v18, 4, v17")
    A("v_mul_u32_u24 v17, 192, v15"); A("v_lshl_add_u32 v17, v16, 3, v17"); A(f"v_add_u32 v17, {QB}, v17")
    A("v_and_b32 v18, 1, v14"); A(f"v_lshl_add_u32 v{VQ}, v18, 5, v17"); A("v_xor_b32 v18, 1, v18"); A(f"v_lshl_add_u32 v{VQ+1}, v18, 5, v17")
    A("v_mul_u32_u24 v17, 224, v15"); A("v_lshl_add_u32 v17, v16, 3, v17"); A(f"v_add_u32 v{VG}, {GB}, v17")
    A("v_bfe_u32 v17, v1, 1, 3"); A("v_lshrrev_b32 v18, 5, v1"); A("v_cmp_eq_u32 vcc, v17, v18"); A("v_mov_b32 v17, 0x3f803f80")
    for r in range(4): A(f"v_cndmask_b32 v{SEL+r}, 0, v17, vcc")
    A("v_and_b32 v17, 1, v1"); A("v_mul_u32_u24 v17, 0xaaaa, v17"); A(f"v_add_u32 v{SIX}, 0x4444, v17")
    for r in range(4): A(f"v_mov_b32 v{CSA+r}, 0")

PX, PQ, PPH, PWO, PG, PU, PD, POUT, PDBG, PWS = 52, 54, 56, 58, 62, 64, 66, 68, 70, 72
KA = 0

def srd_hi(A, d, size):
    A(f"s_mov_b32 s{d+2}, {size}"); A(f"s_mov_b32 s{d+3}, 0x20000")
def ptr(A, d, slot): A(f"s_load_dwordx2 s[{d}:{d+1}], s[0:1], {slot*8}")

def entry(A, st, opt):
    A("s_cmp_ge_u32 s2, 256"); A("s_cbranch_scc1 L_end")
    ptr(A, XS, 0)
    if opt.get("cpf", 1):
        A(f"s_getpc_b64 s[{T1}:{T2}]"); A.label("L_pc")
        A(f"s_bfe_u32 s{T0}, s2, 0x30003"); A(f"s_lshl_b32 s{T0}, s{T0}, 13")
        A("v_and_b32 v1, 63, v0"); A("v_lshrrev_b32 v2, 6, v0")
        A("v_lshlrev_b32 v3, 7, v1"); A("v_lshl_add_u32 v3, v2, 16, v3"); A(f"v_add_u32 v3, s{T0}, v3")
        A(f"v_cmp_gt_u32 vcc, L_last-L_pc, v3"); A(f"v_mov_b32 v5, s{T2}")
        A(f"s_and_saveexec_b64 s[{T3}:{T4}], vcc"); A("s_cbranch_execz L_nopf")
        A(f"v_add_co_u32 v4, vcc, s{T1}, v3"); A("v_addc_co_u32 v5, vcc, 0, v5, vcc")
        A("global_load_dword v22, v[4:5], off")
        A.label("L_nopf")
        A("s_mov_b64 exec, -1")
    else:
        A("v_and_b32 v1, 63, v0"); A("v_lshrrev_b32 v2, 6, v0")
    st(0, True)
    ptr(A, WS, 10); ptr(A, DBG, 9); ptr(A, WO, 3); ptr(A, WD, 7); ptr(A, OUT, 8)
    A(f"v_readfirstlane_b32 s{SW}, v2")
    A(f"s_and_b32 s{SXCD}, s2, 7"); A(f"s_lshr_b32 s{SIDX}, s2, 3")
    A(f"s_and_b32 s{SA}, s{SIDX}, 3"); A(f"s_lshr_b32 s{SMI}, s{SIDX}, 2")
    A(f"s_lshl_b32 s{SJ}, s{SXCD}, 2"); A(f"s_add_u32 s{SJ}, s{SJ}, s{SA}")
    A(f"s_lshr_b32 s{SKS}, s{SJ}, 3"); A(f"s_and_b32 s{SNI}, s{SJ}, 7")
    A(f"s_lshr_b32 s{SKSH}, s{SKS}, 1"); A(f"s_and_b32 s{SKSL}, s{SKS}, 1")
    A(f"v_lshlrev_b32 v{VL16}, 4, v1")
    A(f"s_and_b32 s{SWR}, s{SW}, 3")
    A(f"s_lshl_b32 s{SK1}, s{SMI}, 5"); A(f"s_add_u32 s{SK1}, s{SK1}, s{SJ}"); A(f"s_lshl_b32 s{SK1}, s{SK1}, 3"); A(f"s_add_u32 s{SK1}, s{SK1}, s{SW}")
    srd_hi(A, XS, 2048 * 2048); srd_hi(A, WS, WS_BYTES); srd_hi(A, DBG, 256); srd_hi(A, WO, 1024 * 2048)
    srd_hi(A, WD, 3584 * 2048); srd_hi(A, OUT, 2048 * 2048)
    st(1)

def rows(A):
    A(f"s_lshl_b32 s{T1}, s{SK1}, 11")
    for i in range(2): A(f"buffer_load_dwordx4 {vr(24+4*i,4)}, v{VL16}, {S4(XS)}, s{T1} offen offset:{i*1024}")

def krow(A, d, rho, t):
    A(f"v_bfe_u32 v{d}, v{rho}, 2, 2"); A(f"v_lshlrev_b32 v{d}, 3, v{d}")
    A(f"v_lshrrev_b32 v{t}, 4, v{rho}"); A(f"v_lshl_add_u32 v{d}, v{t}, 2, v{d}")
    A(f"v_and_b32 v{t}, 3, v{rho}"); A(f"v_add_u32 v{d}, v{d}, v{t}")

def w_setup(A, opt, st):
    SPH = T4 - 1
    assert SPH % 4 == 0
    for w in range(4):
        if w < 3:
            A(f"s_cmp_lg_u32 s{SW}, {w}"); A(f"s_cbranch_scc1 L0_ws{w+1}")
        pcs = []
        for i in range(5):
            g = 5 * w + i
            kind, idx = (0, g) if g < 6 else (1, g - 6) if g < 13 else (2, g - 13)
            pcs.append((kind, idx))
            ptr(A, SR + 4 * i, [1, 5, 6][kind])
        for i, (kind, idx) in enumerate(pcs):
            srd_hi(A, SR + 4 * i, 1024 * (6144 if kind == 0 else 7168))
            A(f"v_add_u32 v14, {idx*64}, v1")
            divmod_v(A, 15, 16, 14, 12 if kind == 0 else 14, 17)
            krow(A, 17, 15, 19)
            if kind == 0:
                A("v_mul_u32_u24 v17, 6144, v17"); A("v_lshrrev_b32 v19, 2, v16"); A("v_lshl_add_u32 v17, v19, 11, v17")
                A("v_and_b32 v16, 3, v16"); A("v_lshrrev_b32 v19, 1, v15"); A("v_and_b32 v19, 2, v19"); A("v_xor_b32 v16, v16, v19")
                A(f"v_lshl_add_u32 v{VD+i}, v16, 4, v17")
                A(f"s_lshl_b32 s{SO+i}, s{SJ}, 6"); A(f"s_mov_b32 s{ST+i}, {32*6144}")
                A(f"s_mov_b32 s{M0T+i}, {QB + idx*1024}"); A(f"s_mov_b32 s{M0T+15+i}, {QS}")
            else:
                A("v_mul_u32_u24 v17, 7168, v17"); A(f"v_lshl_add_u32 v{VD+i}, v16, 4, v17")
                A(f"s_mul_i32 s{SO+i}, s{SJ}, 224"); A(f"s_mov_b32 s{ST+i}, {32*7168}")
                A(f"s_mov_b32 s{M0T+i}, {GB + (UPO if kind == 2 else 0) + idx*1024}"); A(f"s_mov_b32 s{M0T+15+i}, {GS}")
        if w < 3:
            A("s_branch L0_wgo"); A.label(f"L0_ws{w+1}")
    A.label("L0_wgo")
    ptr(A, SPH, 2)
    for sl in range(1, 4):
        for i in range(5): A(f"s_add_u32 s{M0T+5*sl+i}, s{M0T+5*sl-5+i}, s{M0T+15+i}")
    srd_hi(A, SPH, 65536)
    st(58)
    A("s_waitcnt lgkmcnt(0)")
    ns = opt.get("nostat", 0)
    if not ns: rows(A)
    npw = opt.get("npw", 2)
    if opt.get("wwait", 0):
        read_bases(A); A("s_waitcnt vmcnt(0)")
    st(2)
    for sl in range(npw): emit(A, w_dma(sl))
    A(f"s_lshl_b32 s{T0}, s{SJ}, 2"); A(f"s_add_u32 s{T0}, s{T0}, s{SW}"); A(f"s_lshl_b32 s{T0}, s{T0}, 9")
    A(f"s_lshl_b32 s{T1}, s{SW}, 9"); A(f"s_add_u32 m0, s{T1}, {PB}")
    A("s_mov_b32 exec_hi, 0")
    A(f"buffer_load_dwordx4 v{VL16}, {S4(SPH)}, s{T0} offen lds")
    A("s_mov_b32 exec_hi, -1")
    st(60)
    if not opt.get("wwait", 0): read_bases(A)
    if not ns: A(f"s_waitcnt vmcnt({5*npw + 1})")
    st(59)
    if not ns: stats(A)
    st(3)
    A(f"s_waitcnt vmcnt({5*npw - 5 + 2 - ns})")
    A("s_barrier")

def wave_sum(A, a, t):
    A(f"v_mov_b32 v{t}, v{a}"); A(f"v_permlane32_swap_b32 v{a}, v{t}"); A(f"v_add_f32 v{a}, v{a}, v{t}")
    A(f"v_mov_b32 v{t}, v{a}"); A(f"v_permlane16_swap_b32 v{a}, v{t}"); A(f"v_add_f32 v{a}, v{a}, v{t}")
    for r in (8, 4, 2, 1): A(f"v_add_f32_dpp v{a}, v{a}, v{a} row_ror:{r} row_mask:0xf bank_mask:0xf")

C0 = -2.0 * math.sqrt(2.0 / math.pi) * math.log2(math.e)
def stats(A):
    F = 40; R = 32
    A(f"s_mov_b32 s{T3}, 0xffff0000")
    for i in range(8):
        A(f"v_lshlrev_b32 v{F+2*i}, 16, v{24+i}"); A(f"v_and_b32 v{F+1+2*i}, s{T3}, v{24+i}")
    for c in range(4): A(f"v_add_f32 v{R+c}, v{F+c}, v{F+4+c}")
    for k in (8, 12):
        for c in range(4): A(f"v_add_f32 v{R+c}, v{R+c}, v{F+k+c}")
    A(f"v_add_f32 v{R}, v{R}, v{R+1}"); A(f"v_add_f32 v{R+2}, v{R+2}, v{R+3}"); A(f"v_add_f32 v{R}, v{R}, v{R+2}")
    wave_sum(A, R, R + 1)
    A(f"v_mul_f32 v{R}, {hex(f2u(-1.0/1024))}, v{R}")
    for i in range(16): A(f"v_add_f32 v{F+i}, v{F+i}, v{R}")
    Q = 36
    for k in range(4):
        for c in range(4):
            b = F + 4 * k + c
            A(f"v_mul_f32 v{Q+c}, v{b}, v{b}" if k == 0 else f"v_fmac_f32 v{Q+c}, v{b}, v{b}")
    A(f"v_add_f32 v{Q}, v{Q}, v{Q+1}"); A(f"v_add_f32 v{Q+2}, v{Q+2}, v{Q+3}"); A(f"v_add_f32 v{Q}, v{Q}, v{Q+2}")
    wave_sum(A, Q, Q + 1)
    O = 44
    A(f"v_mov_b32 v{O+7}, {hex(f2u(1e-5))}"); A(f"v_fmac_f32 v{O+7}, {hex(f2u(1.0/1024))}, v{Q}")
    A(f"v_rsq_f32 v{O+5}, v{O+7}")
    A(f"s_mov_b32 s{T4}, 0x07060302")
    A(f"v_perm_b32 v{O}, v{R}, v{R}, s{T4}")
    A(f"v_and_b32 v{R+1}, s{T3}, v{R}"); A(f"v_sub_f32 v{R+1}, v{R}, v{R+1}")
    A(f"v_perm_b32 v{O+1}, v{R+1}, v{R+1}, s{T4}")
    A(f"v_and_b32 v{R+2}, s{T3}, v{R+1}"); A(f"v_sub_f32 v{R+2}, v{R+1}, v{R+2}")
    A(f"v_perm_b32 v{O+2}, v{R+2}, v{R}, s{T4}"); A(f"v_mov_b32 v{O+3}, 0")
    A(f"s_lshl_b32 s{T3}, s{SK1}, 5"); A(f"s_add_u32 s{T3}, s{T3}, {STAT}")
    A(f"v_mul_f32 v{O+4}, {hex(f2u(C0))}, v{O+5}"); A(f"v_mul_f32 v{Q}, v{O+5}, v{O+5}")
    A(f"v_mul_f32 v{Q}, {hex(f2u(0.044715))}, v{Q}"); A(f"v_mul_f32 v{O+6}, v{Q}, v{O+4}")
    A("v_cmp_eq_u32 vcc, 0, v1")
    for r in range(4): A(f"v_cndmask_b32 v{O+r}, v{O+4+r}, v{O+r}, vcc")
    A("s_mov_b64 exec, 3")
    A(f"buffer_store_dwordx4 {vr(O,4)}, v{VL16}, {S4(WS)}, s{T3} offen sc1")
    A("s_mov_b64 exec, -1")

def x_setup(A, opt, st):
    A(f"s_cmp_lg_u32 s{SWR}, 0"); A("s_cbranch_scc1 L0_xt1")
    ptr(A, SR, 0); srd_hi(A, SR, 2048 * 2048)
    A(f"s_lshl_b32 s{T2}, s{SMI}, 2"); A(f"s_add_u32 s{T2}, s{T2}, s{SA}")
    A(f"v_lshlrev_b32 v{VT}, 11, v1")
    A(f"s_lshl_b32 s{SO+1}, s{T2}, 17"); A(f"s_mov_b32 s{ST+1}, 256")
    A(f"s_add_u32 s{ST+2}, s{SO+1}, {14*128}")
    A("s_branch L0_xt3")
    A.label("L0_xt1")
    A(f"s_cmp_lg_u32 s{SWR}, 1"); A("s_cbranch_scc1 L0_xt2")
    ptr(A, SR, 1); srd_hi(A, SR, 1024 * 6144)
    A("v_lshrrev_b32 v14, 2, v1"); A("v_and_b32 v15, 3, v1")
    A("v_mul_u32_u24 v15, 6144, v15"); A("v_lshl_add_u32 v15, v14, 11, v15")
    A(f"v_mov_b32 v16, {OOB}"); A("v_cmp_gt_u32 vcc, 3, v14"); A(f"v_cndmask_b32 v{VT}, v16, v15, vcc")
    A(f"s_mul_i32 s{T2}, s{SIDX}, {4*6144}"); A(f"s_lshl_b32 s{T3}, s{SXCD}, 8"); A(f"s_add_u32 s{SO+1}, s{T2}, s{T3}")
    A(f"s_mov_b32 s{ST+1}, {128*6144}"); A(f"s_add_u32 s{ST+2}, s{SO+1}, {7*128*6144}")
    A("s_branch L0_xt3")
    A.label("L0_xt2")
    A(f"s_cmp_eq_u32 s{SWR}, 2"); A("s_cbranch_scc1 L0_xt4"); ptr(A, SR, 6); A("s_branch L0_xt5")
    A.label("L0_xt4"); ptr(A, SR, 5); A.label("L0_xt5")
    srd_hi(A, SR, 1024 * 7168)
    A("v_lshrrev_b32 v14, 2, v1"); A("v_and_b32 v15, 3, v1")
    A("v_mul_u32_u24 v15, 7168, v15"); A("v_lshl_add_u32 v15, v14, 8, v15")
    A(f"v_mov_b32 v16, {OOB}"); A("v_cmp_gt_u32 vcc, 4, v14"); A(f"v_cndmask_b32 v{VT}, v16, v15, vcc")
    A(f"s_mul_i32 s{T2}, s{SIDX}, {4*7168}"); A(f"s_mul_i32 s{T3}, s{SXCD}, 896"); A(f"s_add_u32 s{SO+1}, s{T2}, s{T3}")
    A(f"s_mov_b32 s{ST+1}, {128*7168}"); A(f"s_add_u32 s{ST+2}, s{SO+1}, {7*128*7168}")
    A.label("L0_xt3")
    A(f"s_lshl_b32 s{T3}, s{SMI}, 2"); A(f"s_add_u32 s{T3}, s{T3}, s{SWR}")
    A("v_lshrrev_b32 v14, 3, v1"); A("v_and_b32 v15, 7, v1"); A("v_xor_b32 v15, v14, v15")
    A("v_lshlrev_b32 v14, 11, v14"); A(f"v_lshl_add_u32 v{VD}, v15, 4, v14"); A(f"s_lshl_b32 s{SO}, s{T3}, 17")
    A(f"s_lshl_b32 s{M0T}, s{SWR}, 13")
    for k in range(1, 4): A(f"s_add_u32 s{M0T+k}, s{M0T}, {(k>>1)*32768 + (k&1)*4096}")
    st(58)
    A("s_waitcnt lgkmcnt(0)")
    nt = 2 if opt["touch"] else 0
    ns = opt.get("nostat", 0); t0 = opt.get("t0", 1)
    if t0 == 1: emit(A, touch())
    if not ns: rows(A)
    npx = opt.get("npx", 2)
    X = x_dma(opt, 0, 0) + x_dma(opt, 0, 1) + (x_dma(opt, 1, 0) if npx == 3 else [])
    if opt.get("xwait", 0):
        read_bases(A); A("s_waitcnt vmcnt(2)")
    st(2)
    emit(A, X)
    n1 = 0
    if t0 == 2: emit(A, touch()); n1 = 2
    if t0 == 0:
        for x in touch()[1][2]: A(x)
    if nt and not opt.get("t1late"): emit(A, touch()); n1 += 2
    st(60)
    for u, kind in enumerate(("kv", "h", "o", "x")):
        flag_off(A, T3, kind)
        if u == 0: A(f"s_mov_b32 s{T2}, s{T3}")
        else:
            A(f"s_cmp_eq_u32 s{SWR}, {u}"); A(f"s_cselect_b32 s{T2}, s{T3}, s{T2}")
    A(f"s_and_b32 s{SKEY}, s{SIDX}, 15")
    if not opt.get("xwait", 0): read_bases(A)
    A("v_mov_b32 v21, 0")
    A(f"buffer_store_dword v21, v21, {S4(WS)}, s{T2} offen sc1")
    if not ns: A(f"s_waitcnt vmcnt({len(X) + n1 + 1})")
    st(59)
    if not ns: stats(A)
    st(3)
    A(f"s_waitcnt vmcnt({len(X) - 8 + n1 + 2 - ns})")
    A("s_barrier")
```

```python
from common import *
from p1 import acc, blocks, PW, VL16, SV, CV, MV, cs_src, C0

VHS = 20
VHO = 21
SHB = 48
PHQ = 224
IR2 = 12

def cor(h, b, tb):
    d = vr(acc(b, tb), 4); c = cs_src(h, b); m = MV + 2 * tb
    if h == 0 and b in (2, 3): c, m = m, c
    return f"v_mfma_f32_16x16x16_bf16 {d}, {vr(c,2)}, {vr(m,2)}, {d}"
def rT(tb): return acc(4, tb)
import re
PKON = {"g": 1, "f": 1}; PKW = ["g"]
def pk(op, d, a, b, c=None, mod=""):
    if not PKON[PKW[0]]:
        src = [a, b] + ([c] if c is not None else []); n = len(src)
        def get(k, dflt):
            m = re.search(k + r":\[([01,]+)\]", mod)
            return [int(x) for x in m.group(1).split(",")] if m else [dflt] * n
        out = []
        for hi, (sel, neg) in enumerate(((get("op_sel", 0), get("neg_lo", 0)), (get("op_sel_hi", 1), get("neg_hi", 0)))):
            e = "_e64" if any(neg) and op != "fma" else ""
            out.append(f"v_{op}_f32{e} v{d+hi}, " + ", ".join(("-" if neg[i] else "") + f"v{src[i]+sel[i]}" for i in range(n)))
        return "\n".join(out)
    s = f"v_pk_{op}_f32 {vr(d,2)}, {vr(a,2)}, {vr(b,2)}"
    if c is not None: s += f", {vr(c,2)}"
    return s + (" " + mod if mod else "")

def gelu8(A, G, U, TB, T, D, M):
    E = range(0, 8, 2)
    for i in E: A(pk("mul", T+i, G[i], G[i]))
    for i in E: A(pk("fma", T+i, T+i, SV+4*TB[i]+2, SV+4*TB[i], "op_sel_hi:[1,0,0]"))
    for i in E: A(pk("mul", T+i, T+i, G[i]))
    for i in E: A(pk("mul", G[i], G[i], U[i]))
    n1 = (len(M) + 1) // 2
    sl = {0: [], 1: [0], 2: [0, 3], 3: [0, 2, 4], 4: [0, 2, 4, 6]}
    for i in range(8):
        if i in sl[n1]: A(M.pop(0))
        A(f"v_exp_f32 v{T+i}, v{T+i}")
    for i in E: A(pk("fma", T+i, T+i, IR2+2*TB[i], IR2+2*TB[i], "op_sel_hi:[1,0,0]"))
    n2 = len(M)
    for i in range(8):
        if i in sl[n2]: A(M.pop(0))
        A(f"v_rcp_f32 v{T+i}, v{T+i}")
    for i in E: A(pk("mul", G[i], G[i], T+i))
    for r in range(4): A(f"v_cvt_pk_bf16_f32 v{D+r}, v{G[2*r]}, v{G[2*r+1]}")

def corder(h):
    return [4, 6, 5, 7, 0, 1, 2, 3, 8, 9] if h == 0 else [2, 4, 3, 5, 0, 1, 6, 8, 7, 9]

def gelus(A, h, opt):
    bl = blocks(h); ix = {k: i for i, k in enumerate(bl)}
    pairs = [(0, 1, 0)] if h == 0 else [(3, 4, 1), (5, 6, 2)]
    groups = []
    for ga, gb, t in pairs:
        for tb in range(4):
            B = [ix[("g", ga)], ix[("g", gb)], ix[("u", ga)], ix[("u", gb)]]
            G = [acc(B[0], tb) + i for i in range(4)] + [acc(B[1], tb) + i for i in range(4)]
            U = [acc(B[2], tb) + i for i in range(4)] + [acc(B[3], tb) + i for i in range(4)]
            pre = []
            if tb == 0:
                pre = [f"s_mul_i32 s{T0}, s{SNI}, {3*16384}", f"s_add_u32 s{T0}, s{T0}, s{SHB}"]
                if t: pre.append(f"s_add_u32 s{T0}, s{T0}, {t*16384}")
            groups.append(([cor(h, b, tb) for b in B], G, U, [tb] * 8, pre,
                           f"buffer_store_dwordx4 {vr(U[0],4)}, v{VHS}, {S4(WS)}, s{T0} offen offset:{tb*1024} sc1"))
    if h == 0:
        for tp in range(2):
            g = ix[("g", 2)]; u = ix[("u", 2)]
            G = [acc(g, 2 * tp) + i for i in range(8)]
            U = [acc(u, 2 * tp) + i for i in range(8)]
            pre = [f"s_lshl_b32 s{T0}, s{SNI}, 13", f"s_add_u32 s{T0}, s{T0}, s{SHB}", f"s_add_u32 s{T0}, s{T0}, {24*16384}"] if tp == 0 else []
            groups.append(([cor(h, b, 2 * tp + x) for b in (g, u) for x in range(2)], G, U, [2 * tp] * 4 + [2 * tp + 1] * 4, pre,
                           f"buffer_store_dwordx4 {vr(U[0],4)}, v{VHO}, {S4(WS)}, s{T0} offen offset:{tp*1024} sc1"))
    if h == 0: ex = {n: [cor(h, b, n) for b in range(4)] for n in range(4)}
    else: ex = {n: [cor(h, b, n) for b in range(2)] for n in range(4)}
    A("s_waitcnt lgkmcnt(6)")
    for m in groups[0][0]: A(m)
    consts(A, h)
    A("s_waitcnt lgkmcnt(0)")
    for n, (cs, G, U, TB, pre, store) in enumerate(groups):
        M = (list(groups[n + 1][0]) if n + 1 < len(groups) else []) + ex.get(n, [])
        for x in pre: A(x)
        if n == len(groups) - 1:
            feat_a0(A); M = feat_a1()
        gelu8(A, G, U, TB, (80, 88)[n & 1], U[0], M)
        A(store)
        if h == 0 and n == 3:
            for tb in range(4): A(f"ds_read_b128 {vr(rT(tb),4)}, v22 offset:{tb*64}")
    if h == 1: A("s_setprio 0")

def red8(A, R, op):
    for i in range(4):
        A(f"v_permlane32_swap_b32 v{R+i}, v{R+4+i}")
    for i in range(4):
        A(f"{op} v{R+i}, v{R+i}, v{R+4+i}")
    for i in range(2):
        A(f"v_permlane16_swap_b32 v{R+i}, v{R+2+i}")
    for i in range(2):
        A(f"{op} v{R+i}, v{R+i}, v{R+2+i}")
def bc8(A, R):
    for i in range(2): A(f"v_mov_b32 v{R+2+i}, v{R+i}")
    for i in range(2): A(f"v_permlane16_swap_b32 v{R+i}, v{R+2+i}")
    for i in range(4): A(f"v_mov_b32 v{R+4+i}, v{R+i}")
    for i in range(4): A(f"v_permlane32_swap_b32 v{R+i}, v{R+4+i}")

EP = 160
KB = 40
def feat_a0(A):
    for tb in range(4):
        for b in range(2):
            for r in range(2):
                A(f"v_cvt_pk_bf16_f32 v{KB+4*tb+2*b+r}, v{acc(b,tb)+2*r}, v{acc(b,tb)+2*r+1}")
def feat_a1():
    return [mfma(acc(fb, tb), PW + 4 * fb, KB + 4 * tb, "0") for tb in range(4) for fb in range(2)]
def P(tb, k): return acc(k >> 2, tb) + (k & 3)
def E(tb, k): return EP + tb * 8 + k
def feat_b(A):
    R = 64; S = 40
    for tb in range(4):
        A(f"v_mul_f32 v{SV+4*tb}, {hex(f2u(math.log2(math.e)))}, v{SV+4*tb+1}")
        A(f"v_mul_f32 v{SV+4*tb+2}, {hex(f2u(-math.log2(math.e)))}, v{SV+4*tb+1}")
    for tb in range(4):
        mx = R + 2 * tb; mn = mx + 1
        A(f"v_max3_f32 v{mx}, v{P(tb,0)}, v{P(tb,1)}, v{P(tb,2)}")
        A(f"v_max3_f32 v{mn}, -v{P(tb,0)}, -v{P(tb,1)}, -v{P(tb,2)}")
    for k in (3, 5):
        for tb in range(4):
            mx = R + 2 * tb; mn = mx + 1
            A(f"v_max3_f32 v{mx}, v{mx}, v{P(tb,k)}, v{P(tb,k+1)}")
            A(f"v_max3_f32 v{mn}, v{mn}, -v{P(tb,k)}, -v{P(tb,k+1)}")
    for tb in range(4):
        mx = R + 2 * tb; mn = mx + 1
        A(f"v_max_f32 v{mx}, v{mx}, v{P(tb,7)}")
        A(f"v_max_f32_e64 v{mn}, v{mn}, -v{P(tb,7)}")
    red8(A, R, "v_max_f32")
    bc8(A, R)
    for i in range(8): A(f"v_mul_f32 v{S+2*i}, v{R+i}, v{SV+4*(i>>1)+2}")
    for tb in range(4):
        for k in range(0, 8, 2):
            A(pk("fma", E(tb,k), P(tb,k), SV+4*tb, S+4*tb, "op_sel_hi:[1,0,0]"))
            A(pk("fma", P(tb,k), P(tb,k), SV+4*tb+2, S+4*tb+2, "op_sel_hi:[1,0,0]"))
    def sums(t):
        L = []
        for X, o in ((E, 0), (P, 2)):
            d = S + 4 * t + o
            L += [pk("add", d, X(t,0), X(t,2)), pk("add", d, d, X(t,4)), pk("add", d, d, X(t,6)), f"v_add_f32 v{R+2*t+(o>>1)}, v{d}, v{d+1}"]
        return [L[i] for i in (0, 4, 1, 5, 2, 6, 3, 7)]
    for tb in range(4):
        L = sums(tb - 1) if tb else []
        for k in range(8):
            A(f"v_exp_f32 v{E(tb,k)}, v{E(tb,k)}")
            A(f"v_exp_f32 v{P(tb,k)}, v{P(tb,k)}")
            if L: A(L.pop(0))
    for l in sums(3): A(l)
def feat_c(A, PH, after_tb=None):
    R = 64
    red8(A, R, "v_add_f32")
    for i in range(2): A(f"v_rcp_f32 v{R+i}, v{R+i}")
    bc8(A, R)
    for tb in range(4): A(f"v_mov_b32 v{40+2*tb}, v{R+2*tb+1}")
    for tb in range(4):
        for k in range(0, 8, 2):
            A(pk("mul", E(tb,k), E(tb,k), R+2*tb, mod="op_sel_hi:[1,0]"))
            A(pk("mul", P(tb,k), P(tb,k), 40+2*tb, mod="op_sel_hi:[1,0]"))
    for tb in range(4):
        for r in range(4): A(f"v_cvt_pk_bf16_f32 v{PH+8*tb+r}, v{E(tb,2*r)}, v{E(tb,2*r+1)}")
        for r in range(4): A(f"v_cvt_pk_bf16_f32 v{PH+8*tb+4+r}, v{P(tb,2*r)}, v{P(tb,2*r+1)}")
        if after_tb: after_tb(tb)

VID = 58; VONE = 88
def vb(db, tp): return 72 + 8 * db + 4 * tp
def k_consts(A):
    A("v_and_b32 v92, 15, v1"); A("v_lshrrev_b32 v93, 4, v1"); A("v_lshlrev_b32 v93, 2, v93"); A("v_sub_u32 v92, v92, v93")
    A("v_mov_b32 v93, 0x3f80"); A("v_mov_b32 v94, 0x3f800000")
    for r in range(2):
        d = VID + 2 + r
        A(f"v_cmp_eq_u32 vcc, {2*r}, v92"); A(f"v_cndmask_b32 v{d}, 0, v93, vcc")
        A(f"v_cmp_eq_u32 vcc, {2*r+1}, v92"); A(f"v_cndmask_b32 v{d}, v{d}, v94, vcc")
    for r in (0, 1, 4, 5): A(f"v_mov_b32 v{VID+r}, 0")
    for r in range(4): A(f"v_mov_b32 v{VONE+r}, 0x3f803f80")
def v_cvt(A):
    for db in range(2):
        for tb in range(4):
            for i in (0, 2): A(pk("mul", acc(2+db,tb)+i, acc(2+db,tb)+i, rT(tb)+i))
        for tp in range(2):
            for r in range(4):
                s = acc(2 + db, 2 * tp) + 2 * r
                A(f"v_cvt_pk_bf16_f32 v{vb(db,tp)+r}, v{s}, v{s+1}")

TT = 192
def k_tail(A):
    PH = 24
    def T(tb, sg, fb): return TT + ((sg * 2 + fb) * 4 + tb) * 4
    def tr(tb):
        for sg in range(2):
            for fb in range(2):
                A(mfma(T(tb, sg, fb), PH + 8 * tb + 4 * sg, VID + 2 - 2 * fb, "0"))
    feat_c(A, PH, tr)
    PT = 128
    A(f"s_lshl_b32 s{T0}, s{SWR}, 13"); A(f"s_add_u32 s{T0}, s{T0}, {E_PART}"); A(f"v_add_u32 v92, s{T0}, v{VL16}")
    A(f"s_lshl_b32 s{T0}, s{SWR}, 8"); A(f"s_add_u32 s{T0}, s{T0}, {E_Z}"); A("v_lshrrev_b32 v93, 4, v1"); A(f"v_lshl_add_u32 v93, v93, 4, s{T0}")
    for tp in range(2):
        for z in range(4):
            for r in range(4):
                s = T(2 * tp, z >> 1, z & 1) + 2 * r
                A(f"v_cvt_pk_bf16_f32 v{PT + (z*2+tp)*4 + r}, v{s}, v{s+1}")
        for z in range(4):
            sg, fb = z >> 1, z & 1
            c = "0" if tp == 0 else None
            for db in range(2):
                A(mfma(96 + (sg * 4 + db * 2 + fb) * 4, PT + (z * 2 + tp) * 4, vb(db, tp), c))
            A(mfma(EP + 4 * z, PT + (z * 2 + tp) * 4, VONE, c))
    for s in (0, 2, 1, 3, 4, 6, 5, 7):
        A(f"ds_write_b128 v92, {vr(96+4*s,4)} offset:{s*1024}")
    A("s_mov_b32 exec_lo, 0x00010001"); A("s_mov_b32 exec_hi, 0x00010001")
    for z in range(4): A(f"ds_write_b128 v93, {vr(EP+4*z,4)} offset:{z*64}")
    A("s_mov_b64 exec, -1")

def reduce_publish(A, h, vm):
    R = 24
    A(f"s_lshl_b32 s{T0}, s{SW}, 10"); A(f"v_add_u32 v60, s{T0}, v{VL16}"); A(f"v_add_u32 v61, {E_PART}, v60")
    for p in range(4): A(f"ds_read_b128 {vr(R+4*p,4)}, v61 offset:{p*8192}")
    A(f"s_lshl_b32 s{T0}, s{SJ}, 3"); A(f"s_add_u32 s{T0}, s{T0}, s{SMI}"); A(f"s_mul_i32 s{T0}, s{T0}, {KVS}"); A(f"s_add_u32 s{T0}, s{T0}, {KVP}")
    if h == 1:
        A(f"s_cmp_lg_u32 s{SW}, 7"); A("s_cbranch_scc1 L2_noz")
        A("v_lshlrev_b32 v62, 2, v1"); A(f"v_add_u32 v63, {E_Z}, v62")
        for p in range(4): A(f"ds_read_b32 v{40+p}, v63 offset:{p*256}")
        A(f"s_add_u32 s{T1}, s{T0}, 8192")
        A("s_waitcnt lgkmcnt(0)")
        A("v_add_f32 v40, v40, v41"); A("v_add_f32 v42, v42, v43"); A("v_add_f32 v40, v40, v42")
        A(f"buffer_store_dword v40, v62, {S4(WS)}, s{T1} offen sc1")
        A.label("L2_noz")
    A("s_waitcnt lgkmcnt(0)")
    for i in range(4):
        A(f"v_add_f32 v{R+i}, v{R+i}, v{R+4+i}"); A(f"v_add_f32 v{R+8+i}, v{R+8+i}, v{R+12+i}")
    for i in range(4): A(f"v_add_f32 v{R+i}, v{R+i}, v{R+8+i}")
    A(f"buffer_store_dwordx4 {vr(R,4)}, v60, {S4(WS)}, s{T0} offen sc1"); vm.add("kvp")

def consts(A, h):
    for tb in range(4): A(f"v_mov_b32 v{IR2+2*tb}, v{SV+4*tb+3}")
    A(f"s_lshl_b32 s{T0}, s{SWR}, 12"); A(f"v_add_u32 v{VHS}, s{T0}, v{VL16}")
    A(f"s_lshl_b32 s{T0}, s{SWR}, 11"); A(f"v_add_u32 v{VHO}, s{T0}, v{VL16}")
    if h == 0:
        A(f"s_lshl_b32 s{T0}, s{SWR}, 8"); A(f"s_add_u32 s{T0}, s{T0}, {RTB}"); A("v_and_b32 v22, 48, v1"); A(f"v_add_u32 v22, s{T0}, v22")

def epilogue(A, h, opt, st, vm, hk):
    if h == 1 and opt.get("gprio", 1): A("s_setprio 1")
    PKON["g"] = opt.get("pkg", 1); PKON["f"] = opt.get("pkf", 1)
    PKW[0] = "g"
    gelus(A, h, opt)
    PKW[0] = "f"
    st(6)
    early = h == 1 and opt.get("bh1", 1)
    if h == 0:
        A("s_waitcnt lgkmcnt(0)")
        v_cvt(A); k_consts(A)
    if not early: feat_b(A)
    A("s_waitcnt vmcnt(0)"); vm.clear()
    A("s_barrier")
    st(7)
    signal(A, "h", 4, 94, 95)
    hk["after_bh"](A)
    if early: feat_b(A)
    if h == 0: k_tail(A)
    else: feat_c(A, PHQ)
    hk["poll_h"](A)
    A("s_waitcnt lgkmcnt(0)")
    A("s_barrier")
    st(8)
    reduce_publish(A, h, vm)
```

```python
from common import *
import p1
from p1 import VL16, emit
from p2 import SHB, PHQ, VHS, VHO

class VM:
    def __init__(self): self.q = []
    def add(self, tag): self.q.append(tag)
    def clear(self): self.q = []
    def n(self, *tags):
        idx = [i for i, t in enumerate(self.q) if t in tags]
        if not idx: return None
        return min(63, len(self.q) - 1 - max(idx))
    def copy(self):
        v = VM(); v.q = list(self.q); return v

def acc(tbi, cbi): return 96 + (tbi * 4 + cbi) * 4
def af(st, c): return 24 + st * 32 + c * 4
def bf(st, t): return 24 + st * 32 + 16 + t * 4
VB = 2; VB2 = 4; VW = 6; VDW = 10; VDW2 = 11; VDA = 12; VO4 = 14; VOD = 16
VPD = 88; VPA = 89; VS0 = 90; VS1 = 91; VTO = 92; VTDD = 93; VOUT = 94
TW = 32; TA = 40
SW2B = 49; SM0A = 50; SM0W = 51
SU = 56; SOB = 57; SWOB = 58; SODW = 59; SXB = 60; SOUT = 61; SD0 = 62; SD1 = 63
NS = 44
TOFF = [0, 48, 80]

def pre_last():
    A = Asm()
    A(f"s_mul_i32 s{SW2B}, s{SKS}, {896*2048}"); A(f"s_lshl_b32 s{T0}, s{SNI}, 8"); A(f"s_add_u32 s{SW2B}, s{SW2B}, s{T0}")
    A(f"s_lshl_b32 s{SHB}, s{SKS}, 3"); A(f"s_add_u32 s{SHB}, s{SHB}, s{SMI}"); A(f"s_mul_i32 s{SHB}, s{SHB}, {28*16384}"); A(f"s_add_u32 s{SHB}, s{SHB}, {HACT}")
    for n in range(8):
        A(f"s_add_u32 s{T0}, s{SNI}, {n}"); A(f"s_and_b32 s{T0}, s{T0}, 7")
        A(f"s_mul_i32 s{TW+n}, s{T0}, {112*2048}"); A(f"s_add_u32 s{TW+n}, s{TW+n}, s{SW2B}")
        A(f"s_mul_i32 s{TA+n}, s{T0}, {3*16384}"); A(f"s_add_u32 s{TA+n}, s{TA+n}, s{SHB}")
    A(f"s_lshl_b32 s{SM0A}, s{SW}, 11"); A(f"s_lshl_b32 s{SM0W}, s{SW}, 10"); A(f"s_add_u32 s{SM0W}, s{SM0W}, {W2B}")
    A(f"s_lshl_b32 s{T0}, s{SW}, 2"); A("v_lshrrev_b32 v9, 4, v1"); A(f"v_add_u32 v9, s{T0}, v9")
    A("v_and_b32 v21, 7, v9"); A("v_lshlrev_b32 v21, 1, v21"); A("v_and_b32 v22, 15, v1"); A("v_xor_b32 v21, v21, v22")
    A("v_lshlrev_b32 v9, 11, v9"); A(f"v_lshl_add_u32 v{VDW}, v21, 4, v9")
    A("v_lshrrev_b32 v22, 3, v21"); A("v_lshl_add_u32 v9, v22, 16, v9"); A("v_and_b32 v21, 7, v21"); A(f"v_lshl_add_u32 v{VDW2}, v21, 4, v9")
    B = A.lines; A = Asm()
    A("v_lshrrev_b32 v9, 3, v1"); A("v_and_b32 v21, 7, v1"); A("v_lshlrev_b32 v21, 7, v21"); A("v_lshl_add_u32 v21, v9, 11, v21")
    A(f"v_mov_b32 v22, {OOB}"); A("v_cmp_gt_u32 vcc, 7, v9"); A("v_cndmask_b32 v8, v22, v21, vcc")
    A(f"s_lshl_b32 s{T0}, s{SKS}, 5"); A(f"s_add_u32 s{T0}, s{T0}, s{SIDX}"); A(f"s_lshl_b32 s{T0}, s{T0}, 2"); A(f"s_add_u32 s{T0}, s{T0}, s{SWR}")
    A(f"s_mul_i32 s{T0}, s{T0}, {7*2048}"); A(f"s_and_b32 s{T1}, s{SXCD}, 1"); A(f"s_lshl_b32 s{T1}, s{T1}, 10"); A(f"s_add_u32 s{T6}, s{T0}, s{T1}")
    A("v_lshlrev_b32 v9, 2, v1")
    A(f"s_lshl_b32 s{T5}, s{SWR}, 11"); A(f"s_add_u32 s{T5}, s{T5}, {STB}")
    A(f"s_mov_b32 s{p1.SPERM}, 0x07060302")
    return A.lines, B
def dbg_load():
    return [([], f"buffer_load_dword v21, v9, {S4(DBG)}, 0 offen sc1", [])]
def t2(opt):
    return [([], f"buffer_load_dword v8, v8, {S4(WD)}, s{T6} offen", [])] if opt["touch"] else []
def dbgcheck(A):
    A(f"s_mov_b32 s{T0}, 0x01010101")
    spin(A, 21, 9, DBG, "0", f"s{T0}", first_loaded=True)
    A(f"s_mov_b32 m0, s{T5}")
    A(f"s_lshl_b32 s{T0}, s{SMI}, 2"); A(f"s_add_u32 s{T0}, s{T0}, s{SWR}"); A(f"s_lshl_b32 s{T0}, s{T0}, 11"); A(f"s_add_u32 s{T0}, s{T0}, {STAT}")
    A(f"buffer_load_dwordx4 v{VL16}, {S4(WS)}, s{T0} offen sc1 lds")
    A(f"buffer_load_dwordx4 v{VL16}, {S4(WS)}, s{T0} offen offset:1024 sc1 lds")
    A(f"s_lshl_b32 s{T1}, s{SWR}, 8"); A(f"s_add_u32 m0, s{T1}, {RTB}"); A(f"s_add_u32 s{T0}, s{T0}, 20")
    A(f"v_lshlrev_b32 v9, 5, v1")
    A(f"buffer_load_dword v9, {S4(WS)}, s{T0} offen sc1 lds")

def w_dma(s):
    sl = s % 6
    m0 = f"s_add_u32 m0, s{SM0W}, {sl*8192}"
    if s < 24:
        n, t = divmod(s, 3)
        return ([m0, f"s_add_u32 s{SD1}, s{TW+n}, {TOFF[t]*2048}"], f"buffer_load_dwordx4 v{VDW}, {S4(WD)}, s{SD1} offen lds", [])
    if s < 28:
        return ([m0, f"s_add_u32 s{SD1}, s{SA}, {s-24}", f"s_and_b32 s{SD1}, s{SD1}, 3", f"s_mul_i32 s{SD1}, s{SD1}, {224*2048}", f"s_add_u32 s{SD1}, s{SD1}, s{SODW}"],
                f"buffer_load_dwordx4 v{VDW}, {S4(WD)}, s{SD1} offen lds", [])
    return ([m0, f"s_lshl2_add_u32 s{SD1}, s{SU}, s{SWOB}"], f"buffer_load_dwordx4 v{VDW2}, {S4(WO)}, s{SD1} offen lds",
            [f"s_add_u32 s{SU}, s{SU}, 32768", f"s_and_b32 s{SU}, s{SU}, 0x7ffff"])
def a_dma(s):
    sl = s % 6
    m0 = f"s_add_u32 m0, s{SM0A}, {sl*16384}"
    v = VDA
    if s < 24:
        n, t = divmod(s, 3)
        pre = [m0, f"s_add_u32 s{SD0}, s{TA+n}, {t*16384}"]
    elif s < 28:
        pre = [m0, f"s_add_u32 s{SD0}, s{SA}, {s-24}", f"s_and_b32 s{SD0}, s{SD0}, 3", f"s_lshl_b32 s{SD0}, s{SD0}, 14", f"s_add_u32 s{SD0}, s{SD0}, s{SHB}",
               f"s_add_u32 s{SD0}, s{SD0}, {24*16384}"]
    else:
        pre = [m0, f"s_add_u32 s{SD0}, s{SU}, s{SOB}"]; v = VL16
    return [(pre, f"buffer_load_dwordx4 v{v}, {S4(WS)}, s{SD0} offen sc1 lds", []),
            ([], f"buffer_load_dwordx4 v{v}, {S4(WS)}, s{SD0} offen offset:1024 sc1 lds", [])]

def reads(s):
    st = s & 1; sl = s % 6
    def wr(c, sec): return f"ds_read_b64_tr_b16 {vr(af(st,c)+2*sec,2)}, v{VW+c} offset:{sl*8192 + sec*4096}"
    if s < 24:
        def br(t): return f"ds_read_b128 {vr(bf(st,t),4)}, v{(VB if sl < 4 else VB2) + (t>>1)} offset:{(sl & 3)*16384 + (t&1)*1024}"
    elif s < 28:
        def br(t): return f"ds_read2st64_b64 {vr(bf(st,t),4)}, v{VOD+t} offset0:{sl*32} offset1:{sl*32+16}"
    else:
        def br(t): return f"ds_read_b128 {vr(bf(st,t),4)}, v{VO4 + (sl >> 2)} offset:{(sl & 3)*16384 + (t>>1)*8192 + (t&1)*1024}"
    return [br(0), wr(0, 0), wr(0, 1), wr(1, 0), wr(1, 1), br(1), wr(2, 0), wr(2, 1), br(2), wr(3, 0), wr(3, 1), br(3)]

def mfmas(s):
    st = s & 1
    if s < 28:
        order = [(0, 0), (0, 1), (1, 0), (1, 1), (0, 2), (1, 2), (2, 0), (2, 1), (2, 2), (0, 3), (1, 3), (2, 3), (3, 0), (3, 1), (3, 2), (3, 3)]
        return [mfma(acc(t, c), af(st, c), bf(st, t), "0" if s == 0 else None) for t, c in order]
    return [mfma(acc(t, c), af(st, 2 * x + c), bf(st, 2 * x + t)) for x in range(2) for t in range(2) for c in range(2)]

def after_bh(vm):
    def f(A):
        A(f"v_add_u32 v{VDA}, s{SM0A}, v{VL16}")
        for s in range(3):
            emit(A, a_dma(s)); vm.add(f"d{s}"); vm.add(f"d{s}")
        for u in range(2):
            A(f"s_xor_b32 s{T0}, s{SKSH}, {u}"); A(f"s_lshl_b32 s{T1}, s{T0}, 11"); A(f"v_add_u32 v{VB+u}, s{T1}, v{VHS}")
            A(f"v_add_u32 v{VB2+u}, 0x10000, v{VB+u}")
            A(f"s_lshl_b32 s{T1}, s{T0}, 10"); A(f"v_add_u32 v{VOD+2*u}, s{T1}, v{VHO}"); A(f"v_add_u32 v{VOD+2*u+1}, 8, v{VOD+2*u}")
        A("v_lshrrev_b32 v14, 2, v1"); A("v_and_b32 v15, 3, v1"); A("v_lshlrev_b32 v15, 3, v15"); A("v_lshl_add_u32 v15, v14, 8, v15")
        A(f"v_add_u32 v15, {W2B}, v15"); A("v_and_b32 v14, 7, v14")
        A(f"s_lshr_b32 s{T2}, s{SW}, 2")
        for c in range(4):
            A(f"s_xor_b32 s{T0}, s{SKSL}, {c>>1}"); A(f"s_lshl_b32 s{T0}, s{T0}, 1"); A(f"s_add_u32 s{T0}, s{T0}, s{T2}"); A(f"s_lshl_b32 s{T0}, s{T0}, 1")
            if c & 1: A(f"s_add_u32 s{T0}, s{T0}, 1")
            A(f"v_xor_b32 v{VW+c}, s{T0}, v14"); A(f"v_lshl_add_u32 v{VW+c}, v{VW+c}, 5, v15")
        A(f"v_mov_b32 v{VO4}, v{VHO}"); A(f"v_add_u32 v{VO4+1}, 0x10000, v{VHO}")
        A(f"s_mul_i32 s{SODW}, s{T2}, {96*2048}"); A(f"s_add_u32 s{SODW}, s{SODW}, s{SW2B}"); A(f"s_add_u32 s{SODW}, s{SODW}, {32*2048}")
        A(f"s_lshl_b32 s{SU}, s{SA}, 17")
        A(f"s_xor_b32 s{T0}, s{T2}, s{SKSL}"); A(f"s_lshl_b32 s{T1}, s{SMI}, 5"); A(f"s_add_u32 s{T0}, s{T0}, s{T1}"); A(f"s_lshl_b32 s{T0}, s{T0}, 14")
        A(f"s_lshl_b32 s{T1}, s{SWR}, 1"); A(f"s_add_u32 s{T1}, s{T1}, s{SKSH}"); A(f"s_lshl_b32 s{T3}, s{T1}, 11")
        A(f"s_add_u32 s{SOB}, s{T0}, s{T3}"); A(f"s_add_u32 s{SOB}, s{SOB}, {OACT}")
        A(f"s_lshl_b32 s{SWOB}, s{SNI}, 1"); A(f"s_add_u32 s{SWOB}, s{SWOB}, s{SKSL}"); A(f"s_lshl_b32 s{SWOB}, s{SWOB}, 7")
        A(f"s_lshl_b32 s{T0}, s{SMI}, 3"); A(f"s_add_u32 s{T1}, s{T1}, s{T0}"); A(f"s_lshl_b32 s{SOUT}, s{T1}, 16")
        A(f"s_add_u32 s{SOUT}, s{SOUT}, s{SWOB}"); A(f"s_lshl_b32 s{T2}, s{T2}, 6"); A(f"s_add_u32 s{SOUT}, s{SOUT}, s{T2}")
        A(f"s_add_u32 s{T0}, s{T0}, s{SNI}"); A(f"s_mul_i32 s{SXB}, s{T0}, {12*16384}"); A(f"s_add_u32 s{SXB}, s{SXB}, {XCH}")
    return f

SPL = 64
def poll_issue(A, vm, kind):
    line_off(A, SPL, kind)
    A(f"v_and_b32 v{VPA}, {NFL[kind]-1}, v1"); A(f"v_lshlrev_b32 v{VPA}, 2, v{VPA}")
    A(f"buffer_load_dword v{VPD}, v{VPA}, {S4(WS)}, s{SPL} offen sc1"); vm.add("poll")
def poll_check(A, vm):
    A(f"s_waitcnt vmcnt({vm.n('poll')})")
    spin(A, VPD, VPA, WS, f"s{SPL}", "1", first_loaded=True)

G = 160; GZ = 192
def gather_issue(A, vm):
    A(f"s_mul_i32 s{T0}, s{SJ}, {8*KVS}"); A(f"s_add_u32 s{T0}, s{T0}, {KVP}")
    A(f"s_cmp_lg_u32 s{SW}, 0"); A("s_cbranch_scc1 L3_noz1")
    A(f"v_lshlrev_b32 v{VS0}, 2, v1")
    for p in range(8):
        A(f"s_add_u32 s{T1}, s{T0}, {p*KVS + 8192}")
        A(f"buffer_load_dword v{GZ+p}, v{VS0}, {S4(WS)}, s{T1} offen sc1")
    A.label("L3_noz1")
    A(f"s_lshl_b32 s{T1}, s{SW}, 10"); A(f"s_add_u32 s{T0}, s{T0}, s{T1}")
    for p in range(8):
        A(f"buffer_load_dwordx4 {vr(G+4*p,4)}, v{VL16}, {S4(WS)}, s{T0} offen sc1"); vm.add("g")
        if p < 7: A(f"s_add_u32 s{T0}, s{T0}, {KVS}")
def gather_sum(A, vm):
    A(f"s_waitcnt vmcnt({vm.n('g')})")
    for st in (16, 8, 4):
        for i in range(st): A(f"v_add_f32 v{G+i}, v{G+i}, v{G+st+i}")
    A(f"v_cvt_pk_bf16_f32 v{G}, v{G}, v{G+1}"); A(f"v_cvt_pk_bf16_f32 v{G+1}, v{G+2}, v{G+3}")
    A(f"s_lshr_b32 s{T0}, s{SW}, 1"); A(f"s_lshl_b32 s{T0}, s{T0}, 10"); A(f"s_and_b32 s{T1}, s{SW}, 1"); A(f"s_lshl_b32 s{T1}, s{T1}, 3")
    A(f"s_add_u32 s{T0}, s{T0}, s{T1}"); A(f"s_add_u32 s{T0}, s{T0}, {E_KVF}")
    A(f"v_add_u32 v{VS0}, s{T0}, v{VL16}")
    A(f"ds_write_b64 v{VS0}, {vr(G,2)}")
    A(f"s_cmp_lg_u32 s{SW}, 0"); A("s_cbranch_scc1 L3_noz2")
    for st in (4, 2, 1):
        for i in range(st): A(f"v_add_f32 v{GZ+i}, v{GZ+i}, v{GZ+st+i}")
    A(f"v_cvt_pk_bf16_f32 v{GZ}, v{GZ}, v{GZ}")
    A(f"v_lshlrev_b32 v{VS0}, 1, v1"); A(f"v_add_u32 v{VS0}, {E_ZF}, v{VS0}")
    A(f"ds_write_b16 v{VS0}, v{GZ}")
    A.label("L3_noz2")
def o_compute(A):
    A(f"s_cmp_lt_u32 s{SW}, 4"); A("s_cbranch_scc1 L3_noo")
    KA = 160; ZA = 176; N = 184
    A(f"v_add_u32 v{VS0}, {E_KVF}, v{VL16}")
    A(f"v_lshrrev_b32 v{VS1}, 4, v1"); A(f"v_lshlrev_b32 v{VS1}, 3, v{VS1}"); A(f"v_add_u32 v{VS1}, {E_ZF}, v{VS1}")
    for c in range(4): A(f"ds_read_b128 {vr(KA+4*c,4)}, v{VS0} offset:{c*1024}")
    for sg in range(2):
        for sec in range(2): A(f"ds_read_b64 {vr(ZA+4*sg+2*sec,2)}, v{VS1} offset:{sg*64 + sec*32}")
    A(f"s_lshl_b32 s{T0}, s{SMI}, 5"); A(f"s_add_u32 s{T0}, s{T0}, s{SJ}"); A(f"s_lshl_b32 s{T0}, s{T0}, 14"); A(f"s_add_u32 s{T0}, s{T0}, {OACT}")
    A("s_waitcnt lgkmcnt(0)")
    for tb in range(4):
        for db in range(2):
            for sg in range(2):
                A(mfma(N + 8 * tb + 4 * db, KA + 4 * (sg * 2 + db), PHQ + 8 * tb + 4 * sg, "0" if sg == 0 else None))
    D = 160
    for tb in range(4):
        for sg in range(2):
            A(mfma(D + 4 * tb, ZA + 4 * sg, PHQ + 8 * tb + 4 * sg, "0" if sg == 0 else None))
    for tb in range(4): A(f"v_add_f32 v{D+4*tb}, {hex(f2u(1e-6))}, v{D+4*tb}")
    for tb in range(4): A(f"v_rcp_f32 v{D+4*tb}, v{D+4*tb}")
    for tb in range(4):
        for i in range(8): A(f"v_mul_f32 v{N+8*tb+i}, v{N+8*tb+i}, v{D+4*tb}")
        for r in range(4): A(f"v_cvt_pk_bf16_f32 v{N+8*tb+r}, v{N+8*tb+2*r}, v{N+8*tb+2*r+1}")
        A(f"buffer_store_dwordx4 {vr(N+8*tb,4)}, v{VHS}, {S4(WS)}, s{T0} offen offset:{tb*1024} sc1")
    A.label("L3_noo")
def wo_touch(A, vm):
    A(f"v_lshrrev_b32 v{VS0}, 2, v1"); A(f"v_and_b32 v{VTO}, 3, v1"); A(f"v_lshlrev_b32 v{VTO}, 8, v{VTO}"); A(f"v_lshl_add_u32 v{VTO}, v{VS0}, 11, v{VTO}")
    A(f"v_mov_b32 v{VS1}, {OOB}"); A(f"v_cmp_gt_u32 vcc, 4, v{VS0}"); A(f"v_cndmask_b32 v{VTO}, v{VS1}, v{VTO}, vcc")
    A(f"s_lshl_b32 s{T0}, s{SIDX}, 3"); A(f"s_add_u32 s{T0}, s{T0}, s{SW}"); A(f"s_lshl_b32 s{T0}, s{T0}, 13")
    A(f"s_and_b32 s{T1}, s{SWOB}, 0x480"); A(f"s_add_u32 s{T0}, s{T0}, s{T1}")
    A(f"buffer_load_dword v{VTDD}, v{VTO}, {S4(WO)}, s{T0} offen"); vm.add("t")
XR = 160; XX = 184
def xch_send(A, vm):
    for b in range(1, 4):
        u, v = b >> 1, b & 1
        A(f"s_xor_b32 s{T0}, s{SKS}, {b}"); A(f"s_mul_i32 s{T0}, s{T0}, {3*16384}"); A(f"s_add_u32 s{T0}, s{T0}, s{SXB}")
        if b > 1: A(f"s_add_u32 s{T0}, s{T0}, {(b-1)*16384}")
        for t in range(2):
            Pp = acc(2 * u + t, 2 * v)
            for r in range(4): A(f"v_cvt_pk_bf16_f32 v{Pp+r}, v{Pp+2*r}, v{Pp+2*r+1}")
            A(f"buffer_store_dwordx4 {vr(Pp,4)}, v{VDA}, {S4(WS)}, s{T0} offen offset:{t*1024} sc1"); vm.add("xs")
def xch_recv(A, vm):
    A(f"s_mul_i32 s{T0}, s{SKS}, {3*16384}"); A(f"s_add_u32 s{T0}, s{T0}, s{SXB}")
    for b in range(3):
        for t in range(2):
            A(f"buffer_load_dwordx4 {vr(XR+8*b+4*t,4)}, v{VDA}, {S4(WS)}, s{T0} offen offset:{t*1024} sc1"); vm.add("xr")
        if b < 2: A(f"s_add_u32 s{T0}, s{T0}, 16384")
def x_load(A, vm):
    A(f"v_and_b32 v{VOUT}, 15, v1"); A(f"v_lshlrev_b32 v{VOUT}, 11, v{VOUT}")
    A(f"v_bfe_u32 v{VS0}, v1, 4, 1"); A(f"v_lshl_add_u32 v{VOUT}, v{VS0}, 5, v{VOUT}")
    A(f"v_lshrrev_b32 v{VS0}, 5, v1"); A(f"v_lshl_add_u32 v{VOUT}, v{VS0}, 4, v{VOUT}")
    A(f"s_add_u32 s{SOUT+4}, s{SOUT}, 32768")
    for t in range(2):
        A(f"buffer_load_dwordx4 {vr(XX+4*t,4)}, v{VOUT}, {S4(XS)}, s{SOUT+4*t} offen"); vm.add("xr")
def final(A, vm):
    A(f"s_mov_b32 s{T0}, 0xffff0000")
    A("s_waitcnt vmcnt(0)")
    for t in range(2):
        for r in range(2): A(f"v_permlane16_swap_b32 v{XX+4*t+r}, v{XX+4*t+2+r}")
    Fv = 192
    for t in range(2):
        for r in range(4):
            lo = Fv + 8 * t + 2 * r; hi = lo + 1
            A(f"v_lshlrev_b32 v{lo}, 16, v{XX+4*t+r}"); A(f"v_and_b32 v{hi}, s{T0}, v{XX+4*t+r}")
    for b in range(3):
        for t in range(2):
            for r in range(4):
                s = XR + 8 * b + 4 * t + r; lo = Fv + 8 * t + 2 * r; hi = lo + 1
                A(f"v_lshlrev_b32 v{208+(r&1)*2}, 16, v{s}"); A(f"v_and_b32 v{209+(r&1)*2}, s{T0}, v{s}")
                A(f"v_add_f32 v{lo}, v{lo}, v{208+(r&1)*2}"); A(f"v_add_f32 v{hi}, v{hi}, v{209+(r&1)*2}")
OFL = [""]
def final2(A):
    Fv = 192
    for t in range(2):
        Pp = acc(t, 0)
        for i in range(8): A(f"v_add_f32 v{Pp+i}, v{Pp+i}, v{Fv+8*t+i}")
        for r in range(4): A(f"v_cvt_pk_bf16_f32 v{Pp+r}, v{Pp+2*r}, v{Pp+2*r+1}")
        for r in range(2): A(f"v_permlane16_swap_b32 v{Pp+r}, v{Pp+2+r}")
        A(f"buffer_store_dwordx4 {vr(Pp,4)}, v{VOUT}, {S4(OUT)}, s{SOUT+4*t} offen{OFL[0]}")

def gemm2(A, opt, st, vm):
    poll_check(A, vm)
    st(9)
    emit(A, a_dma(3)); vm.add("d3"); vm.add("d3")
    A(f"s_waitcnt vmcnt({vm.n('d0')}) lgkmcnt(0)"); A("s_barrier")
    for r in reads(0): A(r)
    for s in (4, 5):
        emit(A, a_dma(s)); vm.add(f"d{s}"); vm.add(f"d{s}")
    H = dict(kvsig=2, kvpoll=5, kvget=8, wot=10, kvsum=11, o=12, osig=15, opoll=18, ochk=21, xsig=32, xpoll=35, xget=38)
    for k in H:
        if k in opt: H[k] = opt[k]
    for s in range(NS):
        if s == 28: st(10)
        tags = [f"d{s+1}"]
        if s == H["kvsig"]: tags.append("kvp")
        if s == H["osig"]: tags.append("omark")
        if s == H["xsig"]: tags.append("xs")
        n = vm.n(*tags)
        if s == NS - 1:
            A("s_waitcnt lgkmcnt(0)")
        else:
            A(f"s_waitcnt vmcnt({n}) lgkmcnt(0)"); A("s_barrier")
        if opt.get("st") == 2: st(14 + s)
        M = mfmas(s)
        rd = reads(s + 1) if s + 1 < NS else []
        dm = a_dma(s + 6) + [w_dma(s + 6)] if s + 6 < NS else []
        nm = len(M)
        per = [1] * 12 + [0] * 4 if nm == 16 else [2, 2, 2, 2, 2, 2, 0, 0]
        dpos = {11: 0, 13: 1, 15: 2} if nm == 16 else {5: 0, 6: 1, 7: 2}
        for i, m in enumerate(M):
            if dm and i in dpos:
                for p in dm[dpos[i]][0]: A(p)
            A(m)
            for _ in range(per[i]):
                if rd: A(rd.pop(0))
            if dm and i in dpos:
                A(dm[dpos[i]][1])
                vm.add("omark" if (s == H["o"] + 1 and dpos[i] == 0) else f"d{s+6}")
                for p in dm[dpos[i]][2]: A(p)
        assert not rd
        if s == H["kvsig"]: signal(A, "kv", 1, VS0, VS1)
        if s == H["kvpoll"]: poll_issue(A, vm, "kv")
        if s == H["kvget"]: poll_check(A, vm); gather_issue(A, vm)
        if s == H["wot"] and opt["touch"]: wo_touch(A, vm)
        if s == H["kvsum"]: gather_sum(A, vm)
        if s == H["o"]: o_compute(A)
        if s == H["osig"]: signal(A, "o", 2, VS0, VS1)
        if s == H["opoll"]: poll_issue(A, vm, "o")
        if s == H["ochk"]: poll_check(A, vm)
        if s == 28: xch_send(A, vm)
        if s == H["xsig"]: signal(A, "x", 3, VS0, VS1)
        if s == H["xpoll"]: poll_issue(A, vm, "x"); x_load(A, vm)
        if s == H["xget"]: poll_check(A, vm); xch_recv(A, vm)
        if s == NS - 2: st(11); final(A, vm)
    OFL[0] = ["", " sc1", " sc0 sc1", " nt", " sc1 nt"][opt.get("ofl", 0)]
    final2(A)
```

```python
from common import *
import p1, p2, p3

def kernel(opt):
    A = Asm(); O = Asm(); lab = NAME + "_kernel"
    st = Stamper(A, opt.get("st", 0))
    header(A, lab)
    p1.entry(A, st, opt)
    A(f"s_cmp_ge_u32 s{SW}, 4"); A("s_cbranch_scc1 L0_x")
    vms = []
    for h in range(2):
        if h == 0: p1.w_setup(A, opt, st)
        else:
            A.label("L0_x"); st.last = 1
            p1.x_setup(A, opt, st)
            if opt.get("prio"): A("s_setprio 1")
        st(4)
        for r in p1.next_reads(h, 0): A(r)
        A("s_waitcnt lgkmcnt(0)")
        vm = p3.VM()
        hooks = dict(pre_last=p3.pre_last(), t2=p3.t2(opt), dbg=p3.dbg_load(), dbgcheck=p3.dbgcheck, w2=[p3.w_dma(s) for s in range(6)], corder=p2.corder(h))
        p1.mainloop(A, O, h, opt, hooks)
        if opt.get("st") == 3: st.last = 45
        st(5)
        hk = dict(after_bh=p3.after_bh(vm), poll_h=lambda A: p3.poll_issue(A, vm, "h"))
        p2.epilogue(A, h, opt, st, vm, hk)
        vms.append(vm)
        if h == 0: A("s_branch L3_start")
    assert vms[0].q == vms[1].q
    A.label("L3_start")
    p3.gemm2(A, opt, st, vms[0])
    st(12); st(13, True); st.out(14)
    A.label("L_end")
    A("s_endpgm")
    O.label("L_last"); O("s_endpgm")
    return lab, A.lines + O.lines

def build(path, opt):
    lab, lines = kernel(opt)
    lines, tot = pad(lines, opt.get("v", 0))
    print(f"{len(lines)} lines, {tot} pad states, lds {LDS_BYTES}")
    txt = f"; @launch grid=(256,1,1) block=(512,1,1) lds={LDS_BYTES}\n" + '.amdgcn_target "amdgcn-amd-amdhsa--gfx950"\n.text\n'
    for l in lines:
        txt += (l if (l.endswith(":") or l.startswith(".")) else " " + l) + "\n"
    txt += '.section .rodata,"a"\n' + desc(lab, 256, 102)
    open(path, "w").write(txt)

if __name__ == "__main__":
    opt = dict(touch=1, s1a=8, sp1a=2, s1b=8, sp1b=2)
    for a in sys.argv[2:]:
        k, v = a.split("="); opt[k] = int(v)
    build(sys.argv[1], opt)
```

```python
import sys, math, struct
sys.path.insert(0, "work")
from asmlib import Asm, pad, vr, sr
from gen import f2u, srd, header, desc, WS_BYTES, NAME, STAMP_OFF

HACT = 0x400000
OACT = 0x1200000
KVP = 0x1600000; KVS = 8448
XCH = 0x1A00000
FLG = 0x2600000
STAT = FLG + 0x20000
OOB = 0x40000000

SW = 3; SKS = 4; SNI = 5; SA = 6; SWR = 7
WS = 8; DBG = 12; XS = 16; WO = 20; WD = 24; OUT = 28
SR = 32; M0T = 52; SO = 72; ST = 77
SJ = 82; SMI = 83; SCNT = 84
T0, T1, T2, T3, T4, T5, T6, T7 = range(85, 93)
SIDX = 93; SXCD = 94; SSP = 95
SKEY = 96; SK1 = 97; SKSH = 98; SKSL = 99
def S4(b): return f"s[{b}:{b+3}]"

QB = 65536; QS = 6144
GB = QB + 4 * QS; GS = 14336; UPO = 7168
PB = GB + 4 * GS
E_KVF = PB + 2048; E_ZF = E_KVF + 4096
LDS_BYTES = PB + 16384
CSB = 49152
STB = GB
RTB = PB + 2048
E_PART = 0
W2B = 98304

VST = 23
MF = "v_mfma_f32_16x16x32_bf16"
def mfma(d, a, b, c=None):
    cs = vr(d, 4) if c is None else c
    return f"{MF} {vr(d,4)}, {vr(a,4)}, {vr(b,4)}, {cs}"

class Stamper:
    def __init__(self, A, on): self.A = A; self.on = on; self.last = None
    def __call__(self, i, real=False):
        if not self.on: return
        A = self.A
        if self.last is not None:
            A("s_waitcnt lgkmcnt(0)")
            A(f"v_writelane_b32 v{VST}, s100, {self.last}")
        self.last = i
        A("s_memrealtime s[100:101]" if real else "s_memtime s[100:101]")
    def out(self, n):
        if not self.on: return
        A = self.A
        A("s_waitcnt lgkmcnt(0)")
        A(f"v_writelane_b32 v{VST}, s100, {self.last}")
        A(f"s_lshl_b32 s{T0}, s2, 3"); A(f"s_add_u32 s{T0}, s{T0}, s{SW}"); A(f"s_lshl_b32 s{T0}, s{T0}, 8")
        A(f"s_add_u32 s{T0}, s{T0}, {STAMP_OFF}")
        A("v_lshlrev_b32 v22, 2, v1")
        A(f"buffer_store_dword v{VST}, v22, {S4(WS)}, s{T0} offen")

_uid = [0]
def uid(p):
    _uid[0] += 1
    return f"L{p}_{_uid[0]}"

def spin(A, vd, va, srdb, soff, expect, first_loaded=False):
    l0 = uid("sp"); l1 = uid("ok"); l2 = uid("ck")
    A(f"s_mov_b32 s{SSP}, 0")
    if first_loaded: A(f"s_branch {l2}")
    A.label(l0)
    A(f"buffer_load_dword v{vd}, v{va}, {S4(srdb)}, {soff} offen sc1")
    A("s_waitcnt vmcnt(0)")
    A.label(l2)
    A(f"v_cmp_ne_u32 vcc, {expect}, v{vd}")
    A(f"s_cbranch_vccz {l1}")
    A(f"s_add_u32 s{SSP}, s{SSP}, 1"); A(f"s_cmp_lt_u32 s{SSP}, 0x40000"); A("s_sleep 1")
    A(f"s_cbranch_scc1 {l0}")
    A.label(l1)

def check(A, O, vd, va, srdb, soff, expect):
    l0 = uid("sp"); l1 = uid("ok"); l2 = uid("lp")
    A(f"v_cmp_ne_u32 vcc, {expect}, v{vd}")
    A(f"s_cbranch_vccnz {l0}")
    A.label(l1)
    O.label(l0)
    O(f"s_mov_b32 s{SSP}, 0")
    O.label(l2)
    O(f"buffer_load_dword v{vd}, v{va}, {S4(srdb)}, {soff} offen sc1")
    O("s_waitcnt vmcnt(0)")
    O(f"v_cmp_ne_u32 vcc, {expect}, v{vd}")
    O(f"s_cbranch_vccz {l1}")
    O(f"s_add_u32 s{SSP}, s{SSP}, 1"); O(f"s_cmp_lt_u32 s{SSP}, 0x40000"); O("s_sleep 1")
    O(f"s_cbranch_scc1 {l2}")
    O(f"s_branch {l1}")

FX = FLG; FKV = FLG + 32768; FH1 = FLG + 65536; FO = FLG + 81920; FH0 = FLG + 98304
PR = 72
def scheck(A, O, n, load, expect, near=False):
    l0 = uid("sp"); l1 = uid("ok"); l2 = uid("lp")
    C = []
    if n == 8: C += [f"s_and_b64 s[{PR}:{PR+1}], s[{PR}:{PR+1}], s[{PR+2}:{PR+3}]", f"s_and_b64 s[{PR+4}:{PR+5}], s[{PR+4}:{PR+5}], s[{PR+6}:{PR+7}]",
                     f"s_and_b64 s[{PR}:{PR+1}], s[{PR}:{PR+1}], s[{PR+4}:{PR+5}]"]
    if near: C += [f"s_lshr_b64 s[{PR}:{PR+1}], s[{PR}:{PR+1}], s{PR+2}", f"s_and_b32 s{PR}, s{PR}, 0xffff"]
    elif n > 1: C += [f"s_and_b32 s{PR}, s{PR}, s{PR+1}"]
    C += [f"s_cmp_eq_u32 s{PR}, {expect:#x}"]
    A("s_waitcnt lgkmcnt(0)")
    for c in C: A(c)
    A(f"s_cbranch_scc0 {l0}")
    A.label(l1)
    O.label(l0)
    O(f"s_mov_b32 s{SSP}, 0")
    O.label(l2)
    O(load); O("s_waitcnt lgkmcnt(0)")
    for c in C: O(c)
    O(f"s_cbranch_scc1 {l1}")
    O(f"s_add_u32 s{SSP}, s{SSP}, 1"); O(f"s_cmp_lt_u32 s{SSP}, 0x40000")
    O(f"s_cbranch_scc1 {l2}")
    O(f"s_branch {l1}")

class VM:
    def __init__(self): self.q = []
    def add(self, tag): self.q.append(tag)
    def n(self, *tags):
        idx = [i for i, t in enumerate(self.q) if t in tags]
        if not idx: return None
        return min(63, len(self.q) - 1 - max(idx))
```

```python
from common import *

ACC0 = 96
def acc(b, tb): return ACC0 + (b * 4 + tb) * 4
def afr(hs, i): return 24 + hs * 20 + i * 4
def bfr(par, tb): return 64 + par * 16 + tb * 4
VX = 2; VQ = 4; VG = 6; VD = 7; VL16 = 0
SEL = 12; CSA = 16; VCW = 9
VPA = 2; VSA = 3; VMA = 4
SV = 24
MV = 72
CV = 40
SPERM = 65
VT = 8; VTD = 9
PW = 64

def blocks(h):
    if h == 0:
        return [("q", 2), ("q", 3), ("q", 4), ("q", 5), ("g", 0), ("u", 0), ("g", 1), ("u", 1), ("g", 2), ("u", 2)]
    return [("q", 0), ("q", 1), ("g", 3), ("u", 3), ("g", 4), ("u", 4), ("g", 5), ("u", 5), ("g", 6), ("u", 6)]

def a_reads(h, hs, slot):
    R = []
    for i in range(5):
        kind, idx = blocks(h)[hs * 5 + i]
        for sec in range(2):
            d = vr(afr(hs, i) + 2 * sec, 2)
            if kind == "q":
                R.append(f"ds_read_b64_tr_b16 {d}, v{VQ + (idx & 1)} offset:{slot*QS + sec*16*192 + (idx>>1)*64}")
            else:
                R.append(f"ds_read_b64_tr_b16 {d}, v{VG} offset:{slot*GS + (UPO if kind == 'u' else 0) + sec*16*224 + idx*32}")
    return R

def b_reads(s):
    return [f"ds_read_b128 {vr(bfr(s & 1, tb), 4)}, v{VX + (s & 1)} offset:{((s >> 1) & 1)*32768 + tb*2048}" for tb in range(4)]

def next_reads(h, s):
    B = b_reads(s); Ar = a_reads(h, 0, s & 3)
    return [B[0], Ar[0], Ar[1], B[1], B[2], B[3]] + Ar[2:]

def mfmas(h, hs, par, c=None):
    M = []
    for i in range(5):
        b = hs * 5 + i
        for tb in range(4):
            if h == 0 and b in (2, 3):
                M.append(mfma(acc(b, tb), bfr(par, tb), afr(hs, i), c))
            else:
                M.append(mfma(acc(b, tb), afr(hs, i), bfr(par, tb), c))
    return M

def w_dma(slot):
    return [([f"s_mov_b32 m0, s{M0T+slot*5+i}"],
             f"buffer_load_dwordx4 v{VD+i}, {S4(SR+4*i)}, s{SO+i} offen lds",
             [f"s_add_u32 s{SO+i}, s{SO+i}, s{ST+i}"]) for i in range(5)]

def x_dma(opt, xslot, half):
    PS = 16384; CS = 128
    D = []
    for i in range(4):
        pre = [f"s_mov_b32 m0, s{M0T + xslot*2 + half}"] if i == 0 else []
        if i < 3: inc = PS - 1024
        elif half == 0: inc = 4 * PS - 3 * (PS - 1024)
        else: inc = CS - 4 * PS - 3 * (PS - 1024)
        post = [f"s_add_u32 s{SO}, s{SO}, {inc & 0xffffffff:#x}"] if inc else []
        D.append((pre, f"buffer_load_dwordx4 v{VD}, {S4(XS)}, s{SO} offen offset:{i*1024} lds", post))
    return D

def touch():
    return [([], f"buffer_load_dword v{VTD}, v{VT}, {S4(SR)}, s{SO+1} offen sc1", []),
            ([], f"buffer_load_dword v{VTD}, v{VT}, {S4(SR)}, s{SO+1} offen offset:128 sc1",
             [f"s_add_u32 s{SO+1}, s{SO+1}, s{ST+1}", f"s_min_u32 s{SO+1}, s{SO+1}, s{ST+2}"])]

def emit(A, D):
    for pre, ins, post in D:
        for p in pre: A(p)
        A(ins)
        for p in post: A(p)

def step(A, M, rd, dm, spread=1, ins={}, fill=(), first=False, fper=2, start=None):
    rd = list(rd); nd = len(dm); n = len(M); fill = list(fill)
    pos = {}
    if first: emit(A, dm)
    else:
        if start is not None and start + (nd - 1) * spread <= n - 1:
            for k in range(nd): pos[start + k * spread] = k
        else:
            if (nd - 1) * spread > n - 1: spread = 2
            for k in range(nd): pos[n - 1 - (nd - 1 - k) * spread] = k
    if -1 in ins: ins[-1]()
    for i, m in enumerate(M):
        if i in pos:
            for p in dm[pos[i]][0]: A(p)
        A(m)
        if rd: A(rd.pop(0))
        if i in pos:
            A(dm[pos[i]][1])
            for p in dm[pos[i]][2]: A(p)
        if i in ins: ins[i]()
        for _ in range(fper):
            if fill: A(fill.pop(0))
    assert not rd and not fill, (len(rd), len(fill))

def phi_reads():
    return [f"ds_read_b64_tr_b16 {vr(PW + 4*fb + 2*sec, 2)}, v{VPA} offset:{sec*1024 + fb*32}" for fb in range(2) for sec in range(2)]
def stat_reads():
    return ([f"ds_read_b64 {vr(MV + 2*tb, 2)}, v{VMA} offset:{tb*512}" for tb in range(4)] +
            [f"ds_read_b128 {vr(SV + 4*tb, 4)}, v{VSA} offset:{tb*512 + 16}" for tb in range(4)])
def split3(A, c, d, t):
    A(f"v_and_b32 v{t}, 0xffff0000, v{c}"); A(f"v_sub_f32 v{t}, v{c}, v{t}")
    A(f"v_perm_b32 v{d}, v{t}, v{c}, s{SPERM}")
    A(f"v_and_b32 v{d+2}, 0xffff0000, v{t}"); A(f"v_sub_f32 v{t}, v{t}, v{d+2}")
    A(f"v_perm_b32 v{d+2}, v{c}, v{t}, s{SPERM}")
    A(f"v_mov_b32 v{d+1}, v{d}")

SIX = 20
def smf(b): return f"v_smfmac_f32_16x16x64_bf16 {vr(CSA,4)}, {vr(SEL,4)}, {vr(afr(0,0)+4*b,8)}, v{SIX}"
def cs_pairs(h, wr):
    return [[0], [2], [6, 4] if h == 0 else [6], [8] if h == 0 else [8, 4]][wr]
def colsum(A, O, h, wrs, par):
    lb = uid("cb"); lab = {w: uid("cs") for w in wrs}
    if len(wrs) == 2:
        A(f"s_cmp_lt_u32 s{SWR}, 2" if wrs[0] == 0 else f"s_cmp_ge_u32 s{SWR}, 2")
        A(f"s_cbranch_scc1 {lab[wrs[0]]}"); A.label(lb)
        grp = [wrs]
    else:
        A(f"s_cmp_ge_u32 s{SWR}, 2"); A(f"s_cbranch_scc1 {lab[2]}")
        A(f"s_bitcmp1_b32 s{SWR}, 0"); A(f"s_cbranch_scc1 {lab[1]}")
        A(smf(0)); A.label(lb)
        O.label(lab[1]); O(smf(2)); O(f"s_branch {lb}")
        grp = [[2, 3]]
    for g in grp:
        O.label(lab[g[0]])
        O(f"s_bitcmp1_b32 s{SWR}, 0"); O(f"s_cbranch_scc1 {lab[g[1]]}")
        for w in g:
            if w & 1: O.label(lab[w])
            sl = cs_pairs(h, w)
            if par: sl = sl[::-1]
            for n, b in enumerate(sl):
                if n:
                    for r in range(4): O(f"v_mov_b32_dpp v{SEL+r}, v{SEL+r} row_ror:{12 if par else 4} row_mask:0xf bank_mask:0xf")
                O(smf(b))
            O(f"s_branch {lb}")
def cs_off(h, b):
    for wr in range(4):
        sl = cs_pairs(h, wr)
        if b & ~1 in sl: return CSB + (4 * h + wr) * 2048 + (b & 1) * 1024 + sl.index(b & ~1) * 256
def cs_src(h, b): return CV + 2 * b

def dbg_signal(A, O):
    lo = uid("dg"); lb = uid("db")
    A(f"s_sub_u32 s{SKEY}, s{SKEY}, 1"); A(f"s_cbranch_scc1 {lo}"); A.label(lb)
    O.label(lo)
    O("v_mov_b32 v22, 0"); O("v_mov_b32 v21, 1")
    O(f"buffer_store_byte v21, v22, {S4(DBG)}, s2 offen sc1")
    O(f"s_branch {lb}")

def late_addrs():
    A = Asm()
    A("v_lshrrev_b32 v21, 2, v1"); A("v_lshlrev_b32 v21, 6, v21"); A("v_and_b32 v22, 3, v1"); A("v_lshl_add_u32 v21, v22, 3, v21")
    A(f"v_add_u32 v{VPA}, {PB}, v21")
    A("v_and_b32 v21, 15, v1"); A(f"v_lshl_add_u32 v{VSA}, v21, 5, s{T5}")
    A("v_bfe_u32 v22, v1, 4, 1"); A(f"v_lshl_add_u32 v{VMA}, v22, 3, v{VSA}")
    A("v_lshlrev_b32 v21, 4, v21"); A("v_lshl_add_u32 v21, v22, 3, v21")
    A("v_lshrrev_b32 v22, 5, v1"); A("v_lshl_add_u32 v5, v22, 9, v21")
    A(f"s_lshl_b32 s{T0}, s{SW}, 11"); A(f"v_add_u32 v{VCW}, s{T0}, v{VL16}")
    return A.lines
VCR = 5

def cs_inline(A, h, wr, par):
    sl = cs_pairs(h, wr)
    if par: sl = sl[::-1]
    def first():
        A(smf(sl[0]))
    def rot():
        for r in range(4): A(f"v_mov_b32_dpp v{SEL+r}, v{SEL+r} row_ror:{12 if par else 4} row_mask:0xf bank_mask:0xf")
    def second():
        A(smf(sl[1]))
    return [first] if len(sl) == 1 else [first, rot, second]

def mainloop(A, O, h, opt, hooks):
    sp = opt.get("spread", 2)
    c0 = opt.get(f"cs{h}a", 4); c1 = opt.get(f"cs{h}b", 4)
    nt = 2 if opt["touch"] else 0
    npw = opt.get("npw", 2); npx = opt.get("npx", 2)
    def stage(slot, mode, wr=None):
        last = mode == "last"; first = mode == "first"
        d0 = []; d1 = []; vm = None; f0 = []; par = slot & 1; s0 = sp
        if wr is None:
            i0 = {c0: lambda: colsum(A, O, h, [0, 1], par)}; i1 = {c1: lambda: colsum(A, O, h, [2, 3], par)}
        else:
            L = cs_inline(A, h, wr, par); c = c0 if wr < 2 else c1
            ii = {c + 2 * n: f for n, f in enumerate(L)}
            i0, i1 = (ii, {}) if wr < 2 else ({}, ii)
        if opt.get("nocs"): i0 = {}; i1 = {}
        if last and slot == 0: f0 = hooks["pre_last"][0]
        if last and slot == 2: f0 = hooks["pre_last"][1]
        if last and slot == 3: f0 = late_addrs()
        if h == 0:
            if not last: d1 = w_dma(slot); vm = 10
            else:
                vm = [10, 7, 2, 0][slot]
                if slot == 0: d1 = hooks["wot"]
            if first:
                g = npw + 2 * slot if npw + slot < 4 else None
                if g is not None:
                    d0 = w_dma(g & 3); d1 = w_dma((g + 1) & 3)
                    vm = 5 * (g - slot - 1) + (1 if slot + 1 < npw else 0)
                elif slot + 1 < npw: vm = 11
        else:
            if wr == 3: i0[2 if c0 != 2 else 3] = lambda: dbg_signal(A, O)
            if slot == 0:
                d0 = x_dma(opt, 1, 1)
                if not last: d1 = touch() if nt else []
                else: d1 = hooks["dbg"] + hooks["t2"]
                if first and npx == 2: d0 = x_dma(opt, 1, 0) + d0
                if first and opt.get("t1late"): d1 = d1 + touch()
            elif slot == 1:
                vm = nt if not last else len(hooks["t2"])
                if first and opt.get("t1late"): vm = 2 * nt
                if not last: d1 = x_dma(opt, 0, 0)
                else: i1[1 if c1 != 1 else 2] = lambda: hooks["dbgcheck"](A)
            elif slot == 2:
                if not last: d0 = x_dma(opt, 0, 1)
            else:
                vm = 0
                if not last: d1 = x_dma(opt, 1, 0)
        cz = "0" if first and slot == 0 else None
        step(A, mfmas(h, 0, par, cz), a_reads(h, 1, slot), d0, opt.get(f"sp{h}a", s0), i0, f0, fper=4, start=opt.get(f"s{h}a"))
        A(f"s_waitcnt vmcnt({vm}) lgkmcnt(0)" if vm is not None else "s_waitcnt lgkmcnt(0)")
        A("s_barrier")
        if opt.get("st") == 3:
            A(f"s_mov_b32 m0, s{T7}"); A("s_nop 3"); A(f"v_writelane_b32 v{VST}, s100, m0"); A("s_memtime s[100:101]")
            if first and slot == 0: A(f"s_mov_b32 s{T7}, 14")
            else: A(f"s_add_u32 s{T7}, s{T7}, 1")
        if last and slot == 3:
            F = Asm()
            F(f"v_add_f32 v{CSA}, v{CSA}, v{CSA+1}"); F(f"v_add_f32 v{CSA+2}, v{CSA+2}, v{CSA+3}")
            F(f"v_mov_b32 v{SEL+3}, 0"); F("v_mov_b32 v43, 0")
            for g in range(2):
                d = (SEL, 40)[g]
                split3(F, CSA + 2 * g, d, CSA + 2 * g + 1)
                F(f"ds_write_b128 v{VCW}, {vr(d,4)} offset:{CSB + g*1024}")
            ii = {-1: list(i1.values())[0]} if i1 else {}
            step(A, mfmas(h, 1, 1), phi_reads() + stat_reads(), hooks["w2"], 2, ii, ["s_nop 0"] * 4 + F.lines)
            A("s_waitcnt lgkmcnt(0)"); A("s_barrier")
            for b in hooks["corder"]: A(f"ds_read_b64 {vr(cs_src(h,b),2)}, v{VCR} offset:{cs_off(h,b)}")
        else:
            step(A, mfmas(h, 1, par, cz), next_reads(h, slot + 1), d1, opt.get(f"sp{h}b", 1 if len(d1) > 3 else sp), i1, hooks["scalars"] if last and slot == 2 else (), fper=3, start=opt.get(f"s{h}b"))
            if not (first and slot == 3): A("s_waitcnt lgkmcnt(0)")
    if opt.get("st") == 3: A(f"s_mov_b32 s{T7}, 4")
    for slot in range(4): stage(slot, "first")
    A(f"s_mov_b32 s{SCNT}, 6")
    A(f"s_cmp_ge_u32 s{SWR}, 2"); A(f"s_cbranch_scc1 L1_d{h}")
    for wr in range(4):
        if wr == 2: A.label(f"L1_d{h}")
        if wr in (0, 2):
            A(f"s_bitcmp1_b32 s{SWR}, 0"); A("s_waitcnt lgkmcnt(0)"); A(f"s_cbranch_scc1 L1_loop{h}{wr+1}")
        A.label(f"L1_loop{h}{wr}")
        for slot in range(4): stage(slot, "mid", wr)
        A(f"s_sub_u32 s{SCNT}, s{SCNT}, 1"); A(f"s_cmp_lg_u32 s{SCNT}, 0"); A(f"s_cbranch_scc1 L1_loop{h}{wr}")
        if wr < 3: A(f"s_branch L1_last{h}")
    A.label(f"L1_last{h}")
    for slot in range(4): stage(slot, "last")

def divmod_v(A, q, r, n, d, t):
    m = (65536 + d - 1) // d
    for x in range(1024): assert (x * m) >> 16 == x // d
    A(f"v_mul_u32_u24 v{q}, {m}, v{n}"); A(f"v_lshrrev_b32 v{q}, 16, v{q}")
    A(f"v_mul_u32_u24 v{t}, {d}, v{q}"); A(f"v_sub_u32 v{r}, v{n}, v{t}")

def read_bases(A):
    A("v_lshrrev_b32 v14, 4, v1"); A("v_lshrrev_b32 v15, 2, v1"); A("v_and_b32 v16, 3, v1")
    A("v_and_b32 v17, 15, v1"); A("v_and_b32 v18, 7, v1"); A("v_xor_b32 v18, v14, v18")
    A(f"s_lshl_b32 s{T0}, s{SWR}, 13")
    A(f"v_lshlrev_b32 v17, 7, v17"); A(f"v_add_u32 v17, s{T0}, v17")
    A(f"v_lshl_add_u32 v{VX}, v18, 4, v17"); A("v_xor_b32 v18, 4, v18"); A(f"v_lshl_add_u32 v{VX+1}, v18, 4, v17")
    A("v_mul_u32_u24 v17, 192, v15"); A("v_lshl_add_u32 v17, v16, 3, v17"); A(f"v_add_u32 v17, {QB}, v17")
    A("v_and_b32 v18, 1, v14"); A(f"v_lshl_add_u32 v{VQ}, v18, 5, v17"); A("v_xor_b32 v18, 1, v18"); A(f"v_lshl_add_u32 v{VQ+1}, v18, 5, v17")
    A("v_mul_u32_u24 v17, 224, v15"); A("v_lshl_add_u32 v17, v16, 3, v17"); A(f"v_add_u32 v{VG}, {GB}, v17")
    A("v_bfe_u32 v17, v1, 1, 3"); A("v_lshrrev_b32 v18, 5, v1"); A("v_cmp_eq_u32 vcc, v17, v18"); A("v_mov_b32 v17, 0x3f803f80")
    for r in range(4): A(f"v_cndmask_b32 v{SEL+r}, 0, v17, vcc")
    A("v_and_b32 v17, 1, v1"); A("v_mul_u32_u24 v17, 0xaaaa, v17"); A(f"v_add_u32 v{SIX}, 0x4444, v17")
    for r in range(4): A(f"v_mov_b32 v{CSA+r}, 0")

PX, PQ, PPH, PWO, PG, PU, PD, POUT, PDBG, PWS = 52, 54, 56, 58, 62, 64, 66, 68, 70, 72
KA = 0

def srd_hi(A, d, size):
    A(f"s_mov_b32 s{d+2}, {size}"); A(f"s_mov_b32 s{d+3}, 0x20000")
def ptr(A, d, slot): A(f"s_load_dwordx2 s[{d}:{d+1}], s[0:1], {slot*8}")

def entry(A, st, opt):
    A("s_cmp_ge_u32 s2, 256"); A("s_cbranch_scc1 L_end")
    ptr(A, XS, 0)
    if opt.get("cpf", 1):
        A(f"s_getpc_b64 s[{T1}:{T2}]"); A.label("L_pc")
        A(f"s_bfe_u32 s{T0}, s2, 0x30003"); A(f"s_lshl_b32 s{T0}, s{T0}, 13")
        A("v_and_b32 v1, 63, v0"); A("v_lshrrev_b32 v2, 6, v0")
        A("v_lshlrev_b32 v3, 7, v1"); A("v_lshl_add_u32 v3, v2, 16, v3"); A(f"v_add_u32 v3, s{T0}, v3")
        A(f"v_cmp_gt_u32 vcc, L_last-L_pc, v3"); A(f"v_mov_b32 v5, s{T2}")
        A(f"s_and_saveexec_b64 s[{T3}:{T4}], vcc"); A("s_cbranch_execz L_nopf")
        A(f"v_add_co_u32 v4, vcc, s{T1}, v3"); A("v_addc_co_u32 v5, vcc, 0, v5, vcc")
        A("global_load_dword v22, v[4:5], off")
        A.label("L_nopf")
        A("s_mov_b64 exec, -1")
    else:
        A("v_and_b32 v1, 63, v0"); A("v_lshrrev_b32 v2, 6, v0")
    st(0, True)
    ptr(A, WS, 10); ptr(A, DBG, 9); ptr(A, WO, 3); ptr(A, WD, 7); ptr(A, OUT, 8)
    A(f"v_readfirstlane_b32 s{SW}, v2")
    A(f"s_and_b32 s{SXCD}, s2, 7"); A(f"s_lshr_b32 s{SIDX}, s2, 3")
    A(f"s_and_b32 s{SA}, s{SIDX}, 3"); A(f"s_lshr_b32 s{SMI}, s{SIDX}, 2")
    A(f"s_lshl_b32 s{SJ}, s{SXCD}, 2"); A(f"s_add_u32 s{SJ}, s{SJ}, s{SA}")
    A(f"s_lshr_b32 s{SKS}, s{SJ}, 3"); A(f"s_and_b32 s{SNI}, s{SJ}, 7")
    A(f"s_lshr_b32 s{SKSH}, s{SKS}, 1"); A(f"s_and_b32 s{SKSL}, s{SKS}, 1")
    A(f"v_lshlrev_b32 v{VL16}, 4, v1")
    A(f"s_and_b32 s{SWR}, s{SW}, 3")
    A(f"s_lshl_b32 s{SK1}, s{SMI}, 5"); A(f"s_add_u32 s{SK1}, s{SK1}, s{SJ}"); A(f"s_lshl_b32 s{SK1}, s{SK1}, 3"); A(f"s_add_u32 s{SK1}, s{SK1}, s{SW}")
    srd_hi(A, XS, 2048 * 2048); srd_hi(A, WS, WS_BYTES); srd_hi(A, DBG, 256); srd_hi(A, WO, 1024 * 2048)
    srd_hi(A, WD, 3584 * 2048); srd_hi(A, OUT, 2048 * 2048)
    st(1)

def rows(A):
    A(f"s_lshl_b32 s{T1}, s{SK1}, 11")
    for i in range(2): A(f"buffer_load_dwordx4 {vr(24+4*i,4)}, v{VL16}, {S4(XS)}, s{T1} offen offset:{i*1024}")

def krow(A, d, rho, t):
    A(f"v_bfe_u32 v{d}, v{rho}, 2, 2"); A(f"v_lshlrev_b32 v{d}, 3, v{d}")
    A(f"v_lshrrev_b32 v{t}, 4, v{rho}"); A(f"v_lshl_add_u32 v{d}, v{t}, 2, v{d}")
    A(f"v_and_b32 v{t}, 3, v{rho}"); A(f"v_add_u32 v{d}, v{d}, v{t}")

def w_setup(A, opt, st):
    SPH = T4 - 1
    assert SPH % 4 == 0
    for w in range(4):
        if w < 3:
            A(f"s_cmp_lg_u32 s{SW}, {w}"); A(f"s_cbranch_scc1 L0_ws{w+1}")
        pcs = []
        for i in range(5):
            g = 5 * w + i
            kind, idx = (0, g) if g < 6 else (1, g - 6) if g < 13 else (2, g - 13)
            pcs.append((kind, idx))
            ptr(A, SR + 4 * i, [1, 5, 6][kind])
        for i, (kind, idx) in enumerate(pcs):
            srd_hi(A, SR + 4 * i, 1024 * (6144 if kind == 0 else 7168))
            A(f"v_add_u32 v14, {idx*64}, v1")
            divmod_v(A, 15, 16, 14, 12 if kind == 0 else 14, 17)
            krow(A, 17, 15, 19)
            if kind == 0:
                A("v_mul_u32_u24 v17, 6144, v17"); A("v_lshrrev_b32 v19, 2, v16"); A("v_lshl_add_u32 v17, v19, 11, v17")
                A("v_and_b32 v16, 3, v16"); A("v_lshrrev_b32 v19, 1, v15"); A("v_and_b32 v19, 2, v19"); A("v_xor_b32 v16, v16, v19")
                A(f"v_lshl_add_u32 v{VD+i}, v16, 4, v17")
                A(f"s_lshl_b32 s{SO+i}, s{SJ}, 6"); A(f"s_mov_b32 s{ST+i}, {32*6144}")
                A(f"s_mov_b32 s{M0T+i}, {QB + idx*1024}"); A(f"s_mov_b32 s{M0T+15+i}, {QS}")
            else:
                A("v_mul_u32_u24 v17, 7168, v17"); A(f"v_lshl_add_u32 v{VD+i}, v16, 4, v17")
                A(f"s_mul_i32 s{SO+i}, s{SJ}, 224"); A(f"s_mov_b32 s{ST+i}, {32*7168}")
                A(f"s_mov_b32 s{M0T+i}, {GB + (UPO if kind == 2 else 0) + idx*1024}"); A(f"s_mov_b32 s{M0T+15+i}, {GS}")
        if w < 3:
            A("s_branch L0_wgo"); A.label(f"L0_ws{w+1}")
    A.label("L0_wgo")
    ptr(A, SPH, 2)
    for sl in range(1, 4):
        for i in range(5): A(f"s_add_u32 s{M0T+5*sl+i}, s{M0T+5*sl-5+i}, s{M0T+15+i}")
    srd_hi(A, SPH, 65536)
    st(58)
    A("s_waitcnt lgkmcnt(0)")
    ns = opt.get("nostat", 0)
    if not ns: rows(A)
    npw = opt.get("npw", 2)
    if opt.get("wwait", 0):
        read_bases(A); A("s_waitcnt vmcnt(0)")
    st(2)
    for sl in range(npw): emit(A, w_dma(sl))
    A(f"s_lshl_b32 s{T0}, s{SJ}, 2"); A(f"s_add_u32 s{T0}, s{T0}, s{SW}"); A(f"s_lshl_b32 s{T0}, s{T0}, 9")
    A(f"s_lshl_b32 s{T1}, s{SW}, 9"); A(f"s_add_u32 m0, s{T1}, {PB}")
    A("s_mov_b32 exec_hi, 0")
    A(f"buffer_load_dwordx4 v{VL16}, {S4(SPH)}, s{T0} offen lds")
    A("s_mov_b32 exec_hi, -1")
    st(60)
    if not opt.get("wwait", 0): read_bases(A)
    if not ns: A(f"s_waitcnt vmcnt({5*npw + 1})")
    st(59)
    if not ns: stats(A)
    st(3)
    A(f"s_waitcnt vmcnt({5*npw - 5 + 2 - ns})")
    A("s_barrier")

def wave_sum(A, a, t):
    A(f"v_mov_b32 v{t}, v{a}"); A(f"v_permlane32_swap_b32 v{a}, v{t}"); A(f"v_add_f32 v{a}, v{a}, v{t}")
    A(f"v_mov_b32 v{t}, v{a}"); A(f"v_permlane16_swap_b32 v{a}, v{t}"); A(f"v_add_f32 v{a}, v{a}, v{t}")
    for r in (8, 4, 2, 1): A(f"v_add_f32_dpp v{a}, v{a}, v{a} row_ror:{r} row_mask:0xf bank_mask:0xf")

C0 = -2.0 * math.sqrt(2.0 / math.pi) * math.log2(math.e)
def stats(A):
    F = 40; R = 32
    A(f"s_mov_b32 s{T3}, 0xffff0000")
    for i in range(8):
        A(f"v_lshlrev_b32 v{F+2*i}, 16, v{24+i}"); A(f"v_and_b32 v{F+1+2*i}, s{T3}, v{24+i}")
    for c in range(4): A(f"v_add_f32 v{R+c}, v{F+c}, v{F+4+c}")
    for k in (8, 12):
        for c in range(4): A(f"v_add_f32 v{R+c}, v{R+c}, v{F+k+c}")
    A(f"v_add_f32 v{R}, v{R}, v{R+1}"); A(f"v_add_f32 v{R+2}, v{R+2}, v{R+3}"); A(f"v_add_f32 v{R}, v{R}, v{R+2}")
    wave_sum(A, R, R + 1)
    A(f"v_mul_f32 v{R}, {hex(f2u(-1.0/1024))}, v{R}")
    for i in range(16): A(f"v_add_f32 v{F+i}, v{F+i}, v{R}")
    Q = 36
    for k in range(4):
        for c in range(4):
            b = F + 4 * k + c
            A(f"v_mul_f32 v{Q+c}, v{b}, v{b}" if k == 0 else f"v_fmac_f32 v{Q+c}, v{b}, v{b}")
    A(f"v_add_f32 v{Q}, v{Q}, v{Q+1}"); A(f"v_add_f32 v{Q+2}, v{Q+2}, v{Q+3}"); A(f"v_add_f32 v{Q}, v{Q}, v{Q+2}")
    wave_sum(A, Q, Q + 1)
    O = 44
    A(f"v_mov_b32 v{O+7}, {hex(f2u(1e-5))}"); A(f"v_fmac_f32 v{O+7}, {hex(f2u(1.0/1024))}, v{Q}")
    A(f"v_rsq_f32 v{O+5}, v{O+7}")
    A(f"s_mov_b32 s{T4}, 0x07060302")
    A(f"v_perm_b32 v{O}, v{R}, v{R}, s{T4}")
    A(f"v_and_b32 v{R+1}, s{T3}, v{R}"); A(f"v_sub_f32 v{R+1}, v{R}, v{R+1}")
    A(f"v_perm_b32 v{O+1}, v{R+1}, v{R+1}, s{T4}")
    A(f"v_and_b32 v{R+2}, s{T3}, v{R+1}"); A(f"v_sub_f32 v{R+2}, v{R+1}, v{R+2}")
    A(f"v_perm_b32 v{O+2}, v{R+2}, v{R}, s{T4}"); A(f"v_mov_b32 v{O+3}, 0")
    A(f"s_lshl_b32 s{T3}, s{SK1}, 5"); A(f"s_add_u32 s{T3}, s{T3}, {STAT}")
    A(f"v_mul_f32 v{O+4}, {hex(f2u(C0))}, v{O+5}"); A(f"v_mul_f32 v{Q}, v{O+5}, v{O+5}")
    A(f"v_mul_f32 v{Q}, {hex(f2u(0.044715))}, v{Q}"); A(f"v_mul_f32 v{O+6}, v{Q}, v{O+4}")
    A("v_cmp_eq_u32 vcc, 0, v1")
    for r in range(4): A(f"v_cndmask_b32 v{O+r}, v{O+4+r}, v{O+r}, vcc")
    A("s_mov_b64 exec, 3")
    A(f"buffer_store_dwordx4 {vr(O,4)}, v{VL16}, {S4(WS)}, s{T3} offen sc1")
    A("s_mov_b64 exec, -1")

def x_setup(A, opt, st):
    A(f"s_cmp_lg_u32 s{SWR}, 0"); A("s_cbranch_scc1 L0_xt1")
    ptr(A, SR, 0); srd_hi(A, SR, 2048 * 2048)
    A(f"s_lshl_b32 s{T2}, s{SMI}, 2"); A(f"s_add_u32 s{T2}, s{T2}, s{SA}")
    A(f"v_lshlrev_b32 v{VT}, 11, v1")
    A(f"s_lshl_b32 s{SO+1}, s{T2}, 17"); A(f"s_mov_b32 s{ST+1}, 256")
    A(f"s_add_u32 s{ST+2}, s{SO+1}, {14*128}")
    A("s_branch L0_xt3")
    A.label("L0_xt1")
    A(f"s_cmp_lg_u32 s{SWR}, 1"); A("s_cbranch_scc1 L0_xt2")
    ptr(A, SR, 1); srd_hi(A, SR, 1024 * 6144)
    A("v_lshrrev_b32 v14, 2, v1"); A("v_and_b32 v15, 3, v1")
    A("v_mul_u32_u24 v15, 6144, v15"); A("v_lshl_add_u32 v15, v14, 11, v15")
    A(f"v_mov_b32 v16, {OOB}"); A("v_cmp_gt_u32 vcc, 3, v14"); A(f"v_cndmask_b32 v{VT}, v16, v15, vcc")
    A(f"s_mul_i32 s{T2}, s{SIDX}, {4*6144}"); A(f"s_lshl_b32 s{T3}, s{SXCD}, 8"); A(f"s_add_u32 s{SO+1}, s{T2}, s{T3}")
    A(f"s_mov_b32 s{ST+1}, {128*6144}"); A(f"s_add_u32 s{ST+2}, s{SO+1}, {7*128*6144}")
    A("s_branch L0_xt3")
    A.label("L0_xt2")
    A(f"s_cmp_eq_u32 s{SWR}, 2"); A("s_cbranch_scc1 L0_xt4"); ptr(A, SR, 6); A("s_branch L0_xt5")
    A.label("L0_xt4"); ptr(A, SR, 5); A.label("L0_xt5")
    srd_hi(A, SR, 1024 * 7168)
    A("v_lshrrev_b32 v14, 2, v1"); A("v_and_b32 v15, 3, v1")
    A("v_mul_u32_u24 v15, 7168, v15"); A("v_lshl_add_u32 v15, v14, 8, v15")
    A(f"v_mov_b32 v16, {OOB}"); A("v_cmp_gt_u32 vcc, 4, v14"); A(f"v_cndmask_b32 v{VT}, v16, v15, vcc")
    A(f"s_mul_i32 s{T2}, s{SIDX}, {4*7168}"); A(f"s_mul_i32 s{T3}, s{SXCD}, 896"); A(f"s_add_u32 s{SO+1}, s{T2}, s{T3}")
    A(f"s_mov_b32 s{ST+1}, {128*7168}"); A(f"s_add_u32 s{ST+2}, s{SO+1}, {7*128*7168}")
    A.label("L0_xt3")
    A(f"s_lshl_b32 s{T3}, s{SMI}, 2"); A(f"s_add_u32 s{T3}, s{T3}, s{SWR}")
    A("v_lshrrev_b32 v14, 3, v1"); A("v_and_b32 v15, 7, v1"); A("v_xor_b32 v15, v14, v15")
    A("v_lshlrev_b32 v14, 11, v14"); A(f"v_lshl_add_u32 v{VD}, v15, 4, v14"); A(f"s_lshl_b32 s{SO}, s{T3}, 17")
    A(f"s_lshl_b32 s{M0T}, s{SWR}, 13")
    for k in range(1, 4): A(f"s_add_u32 s{M0T+k}, s{M0T}, {(k>>1)*32768 + (k&1)*4096}")
    st(58)
    A("s_waitcnt lgkmcnt(0)")
    nt = 2 if opt["touch"] else 0
    ns = opt.get("nostat", 0); t0 = opt.get("t0", 1)
    if t0 == 1: emit(A, touch())
    if not ns: rows(A)
    npx = opt.get("npx", 2)
    X = x_dma(opt, 0, 0) + x_dma(opt, 0, 1) + (x_dma(opt, 1, 0) if npx == 3 else [])
    if opt.get("xwait", 0):
        read_bases(A); A("s_waitcnt vmcnt(2)")
    st(2)
    emit(A, X)
    n1 = 0
    if t0 == 2: emit(A, touch()); n1 = 2
    if t0 == 0:
        for x in touch()[1][2]: A(x)
    if nt and not opt.get("t1late"): emit(A, touch()); n1 += 2
    st(60)
    A(f"s_lshl2_add_u32 s{T2}, s2, s{SWR}"); A(f"s_lshl_b32 s{T2}, s{T2}, 7"); A(f"s_add_u32 s{T2}, s{T2}, {FLG}")
    A(f"s_and_b32 s{SKEY}, s{SIDX}, 15")
    if not opt.get("xwait", 0): read_bases(A)
    A("v_mov_b32 v21, 0"); A("v_and_b32 v22, 31, v1"); A("v_lshlrev_b32 v22, 2, v22")
    A(f"buffer_store_dword v21, v22, {S4(WS)}, s{T2} offen sc1")
    if not ns: A(f"s_waitcnt vmcnt({len(X) + n1 + 1})")
    st(59)
    if not ns: stats(A)
    st(3)
    A(f"s_waitcnt vmcnt({len(X) - 8 + n1 + 2 - ns})")
    A("s_barrier")
```

```python
from common import *
from p1 import acc, blocks, PW, VL16, SV, CV, MV, cs_src, C0

VHS = 20
VHO = 21
SHB = 48
IR2 = 12
def LR(tb): return IR2 + 2 * tb

def cor(h, b, tb):
    d = vr(acc(b, tb), 4); c = cs_src(h, b); m = MV + 2 * tb
    if h == 0 and b in (2, 3): c, m = m, c
    return f"v_mfma_f32_16x16x16_bf16 {d}, {vr(c,2)}, {vr(m,2)}, {d}"
def rT(tb): return 208 + 4 * tb
def pk(op, d, a, b, c=None, mod=""):
    s = f"v_pk_{op}_f32 {vr(d,2)}, {vr(a,2)}, {vr(b,2)}"
    if c is not None: s += f", {vr(c,2)}"
    return s + (" " + mod if mod else "")

def gelu8(A, G, U, TB, T, D, M):
    E = range(0, 8, 2)
    for i in E: A(pk("mul", T+i, G[i], G[i]))
    for i in E: A(pk("fma", T+i, T+i, SV+4*TB[i]+2, SV+4*TB[i], "op_sel_hi:[1,0,0]"))
    for i in E: A(pk("mul", T+i, T+i, G[i]))
    for i in E: A(pk("mul", G[i], G[i], U[i]))
    n1 = (len(M) + 1) // 2
    sl = {0: [], 1: [0], 2: [0, 3], 3: [0, 2, 4], 4: [0, 2, 4, 6]}
    for i in range(8):
        if i in sl[n1]: A(M.pop(0))
        A(f"v_exp_f32 v{T+i}, v{T+i}")
    for i in E: A(pk("fma", T+i, T+i, IR2+2*TB[i], IR2+2*TB[i], "op_sel_hi:[1,0,0]"))
    n2 = len(M)
    for i in range(8):
        if i in sl[n2]: A(M.pop(0))
        A(f"v_rcp_f32 v{T+i}, v{T+i}")
    for i in E: A(pk("mul", G[i], G[i], T+i))
    for r in range(4): A(f"v_cvt_pk_bf16_f32 v{D+r}, v{G[2*r]}, v{G[2*r+1]}")

def corder(h):
    return [4, 6, 5, 7, 0, 1, 2, 3, 8, 9] if h == 0 else [2, 4, 3, 5, 0, 1, 6, 8, 7, 9]

def gelus(A, h, opt, vm, consts):
    bl = blocks(h); ix = {k: i for i, k in enumerate(bl)}
    pairs = [(0, 1, 0)] if h == 0 else [(3, 4, 1), (5, 6, 2)]
    groups = []
    for ga, gb, t in pairs:
        for tb in range(4):
            B = [ix[("g", ga)], ix[("g", gb)], ix[("u", ga)], ix[("u", gb)]]
            G = [acc(B[0], tb) + i for i in range(4)] + [acc(B[1], tb) + i for i in range(4)]
            U = [acc(B[2], tb) + i for i in range(4)] + [acc(B[3], tb) + i for i in range(4)]
            pre = []
            if tb == 0:
                pre = [f"s_mul_i32 s{T0}, s{SNI}, {3*16384}", f"s_add_u32 s{T0}, s{T0}, s{SHB}"]
                if t: pre.append(f"s_add_u32 s{T0}, s{T0}, {t*16384}")
            groups.append(([cor(h, b, tb) for b in B], G, U, [tb] * 8, pre,
                           [f"buffer_store_dwordx4 {vr(U[0],4)}, v{VHS}, {S4(WS)}, s{T0} offen offset:{tb*1024} sc1",
                            f"ds_write_b128 v{VHS}, {vr(U[0],4)} offset:{t*16384 + tb*1024}"]))
    if h == 0:
        for tp in range(2):
            g = ix[("g", 2)]; u = ix[("u", 2)]
            G = [acc(g, 2 * tp) + i for i in range(8)]
            U = [acc(u, 2 * tp) + i for i in range(8)]
            pre = [f"s_lshr_b32 s{T0}, s{SNI}, 1", f"s_lshl_b32 s{T0}, s{T0}, 14", f"s_add_u32 s{T0}, s{T0}, s{SHB}", f"s_add_u32 s{T0}, s{T0}, {24*16384}",
                   f"s_and_b32 s{T1}, s{SNI}, 1", f"s_lshl_b32 s{T1}, s{T1}, 9", f"s_add_u32 s{T0}, s{T0}, s{T1}"] if tp == 0 else []
            groups.append(([cor(h, b, 2 * tp + x) for b in (g, u) for x in range(2)], G, U, [2 * tp] * 4 + [2 * tp + 1] * 4, pre,
                           [f"v_permlane16_swap_b32 v{U[0]}, v{U[0]+2}", f"v_permlane16_swap_b32 v{U[0]+1}, v{U[0]+3}",
                            f"buffer_store_dwordx4 {vr(U[0],4)}, v{VHO}, {S4(WS)}, s{T0} offen offset:{tp*2048} sc1"]))
    if h == 0: ex = {n: [cor(h, b, n) for b in range(4)] for n in range(4)}
    else: ex = {n: [cor(h, b, n) for b in range(2)] for n in range(4)}
    consts(A, 0)
    A("s_waitcnt lgkmcnt(6)")
    for m in groups[0][0]: A(m)
    consts(A, 1)
    A("s_waitcnt lgkmcnt(0)")
    gp = opt.get("gp", 8)
    for n, (cs, G, U, TB, pre, post) in enumerate(groups):
        M = (list(groups[n + 1][0]) if n + 1 < len(groups) else []) + ex.get(n, [])
        for x in pre: A(x)
        if h == 1 and n == gp: A("s_setprio 0")
        gelu8(A, G, U, TB, (80, 88)[n & 1], U[0], M)
        for x in post: A(x)
        vm.add("hs")
        if h == 0 and n == 3:
            for tb in range(4): A(f"ds_read_b128 {vr(rT(tb),4)}, v22 offset:{tb*64}")
    if h == 1 and gp >= 8: A("s_setprio 0")

def red8(R, op):
    return ([f"v_permlane32_swap_b32 v{R+i}, v{R+4+i}" for i in range(4)] + [f"{op} v{R+i}, v{R+i}, v{R+4+i}" for i in range(4)] +
            [f"v_permlane16_swap_b32 v{R+i}, v{R+2+i}" for i in range(2)] + [f"{op} v{R+i}, v{R+i}, v{R+2+i}" for i in range(2)])
def bc8(R):
    return ([f"v_mov_b32 v{R+2+i}, v{R+i}" for i in range(2)] + [f"v_permlane16_swap_b32 v{R+i}, v{R+2+i}" for i in range(2)] +
            [f"v_mov_b32 v{R+4+i}, v{R+i}" for i in range(4)] + [f"v_permlane32_swap_b32 v{R+i}, v{R+4+i}" for i in range(4)])

KB = 40; R = 240
def P(tb, k): return 160 + 8 * tb + k
def E(tb, k): return 208 + 8 * tb + k
def PH(tb, sg): return (E, P)[sg](tb, 0)
HQ = [E(t, 4) for t in range(4)] + [P(t, 4) for t in range(4)]
def vb(db, tp): return 192 + 8 * db + 4 * tp

def feat_a(A):
    for tb in range(4):
        for b in range(2):
            for r in range(2):
                A(f"v_cvt_pk_bf16_f32 v{KB+4*tb+2*b+r}, v{acc(b,tb)+2*r}, v{acc(b,tb)+2*r+1}")
        if tb:
            for fb in range(2): A(mfma(P(tb-1, 4*fb), PW + 4 * fb, KB + 4 * tb - 4, "0"))
    for tb in range(4): A(f"v_mul_f32 v{LR(tb)}, {hex(f2u(math.log2(math.e)))}, v{SV+4*tb+1}")
    for fb in range(2): A(mfma(P(3, 4*fb), PW + 4 * fb, KB + 12, "0"))
def v_cvt(A):
    A(f"v_add_u32 v22, {PB}, v{VHS}")
    for db in range(2):
        for tb in range(4):
            for i in (0, 2): A(pk("mul", acc(2+db,tb)+i, acc(2+db,tb)+i, rT(tb)+i))
        for tp in range(2):
            for r in range(4):
                s = acc(2 + db, 2 * tp) + 2 * r
                A(f"v_cvt_pk_bf16_f32 v{vb(db,tp)+r}, v{s}, v{s+1}")
            A(f"ds_write_b128 v22, {vr(vb(db,tp),4)} offset:{(db*2+tp)*1024}")

def pack(tb):
    return [f"v_cvt_pk_bf16_f32 v{X(tb,r)}, v{X(tb,2*r)}, v{X(tb,2*r+1)}" for X in (E, P) for r in range(4)]
def feat_b(h):
    L = []
    for tb in range(4):
        mx = R + 2 * tb; mn = mx + 1
        L += [f"v_max3_f32 v{mx}, v{P(tb,0)}, v{P(tb,1)}, v{P(tb,2)}", f"v_max3_f32 v{mn}, -v{P(tb,0)}, -v{P(tb,1)}, -v{P(tb,2)}"]
    for k in (3, 5):
        for tb in range(4):
            mx = R + 2 * tb; mn = mx + 1
            L += [f"v_max3_f32 v{mx}, v{mx}, v{P(tb,k)}, v{P(tb,k+1)}", f"v_max3_f32 v{mn}, v{mn}, -v{P(tb,k)}, -v{P(tb,k+1)}"]
    for tb in range(4):
        mx = R + 2 * tb; mn = mx + 1
        L += [f"v_max_f32 v{mx}, v{mx}, v{P(tb,7)}", f"v_max_f32_e64 v{mn}, v{mn}, -v{P(tb,7)}"]
    L += red8(R, "v_max_f32") + bc8(R)
    L += [f"v_mul_f32_e64 v{R+i}, v{R+i}, -v{LR(i>>1)}" for i in range(8)]
    def fm(tb):
        o = []
        for k in range(8):
            o += [f"v_fma_f32 v{E(tb,k)}, v{P(tb,k)}, v{LR(tb)}, v{R+2*tb}", f"v_fma_f32 v{P(tb,k)}, v{P(tb,k)}, -v{LR(tb)}, v{R+2*tb+1}"]
        return o
    def after(t):
        if h == 1: return pack(t)
        o = []
        for k in range(1, 8):
            for X, d in ((E, R + 2 * t), (P, R + 2 * t + 1)):
                o.append(f"v_add_f32 v{d}, v{X(t,0) if k == 1 else d}, v{X(t,k)}")
        return o
    L += fm(0)
    for tb in range(4):
        X = (fm(tb + 1) if tb < 3 else []) + (after(tb - 1) if tb else [])
        for k in range(8):
            for Y in (E, P):
                L.append(f"v_exp_f32 v{Y(tb,k)}, v{Y(tb,k)}")
                for _ in range(2):
                    if X: L.append(X.pop(0))
        assert not X
    L += after(3)
    return L

VKT = 252; VKA = 89; VKB = 88
def k_consts():
    return [f"v_lshrrev_b32 v{VKT}, 2, v1", f"v_lshrrev_b32 v92, 4, v1", f"v_xor_b32 v{VKT}, v{VKT}, v92", f"v_and_b32 v{VKT}, 3, v{VKT}",
            f"s_lshl_b32 s{T0}, s{SWR}, 13\nv_lshl_add_u32 v{VKT}, v{VKT}, 3, s{T0}", f"v_and_b32 v92, 15, v1", f"v_lshl_add_u32 v{VKT}, v92, 5, v{VKT}"]
def k_tail():
    L = red8(R, "v_add_f32") + [f"v_rcp_f32 v{R+i}, v{R+i}" for i in range(2)] + bc8(R)
    W = []
    for tb in range(4):
        for sg, X in enumerate((E, P)):
            M = [f"v_mul_f32 v{X(tb,k)}, v{X(tb,k)}, v{R+2*tb+sg}" for k in range(8)]
            L += M[:2] + W + M[2:] + [f"v_cvt_pk_bf16_f32 v{X(tb,r)}, v{X(tb,2*r)}, v{X(tb,2*r+1)}" for r in range(4)]
            o = (tb * 2 + sg) * 2
            W = [f"ds_write2st64_b64 v{VKT}, {vr(PH(tb,sg),2)}, {vr(PH(tb,sg)+2,2)} offset0:{o} offset1:{o+1}"]
    return L + W
KVA = 248; KVZ = 252; VONE = 92
def kv_addrs(h):
    L = [f"v_lshrrev_b32 v{VKB}, 4, v1", f"v_xor_b32 v{VKB}, v{VKB}, v1", f"v_and_b32 v{VKB}, 3, v{VKB}", f"v_and_b32 v{VKA}, 60, v1", f"v_or_b32 v{VKA}, v{VKA}, v{VKB}",
         f"s_lshl_b32 s{T0}, s{SWR}, 9\nv_lshl_add_u32 v{VKA}, v{VKA}, 3, s{T0}", f"v_add_u32 v{VKB}, {PB + h*2048}, v{VL16}"]
    return L
def kv_mm(h):
    def a(k): return 208 + 4 * k
    def b(k): return 192 + 4 * (k & 3)
    def ra(k): return [("ds", f"ds_read_b64_tr_b16 {vr(a(k)+2*x,2)}, v{VKA} offset:{E_PART + (k>>1)*8192 + (2*(k&1)+x)*2048}", f"a{k}") for x in range(2)]
    def rb(k): return [("ds", f"ds_read_b128 {vr(b(k),4)}, v{VKB} offset:{(k>>1)*4096 + (k&1)*1024}", f"b{k}")]
    L = []
    for k in range(4): L += ra(k) + rb(k)
    if h == 0: L += [f"v_mov_b32 v{VONE+r}, 0x3f803f80" for r in range(4)]
    for k in range(8):
        if k < 4: L += ra(4 + k)
        L += [("lw", f"b{k}"), mfma(KVA, a(k), b(k), "0" if k == 0 else None)]
        if h == 0: L.append(mfma(KVZ, a(k), VONE, "0" if k == 0 else None))
        if 1 <= k <= 4: L += rb(3 + k)
    return L
def sum4(a, t):
    return [f"v_mov_b32 v{t}, v{a}", f"v_permlane32_swap_b32 v{a}, v{t}", f"v_add_f32 v{a}, v{a}, v{t}",
            f"v_mov_b32 v{t}, v{a}", f"v_permlane16_swap_b32 v{a}, v{t}", f"v_add_f32 v{a}, v{a}, v{t}"]
def kv_pub(h):
    L = [f"s_lshl3_add_u32 s{T0}, s{SJ}, s{SMI}", f"s_mul_i32 s{T0}, s{T0}, {KVS}", f"s_add_u32 s{T0}, s{T0}, {KVP}", f"s_lshl_b32 s{T1}, s{SW}, 10", f"s_add_u32 s{T1}, s{T1}, s{T0}",
         ("vm", f"buffer_store_dwordx4 {vr(KVA,4)}, v{VL16}, {S4(WS)}, s{T1} offen sc1", "kvp")]
    if h == 0:
        L += [f"s_lshl_b32 s{T1}, s{SWR}, 6", f"s_add_u32 s{T1}, s{T1}, s{T0}", f"s_add_u32 s{T1}, s{T1}, 8192",
              ("vm", f"s_mov_b32 exec_lo, 0x00010001\ns_mov_b32 exec_hi, 0x00010001\nbuffer_store_dwordx4 {vr(KVZ,4)}, v1, {S4(WS)}, s{T1} offen sc1\ns_mov_b64 exec, -1", "kvp")]
    return L
```

```python
from common import *
import p1, p2
from p1 import VL16, emit, SV
from p2 import SHB, VHS, VHO, IR2, HQ, PH, sum4

def acc(tbi, cbi): return 96 + (tbi * 4 + cbi) * 4
def af(st, c): return 24 + st * 32 + c * 4
def bf(st, t): return 24 + st * 32 + 16 + t * 4
VB = 2; VB2 = 4; VW = 6; VDW = 10; VDW2 = 11; VDA = 13; VO4 = (15, 17); VDW3 = 19
VDUM = 90; VS1 = 91; VOUT = 94
TW = 32; TA = 40
SW2B = 49; SM0A = 50; SM0W = 51
SOD = 56; SOB = 57; SWOB = 58; SODW = 59; SXB = 60; SOUT = 61; SD0 = 62; SD1 = 63; SPL = 64; SOUT2 = 66; SWC = 67
SM0H = 55; SFX = 71; SQA = 52; SQW = 53; SPO = 54
NH = 24; NO = 32; NS = 48
TOFF = [0, 48, 80]
ASL = {}
def asl(s): return ASL[s]
def nt(s):
    if s < 3: return 0, s
    if s < 17: return 1 + (s - 3) // 2, 1 + (s - 3) % 2
    return s - 16, 0
OPT = {}

def pre_last(h):
    A = Asm()
    A(f"s_mul_i32 s{SW2B}, s{SKS}, {896*2048}"); A(f"s_lshl_b32 s{T0}, s{SNI}, 8"); A(f"s_add_u32 s{SW2B}, s{SW2B}, s{T0}")
    A(f"s_lshl_b32 s{SHB}, s{SKS}, 3"); A(f"s_add_u32 s{SHB}, s{SHB}, s{SMI}"); A(f"s_mul_i32 s{SHB}, s{SHB}, {28*16384}"); A(f"s_add_u32 s{SHB}, s{SHB}, {HACT}")
    A(f"s_lshr_b32 s{T1}, s{SNI}, 2"); A(f"s_add_u32 s{SPO}, s{SA}, s{T1}"); A(f"s_add_u32 s{SPO}, s{SPO}, 3"); A(f"s_and_b32 s{SPO}, s{SPO}, 3")
    for n in range(8):
        if n == 0: A(f"s_mov_b32 s{T0}, s{SNI}")
        elif n == 7:
            A(f"s_add_u32 s{T0}, s{SPO}, s{T1}"); A(f"s_and_b32 s{T0}, s{T0}, 3"); A(f"s_andn2_b32 s{T2}, 4, s{SNI}"); A(f"s_or_b32 s{T0}, s{T0}, s{T2}")
        else:
            A(f"s_add_u32 s{T0}, s{SPO}, {1 + n // 2}"); A(f"s_and_b32 s{T0}, s{T0}, 3")
            if n & 1: A(f"s_or_b32 s{T0}, s{T0}, 4")
        A(f"s_mul_i32 s{TW+n}, s{T0}, {112*2048}"); A(f"s_add_u32 s{TW+n}, s{TW+n}, s{SW2B}")
        A(f"s_mul_i32 s{TA+n}, s{T0}, {3*16384}"); A(f"s_add_u32 s{TA+n}, s{TA+n}, s{SHB}")
    A(f"s_lshl_b32 s{SM0A}, s{SW}, 11"); A(f"s_lshl_b32 s{SM0W}, s{SW}, 10"); A(f"s_add_u32 s{SM0W}, s{SM0W}, {W2B}")
    A(f"s_lshl_b32 s{T0}, s{SW}, 2"); A("v_lshrrev_b32 v9, 4, v1"); A(f"v_add_u32 v9, s{T0}, v9")
    A("v_and_b32 v21, 7, v9"); A("v_lshlrev_b32 v21, 1, v21"); A("v_and_b32 v22, 15, v1"); A("v_xor_b32 v21, v21, v22")
    A("v_lshlrev_b32 v9, 11, v9"); A(f"v_lshl_add_u32 v{VDW}, v21, 4, v9")
    A("v_lshrrev_b32 v22, 3, v21"); A("v_lshl_add_u32 v9, v22, 16, v9"); A("v_and_b32 v21, 7, v21"); A(f"v_lshl_add_u32 v{VDW2}, v21, 4, v9")
    B = A.lines; A = Asm()
    if h == 1:
        A("v_lshrrev_b32 v9, 3, v1"); A("v_and_b32 v21, 7, v1"); A("v_lshlrev_b32 v21, 7, v21"); A("v_lshl_add_u32 v21, v9, 11, v21")
        A(f"v_mov_b32 v22, {OOB}"); A("v_cmp_gt_u32 vcc, 7, v9"); A("v_cndmask_b32 v8, v22, v21, vcc")
        A(f"s_lshl_b32 s{T0}, s{SKS}, 5"); A(f"s_add_u32 s{T0}, s{T0}, s{SIDX}"); A(f"s_lshl_b32 s{T0}, s{T0}, 2"); A(f"s_add_u32 s{T0}, s{T0}, s{SWR}")
        A(f"s_mul_i32 s{T0}, s{T0}, {7*2048}"); A(f"s_and_b32 s{T1}, s{SXCD}, 1"); A(f"s_lshl_b32 s{T1}, s{T1}, 10"); A(f"s_add_u32 s{T6}, s{T0}, s{T1}")
    else:
        A("v_bfe_u32 v9, v1, 2, 3"); A("v_and_b32 v21, 3, v1"); A("v_lshlrev_b32 v21, 8, v21"); A("v_lshl_add_u32 v8, v9, 11, v21")
        A(f"s_lshl2_add_u32 s{T0}, s{SIDX}, s{SWR}"); A(f"s_lshl_b32 s{T0}, s{T0}, 14")
        A(f"s_and_b32 s{T1}, s{SNI}, 4"); A(f"s_lshl1_add_u32 s{T1}, s{T1}, s{SKSL}"); A(f"s_lshl_b32 s{T1}, s{T1}, 7"); A(f"s_add_u32 s{T6}, s{T0}, s{T1}")
        A("v_and_b32 v7, 0x1fff, v8")
        A(f"s_mul_i32 s{T0}, s{SIDX}, 28"); A(f"s_add_u32 s{T0}, s{T0}, s{SWR}"); A(f"s_add_u32 s{T0}, s{T0}, 8"); A(f"s_lshl_b32 s{T0}, s{T0}, 13"); A(f"s_add_u32 s{T4}, s{T0}, s{T1}")
    A("v_lshlrev_b32 v9, 2, v1")
    A(f"s_lshl_b32 s{T5}, s{SWR}, 11"); A(f"s_add_u32 s{T5}, s{T5}, {STB}")
    A(f"s_mov_b32 s{p1.SPERM}, 0x07060302")
    return A.lines, B
def scalars():
    A = Asm()
    A(f"s_lshr_b32 s{T2}, s{SW}, 2")
    for c in range(4):
        A(f"s_xor_b32 s{T0}, s{SKSL}, {c>>1}"); A(f"s_lshl_b32 s{T0}, s{T0}, 1"); A(f"s_add_u32 s{T0}, s{T0}, s{T2}")
        A(f"s_lshl1_add_u32 s{SWC+c}, s{T0}, {c&1}")
    A(f"s_lshl1_add_u32 s{SWOB}, s{SNI}, s{SKSL}"); A(f"s_lshl_b32 s{SWOB}, s{SWOB}, 7")
    A(f"s_lshr_b32 s{T0}, s{SWR}, 1"); A(f"s_mul_i32 s{T0}, s{T0}, 104"); A(f"s_and_b32 s{T1}, s{SWR}, 1"); A(f"s_lshl2_add_u32 s{T0}, s{T1}, s{T0}")
    A(f"s_mul_i32 s{T1}, s{T2}, 12"); A(f"s_sub_u32 s{T0}, s{T0}, s{T1}"); A(f"s_add_u32 s{T0}, s{T0}, 32"); A(f"s_lshl_b32 s{T0}, s{T0}, 11")
    A(f"s_add_u32 s{SODW}, s{T0}, s{SWOB}")
    A(f"s_xor_b32 s{T0}, s{T2}, s{SKSL}"); A(f"s_lshl_b32 s{T0}, s{T0}, 14")
    A(f"s_lshl1_add_u32 s{T1}, s{SWR}, s{SKSH}"); A(f"s_lshl_b32 s{T3}, s{T1}, 11"); A(f"s_add_u32 s{T0}, s{T0}, s{T3}")
    A(f"s_lshl_b32 s{SOB}, s{SMI}, 19"); A(f"s_add_u32 s{SOB}, s{SOB}, s{T0}"); A(f"s_add_u32 s{SOB}, s{SOB}, {OACT}")
    A(f"s_mul_i32 s{SOD}, s{SMI}, {28*16384}"); A(f"s_add_u32 s{SOD}, s{SOD}, s{T0}"); A(f"s_add_u32 s{SOD}, s{SOD}, {HACT + 24*16384}")
    A(f"s_lshl_b32 s{T0}, s{SMI}, 3"); A(f"s_add_u32 s{T1}, s{T1}, s{T0}"); A(f"s_lshl_b32 s{SOUT}, s{T1}, 16")
    A(f"s_add_u32 s{SOUT}, s{SOUT}, s{SWOB}"); A(f"s_lshl_b32 s{T2}, s{T2}, 6"); A(f"s_add_u32 s{SOUT}, s{SOUT}, s{T2}")
    A(f"s_add_u32 s{SOUT2}, s{SOUT}, 32768"); A(f"s_lshl_b32 s{SM0H}, s{SWR}, 12")
    A(f"s_add_u32 s{T0}, s{T0}, s{SNI}"); A(f"s_mul_i32 s{SXB}, s{T0}, {12*16384}"); A(f"s_add_u32 s{SXB}, s{SXB}, {XCH}")
    return A.lines
def dbg_load():
    return [([], f"buffer_load_dword v21, v9, {S4(DBG)}, 0 offen sc1", [])]
def wo_touch():
    return [([], f"buffer_load_dword v7, v7, {S4(WD)}, s{T4} offen", []), ([], f"buffer_load_dword v8, v8, {S4(WO)}, s{T6} offen", [])]
def t2(opt):
    return [([], f"buffer_load_dword v8, v8, {S4(WD)}, s{T6} offen", [])] if opt["touch"] else []
def dbgcheck(A, O):
    A(f"s_mov_b32 s{T0}, 0x01010101")
    check(A, O, 21, 9, DBG, "0", f"s{T0}")
    A(f"s_mov_b32 m0, s{T5}")
    A(f"s_lshl_b32 s{T0}, s{SMI}, 2"); A(f"s_add_u32 s{T0}, s{T0}, s{SWR}"); A(f"s_lshl_b32 s{T0}, s{T0}, 11"); A(f"s_add_u32 s{T0}, s{T0}, {STAT}")
    A(f"buffer_load_dwordx4 v{VL16}, {S4(WS)}, s{T0} offen sc1 lds")
    A(f"buffer_load_dwordx4 v{VL16}, {S4(WS)}, s{T0} offen offset:1024 sc1 lds")
    A(f"s_lshl_b32 s{T1}, s{SWR}, 12"); A(f"s_add_u32 m0, s{T1}, {RTB}"); A(f"s_add_u32 s{T0}, s{T0}, 20")
    A(f"v_lshlrev_b32 v9, 5, v1")
    A(f"buffer_load_dword v9, {S4(WS)}, s{T0} offen sc1 lds")

def consts(h):
    def f(A, part):
        if part == 0:
            for tb in range(4): A(f"v_mov_b32 v{IR2+2*tb}, v{SV+4*tb+3}")
            A(f"s_lshl_b32 s{T0}, s{SWR}, 12"); A(f"v_add_u32 v{VHS}, s{T0}, v{VL16}")
            if h == 0:
                A("v_and_b32 v21, 15, v1"); A(f"v_lshl_add_u32 v21, v21, 4, s{T0}"); A("v_bfe_u32 v22, v1, 4, 1"); A("v_lshl_add_u32 v21, v22, 10, v21")
                A("v_lshrrev_b32 v22, 5, v1"); A(f"v_lshl_add_u32 v{VHO}, v22, 8, v21")
                A(f"s_add_u32 s{T0}, s{T0}, {RTB}"); A("v_and_b32 v22, 48, v1"); A(f"v_add_u32 v22, s{T0}, v22")
            A(f"v_add_u32 v{VDA}, s{SM0A}, v{VL16}")
            for u in range(2):
                A(f"s_xor_b32 s{T0}, s{SKSH}, {u}"); A(f"s_lshl_b32 s{T1}, s{T0}, 11"); A(f"v_add_u32 v{VB+u}, s{T1}, v{VHS}")
                A(f"v_add_u32 v{VB2+u}, 0x10000, v{VB+u}")
        else:
            A("v_lshrrev_b32 v19, 2, v1"); A("v_and_b32 v15, 3, v1"); A("v_lshlrev_b32 v15, 3, v15"); A("v_lshl_add_u32 v15, v19, 8, v15")
            A(f"v_add_u32 v15, {W2B}, v15"); A("v_and_b32 v19, 7, v19")
            for c in range(4):
                A(f"v_xor_b32 v{VW+c}, s{SWC+c}, v19"); A(f"v_lshl_add_u32 v{VW+c}, v{VW+c}, 5, v15")
    return f
def o_addrs():
    return [f"s_lshl_b32 s{T0}, s{SWR}, 11", f"v_add_u32 v{VO4[0]}, s{T0}, v{VL16}", f"v_add_u32 v{VO4[1]}, 0x10000, v{VO4[0]}",
            f"v_lshrrev_b32 v{VDW3}, 16, v{VDW2}", f"v_mul_u32_u24 v{VDW3}, {192*2048}, v{VDW3}", f"v_add_u32 v{VDW3}, v{VDW3}, v{VDW2}"] + \
           [f"s_lshl_b32 s{SFX}, s{SMI}, 5", f"s_add_u32 s{SFX}, s{SFX}, s{SJ}", f"s_lshl_b32 s{SFX}, s{SFX}, 5", f"s_add_u32 s{SFX}, s{SFX}, s{SW}", f"s_lshl2_add_u32 s{SFX}, s{SFX}, {FX}"]

def quart(d, k, mul, base):
    if OPT.get("norot"): return f"s_add_u32 s{d}, s{base}, {k*mul}"
    return f"s_add_u32 s{d}, s{SA}, {k}\ns_and_b32 s{d}, s{d}, 3\ns_mul_i32 s{d}, s{d}, {mul}\ns_add_u32 s{d}, s{d}, s{base}"
def w_dma(s):
    sl = s % 6
    m0 = f"s_add_u32 m0, s{SM0W}, {sl*8192}"
    if s < NH:
        n, t = nt(s)
        return ([m0, f"s_add_u32 s{SD1}, s{TW+n}, {TOFF[t]*2048}"], f"buffer_load_dwordx4 v{VDW}, {S4(WD)}, s{SD1} offen lds", [])
    if s < NO:
        u = s - NH
        return ([m0, quart(SQW, u >> 1, 896*2048, SODW), f"s_add_u32 s{SD1}, s{SQW}, {(u&1)*448*2048} ; {s}"], f"buffer_load_dwordx4 v{VDW3}, {S4(WD)}, s{SD1} offen lds", [])
    u = s - NO
    return ([m0, quart(SQW, u >> 2, 256*2048, SWOB), f"s_add_u32 s{SD1}, s{SQW}, {(u&3)*64*2048} ; {s}"], f"buffer_load_dwordx4 v{VDW2}, {S4(WO)}, s{SD1} offen lds", [])
def a_dma(s, i):
    m0 = f"s_add_u32 m0, s{SM0A}, {asl(s)*16384}"
    v = VL16
    if s < NH:
        n, t = nt(s); v = VDA
        pre = [f"s_add_u32 s{SD0}, s{TA+n}, {t*16384}"]
    elif s < NO:
        u = s - NH
        pre = [quart(SQA, u >> 1, 8*28*16384, SOD), f"s_add_u32 s{SD0}, s{SQA}, {(u&1)*32768} ; {s}"]
    else:
        u = s - NO
        pre = [quart(SQA, u >> 2, 4*32768, SOB), f"s_add_u32 s{SD0}, s{SQA}, {(u&3)*32768} ; {s}"]
    return ([m0] + pre, f"buffer_load_dwordx4 v{v}, {S4(WS)}, s{SD0} offen offset:{i*1024} sc1 lds", [])
def a_dma4(s, i):
    n, t = nt(s)
    return ([f"s_add_u32 m0, s{SM0H}, {asl(s)*16384}", f"s_add_u32 s{SD0}, s{TA+n}, {t*16384}"],
            f"buffer_load_dwordx4 v{VHS}, {S4(WS)}, s{SD0} offen offset:{i*1024} sc1 lds", [])

def reads(s):
    st = s & 1; sl = asl(s); ws = s % 6
    def wr(c, sec): return f"ds_read_b64_tr_b16 {vr(af(st,c)+2*sec,2)}, v{VW+c} offset:{ws*8192 + sec*4096}"
    if s < NH:
        def br(t): return f"ds_read_b128 {vr(bf(st,t),4)}, v{(VB if sl < 4 else VB2) + (t>>1)} offset:{(sl & 3)*16384 + (t&1)*1024}"
    else:
        def br(t): return f"ds_read_b128 {vr(bf(st,t),4)}, v{VO4[sl >> 2]} offset:{(sl & 3)*16384 + (t>>1)*8192 + (t&1)*1024}"
    return [br(0), wr(0, 0), wr(0, 1), wr(1, 0), wr(1, 1), br(1), wr(2, 0), wr(2, 1), br(2), wr(3, 0), wr(3, 1), br(3)]

def mfmas(s):
    st = s & 1
    if s < NH:
        order = [(0, 0), (0, 1), (1, 0), (1, 1), (0, 2), (1, 2), (2, 0), (2, 1), (2, 2), (0, 3), (1, 3), (2, 3), (3, 0), (3, 1), (3, 2), (3, 3)]
        return [mfma(acc(t, c), af(st, c), bf(st, t), "0" if s == 0 else None) for t, c in order]
    return [mfma(acc(t, c), af(st, 2 * x + c), bf(st, 2 * x + t)) for x in range(2) for t in range(2) for c in range(2)]

def lines(f, *a):
    A = Asm(); f(A, *a); return A.lines
def line3(d, g, base):
    return [f"s_lshl2_add_u32 s{d}, s{SMI}, s{g}", f"s_lshl2_add_u32 s{d}, s{d}, s{SWR}", f"s_lshl_b32 s{d}, s{d}, 7", f"s_add_u32 s{d}, s{d}, {base}"]
def line2(d, kind):
    if kind == "kv": return [f"s_lshl3_add_u32 s{d}, s{SJ}, s{SW}", f"s_lshl_b32 s{d}, s{d}, 7", f"s_add_u32 s{d}, s{d}, {FKV}"]
    return [f"s_lshl2_add_u32 s{d}, s{SMI}, s{SWR}", f"s_lshl_b32 s{d}, s{d}, 7", f"s_add_u32 s{d}, s{d}, {FH0}"]
def signal(kind, tag, b=0):
    d = T7
    if kind == "x": L = [f"s_xor_b32 s{d}, s{SFX}, {b << 10}"]
    elif kind == "kv": L = line2(d, kind) + [f"s_add_u32 s{d}, s{d}, s{SMI}"]
    elif kind == "h0": L = line2(d, kind) + [f"s_add_u32 s{d}, s{d}, s{SJ}"]
    elif kind == "o": L = line3(d, SKS, FO) + [f"s_add_u32 s{d}, s{d}, s{SNI}"]
    else: L = line3(d, SKS, FH1 + 1) + [f"s_lshl1_add_u32 s{d}, s{SPO}, s{d}", f"s_lshr_b32 s{T6}, s{SNI}, 2\ns_sub_u32 s{d}, s{d}, s{T6}"]
    off = f" offset:{b-1}" if b > 1 else ""
    return L + [f"v_mov_b32 v{VS1}, 1", ("wait", tag), ("vm", f"buffer_store_byte v{VS1}, off, {S4(WS)}, s{d}{off} sc1", "sig")]
NP = dict(near=2, h1=2, h=8, kv=2, o0=2, o1=2, o2=2, o3=2, x=1)
def pload(kind):
    n = NP[kind]
    return f"s_buffer_load_dword{'' if n == 1 else 'x' + str(n)} {sr(PR,n)}, {S4(WS)}, s{SFX if kind == 'x' else SPL} glc"
def poll(kind):
    d = SPL
    if kind == "near": L = line3(d, SKS, FH1) + [f"s_add_u32 s{PR+2}, s{SPO}, 1", f"s_lshl_b32 s{PR+2}, s{PR+2}, 4"]
    elif kind == "h1": L = []
    elif kind in ("h", "kv"): L = line2(d, kind)
    elif kind[0] == "o":
        k = int(kind[1])
        L = ([f"s_mov_b32 s{d}, {k}"] if OPT.get("norot") else [f"s_add_u32 s{d}, s{SA}, {k}", f"s_and_b32 s{d}, s{d}, 3"]) + line3(d, d, FO)
    else: L = []
    return [("pbeg",)] + L + [("poll", kind)]
def pcheck(k): return [("check", k)]

GZ = 92
GQ = [192, 196, 200, 204, 248, 252, HQ[0], HQ[4]]
def gather(h):
    L = [f"s_mul_i32 s{T2}, s{SJ}, {8*KVS}", f"s_add_u32 s{T2}, s{T2}, {KVP}"]
    if h == 0:
        L += [f"v_lshrrev_b32 v{GZ+2}, 4, v1", f"v_mul_u32_u24 v{GZ+2}, {KVS}, v{GZ+2}", f"v_and_b32 v{GZ+3}, 15, v1", f"v_lshl_add_u32 v{GZ+2}, v{GZ+3}, 2, v{GZ+2}",
              f"s_lshl_b32 s{T1}, s{SWR}, 6", f"s_add_u32 s{T1}, s{T1}, s{T2}", f"s_add_u32 s{T1}, s{T1}, 8192",
              ("vm", f"buffer_load_dword v{GZ}, v{GZ+2}, {S4(WS)}, s{T1} offen sc1", "g"), f"s_add_u32 s{T1}, s{T1}, {4*KVS}",
              ("vm", f"buffer_load_dword v{GZ+1}, v{GZ+2}, {S4(WS)}, s{T1} offen sc1", "g")]
    L += [f"s_lshl_b32 s{T1}, s{SW}, 10", f"s_add_u32 s{T2}, s{T2}, s{T1}"]
    G = []
    for p in range(8):
        G.append([("vm", f"buffer_load_dwordx4 {vr(GQ[p],4)}, v{VL16}, {S4(WS)}, s{T2} offen sc1", f"g{p}")] + ([f"s_add_u32 s{T2}, s{T2}, {KVS}"] if p < 7 else []))
    return L, G
def gather_sum(h):
    def ad(a, b): return [f"v_add_f32 v{GQ[a]+i}, v{GQ[a]+i}, v{GQ[b]+i}" for i in range(4)]
    L = [("wait", "g1")] + ad(0, 1) + [("wait", "g3")] + ad(2, 3) + ad(0, 2) + [("wait", "g5")] + ad(4, 5) + ad(0, 4) + [("wait", "g7")] + ad(6, 7) + ad(0, 6)
    L += [f"s_lshr_b32 s{T0}, s{SWR}, 1\ns_lshl_b32 s{T0}, s{T0}, 11\ns_and_b32 s{T1}, s{SWR}, 1\ns_lshl3_add_u32 s{T0}, s{T1}, s{T0}\ns_add_u32 s{T0}, s{T0}, {E_KVF + h*1024}\nv_add_u32 v{GZ+2}, s{T0}, v{VL16}"]
    G = GQ[0]
    L += [f"v_cvt_pk_bf16_f32 v{G}, v{G}, v{G+1}", f"v_cvt_pk_bf16_f32 v{G+1}, v{G+2}, v{G+3}", f"ds_write_b64 v{GZ+2}, {vr(G,2)}"]
    if h == 0:
        L += [f"v_add_f32 v{GZ}, v{GZ}, v{GZ+1}"] + sum4(GZ, GZ + 1) + [f"v_cvt_pk_bf16_f32 v{GZ}, v{GZ}, v{GZ}",
              f"s_lshl_b32 s{T0}, s{SWR}, 5\ns_add_u32 s{T0}, s{T0}, {E_ZF}\nv_lshl_add_u32 v{GZ+3}, v{GZ+3}, 1, s{T0}",
              f"ds_write_b16 v{GZ+3}, v{GZ}"]
    else:
        L += [f"v_and_b32 v{GZ+3}, 31, v1", f"v_lshlrev_b32 v{GZ+3}, 2, v{GZ+3}", f"v_add_u32 v{GZ+3}, {E_ZF + 128}, v{GZ+3}", f"v_mov_b32 v{GZ}, 0x3f803f80",
              f"ds_write_b32 v{GZ+3}, v{GZ}"]
    return L
KA = 192; ZA = 240; CC = 248
def o_reads():
    L = [f"v_add_u32 v{GZ+2}, {E_KVF}, v{VL16}", f"v_lshrrev_b32 v{GZ+3}, 4, v1", f"v_lshlrev_b32 v{GZ+3}, 3, v{GZ+3}", f"v_and_b32 v{GZ}, 1, v1",
         f"v_lshl_add_u32 v{GZ+3}, v{GZ}, 7, v{GZ+3}", f"v_add_u32 v{GZ+3}, {E_ZF}, v{GZ+3}"]
    R = [("ds", f"ds_read_b64 {vr(ZA+4*sg+2*sec,2)}, v{GZ+3} offset:{sg*64 + sec*32}", "za") for sg in range(2) for sec in range(2)]
    R += [("ds", f"ds_read_b128 {vr(KA+4*c,4)}, v{GZ+2} offset:{c*1024}", "ka") for c in range(4)]
    return L, R
def o_compute():
    def D(tb, sg): return HQ[4 * sg + tb]
    L = [f"s_lshl_b32 s{T3}, s{SMI}, 5", f"s_add_u32 s{T3}, s{T3}, s{SJ}", f"s_lshl_b32 s{T3}, s{T3}, 14", f"s_add_u32 s{T3}, s{T3}, {OACT}",
         f"v_mov_b32 v{GZ}, {hex(f2u(1e-6))}", ("lw", "za")]
    L += [mfma(D(tb, sg), ZA + 4 * sg, PH(tb, sg), "0") for tb in range(4) for sg in range(2)]
    L += [f"v_rcp_f32 v{CC+2*tb+sg}, v{D(tb,sg)+1}" for tb in range(4) for sg in range(2)]
    L += [f"v_fma_f32 v{D(tb,0)}, v{D(tb,0)}, v{CC+2*tb}, v{GZ}" for tb in range(4)]
    L += [f"v_fma_f32 v{D(tb,0)}, v{D(tb,1)}, v{CC+2*tb+1}, v{D(tb,0)}" for tb in range(4)]
    L += [f"v_rcp_f32 v{D(tb,0)}, v{D(tb,0)}" for tb in range(4)]
    L += [f"v_mul_f32 v{CC+2*tb+sg}, v{CC+2*tb+sg}, v{D(tb,0)}" for tb in range(4) for sg in range(2)]
    N = [HQ[0:4], HQ[4:8], [PH(0, 0), PH(0, 1), ZA, ZA + 4], [PH(1, 0), PH(1, 1), PH(2, 0), PH(2, 1)]]
    def M(tb): return [mfma(N[tb][c], KA + 4 * c, PH(tb, c >> 1), "0") for c in range(4)]
    def V(tb):
        n = N[tb]; o = []
        for db in range(2):
            o += [f"v_mul_f32 v{n[db]+i}, v{n[db]+i}, v{CC+2*tb}" for i in range(4)]
        for db in range(2):
            o += [f"v_fma_f32 v{n[db]+i}, v{n[2+db]+i}, v{CC+2*tb+1}, v{n[db]+i}" for i in range(4)]
        o += [f"v_cvt_pk_bf16_f32 v{n[0]+r}, v{n[r>>1]+2*(r&1)}, v{n[r>>1]+2*(r&1)+1}" for r in range(4)]
        return o + [("vm", f"buffer_store_dwordx4 {vr(n[0],4)}, v{VHS}, {S4(WS)}, s{T3} offen offset:{tb*1024} sc1", "os")]
    def mix(a, b):
        a = list(a); o = []
        for i, x in enumerate(b):
            if a and i % 4 == 0: o.append(a.pop(0))
            o.append(x)
        return o
    return L + [("lw", "ka")] + M(0) + M(1) + mix(M(2), V(0)) + mix(M(3), V(1)) + V(2) + V(3)
XR = 160; XX = 184; Fv = 192
def xch_send(b, t):
    u, v = b >> 1, b & 1
    Pp = acc(2 * u + t, 2 * v)
    L = [f"v_cvt_pk_bf16_f32 v{Pp+r}, v{Pp+2*r}, v{Pp+2*r+1}" for r in range(4)]
    L += [f"s_xor_b32 s{T0}, s{SKS}, {b}", f"s_mul_i32 s{T0}, s{T0}, {3*16384}", f"s_add_u32 s{T0}, s{T0}, s{SXB}"]
    if b > 1: L.append(f"s_add_u32 s{T0}, s{T0}, {(b-1)*16384}")
    return L + [("vm", f"buffer_store_dwordx4 {vr(Pp,4)}, v{VDA}, {S4(WS)}, s{T0} offen offset:{t*1024} sc1", f"xs{b}")]
def xch_recv(b):
    L = [f"s_mul_i32 s{T0}, s{SKS}, {3*16384}", f"s_add_u32 s{T0}, s{T0}, s{SXB}"]
    if b > 1: L.append(f"s_add_u32 s{T0}, s{T0}, {(b-1)*16384}")
    return L + [("vm", f"buffer_load_dwordx4 {vr(XR+8*(b-1)+4*t,4)}, v{VDA}, {S4(WS)}, s{T0} offen offset:{t*1024} sc1", f"xr{b}") for t in range(2)]
def x_load():
    return [f"v_and_b32 v{VOUT}, 15, v1", f"v_lshlrev_b32 v{VOUT}, 11, v{VOUT}", f"v_bfe_u32 v{GZ}, v1, 4, 1", f"v_lshl_add_u32 v{VOUT}, v{GZ}, 5, v{VOUT}",
            f"v_lshrrev_b32 v{GZ}, 5, v1", f"v_lshl_add_u32 v{VOUT}, v{GZ}, 4, v{VOUT}"] + \
           [("vm", f"buffer_load_dwordx4 {vr(XX+4*t,4)}, v{VOUT}, {S4(XS)}, s{(SOUT, SOUT2)[t]} offen", "xx") for t in range(2)]
def x_unpack():
    L = [f"s_mov_b32 s{T4}, 0xffff0000", ("wait", "xx")]
    L += [f"v_permlane16_swap_b32 v{XX+4*t+r}, v{XX+4*t+2+r}" for t in range(2) for r in range(2)]
    for t in range(2):
        for r in range(4):
            lo = Fv + 8 * t + 2 * r
            L += [f"v_lshlrev_b32 v{lo}, 16, v{XX+4*t+r}", f"v_and_b32 v{lo+1}, s{T4}, v{XX+4*t+r}"]
    return L
def final(b):
    L = [("wait", f"xr{b}")]
    for t in range(2):
        for r in range(4):
            s = XR + 8 * (b - 1) + 4 * t + r; lo = Fv + 8 * t + 2 * r; k = 208 + (r & 1) * 2
            L += [f"v_lshlrev_b32 v{k}, 16, v{s}", f"v_and_b32 v{k+1}, s{T4}, v{s}", f"v_add_f32 v{lo}, v{lo}, v{k}", f"v_add_f32 v{lo+1}, v{lo+1}, v{k+1}"]
    return L
def final2(A):
    for t in range(2):
        Pp = acc(t, 0)
        for i in range(8): A(f"v_add_f32 v{Pp+i}, v{Pp+i}, v{Fv+8*t+i}")
        for r in range(4): A(f"v_cvt_pk_bf16_f32 v{Pp+r}, v{Pp+2*r}, v{Pp+2*r+1}")
        for r in range(2): A(f"v_permlane16_swap_b32 v{Pp+r}, v{Pp+2+r}")
        A(f"buffer_store_dwordx4 {vr(Pp,4)}, v{VOUT}, {S4(OUT)}, s{(SOUT, SOUT2)[t]} offen")

def split(L, w):
    tot = sum(w); out = []; a = 0; c = 0
    for x in w:
        c += x; b = round(len(L) * c / tot); out.append(L[a:b]); a = b
    return out
def insert(L, frac, X):
    i = round(len(L) * frac); return L[:i] + X + L[i:]


def x4(x): return isinstance(x, tuple) and x[0] == "vm" and "dwordx4" in x[1]
def cost(L):
    c = 0
    for x in L:
        if isinstance(x, tuple):
            if x[0] not in ("vm", "ds"): continue
            x = x[1]
        for l in x.split("\n"):
            if l.startswith("v_mfma"): c += 4
            elif l.startswith(("v_exp", "v_rcp")): c += 2
            elif l.startswith("v_"): c += 1
    return c
def wsplit(L, w):
    tot = cost(L); sw = sum(w); out = []; i = 0; c = 0; t = 0
    for n, x in enumerate(w):
        t += x; o = []
        while i < len(L) and (c < tot * t / sw - 0.5 or n == len(w) - 1):
            c += cost([L[i]]); o.append(L[i]); i += 1
        out.append(o)
    return out

def params(opt):
    ke = opt.get("kend", 4)
    H = dict(kend=ke, hsig=50, hsig1=-200, hpoll=-100, hchk=30, p1=100, c1=299, p2=(ke + 2) * 100 + 30, c2=(ke + 4) * 100 + 99,
             kvsig=(ke + 3) * 100 + 50, kvpoll=(ke + 5) * 100 + 50, kvchk=ke + 6, kvsum=ke + 11, ono=4,
             osig=(ke + 17) * 100 + 50, opoll=2400, ochk=2599, oad=ke + 3,
             xs=24, xd=2, xsig=3, xpoll=3900, xchk=40, xadd=44, xl=26, xu=35, cap=4, capn=4, cap0=8, pr1=ke + 1)
    for k in H:
        if k in opt: H[k] = opt[k]
    return H
def slots(H):
    free = {0: H["kend"] + 2, 1: H["kend"] + 2, 2: 2, 3: -1, 4: -1, 5: -1}; est = {}
    for g in range(3): ASL[g] = g
    for g in range(3, NS):
        sl = min(free, key=lambda k: free[k]); ASL[g] = sl; est[g] = free[sl]; free[sl] = g
    return est

def post(A, O, h, opt, st):
    vm = VM(); dq = []; state = dict(poll=0)
    for s in range(6): vm.add(f"d{s}")
    def E(x, tag=None):
        for l in x.split("\n"):
            A(l)
            if l.startswith("ds_"): dq.append(tag)
    def put(x):
        if isinstance(x, str): E(x)
        elif x[0] == "vm": A(x[1]); vm.add(x[2])
        elif x[0] == "ds": E(x[1], x[2])
        elif x[0] == "lw":
            assert state["poll"] < 2
            if x[1] in dq: A(f"s_waitcnt lgkmcnt({min(15, dq[::-1].index(x[1]))})")
        elif x[0] == "wait": A(f"s_waitcnt vmcnt({vm.n(x[1])})")
        elif x[0] == "pbeg":
            assert state["poll"] == 0; state["poll"] = 1
        elif x[0] == "poll": A(pload(x[1])); state["poll"] = 2; state["lg"] = min(2, NP[x[1]])
        elif x[0] == "check":
            assert state["poll"] == 2; state["poll"] = 0; dq.clear()
            scheck(A, O, NP[x[1]], pload(x[1]), dict(x=0x010101, near=0x0101).get(x[1], 0x01010101), x[1] == "near")
        else: assert 0, x
    def stamp(i):
        n = len(A.lines); st(i)
        if state["poll"] == 2: A.lines[n:] = [l for l in A.lines[n:] if not l.startswith("s_waitcnt")]
    def sync(tag, i0):
        lg = 0
        if state["poll"] == 2:
            i = max(i for i in range(i0, len(A.lines)) if A.lines[i].startswith("ds_"))
            lg = state["lg"]; A.lines[i + 1:i + 1] = [f"ds_read_b32 v{VDUM}, v{VL16}"] * lg
        if tag: A(f"s_waitcnt vmcnt({vm.n(tag)}) lgkmcnt({lg})"); A("s_barrier")
        else: A(f"s_waitcnt lgkmcnt({lg})")
        dq.clear()
    i0 = len(A.lines)
    if h == 1 and opt.get("gp", 8): A("s_setprio 1")
    p2.gelus(A, h, opt, vm, consts(h))
    st(6)
    p2.feat_a(A)
    if h == 0:
        A("s_waitcnt lgkmcnt(0)"); p2.v_cvt(A)
    H = params(opt); ke = H["kend"]; est = slots(H); kc = H["kvchk"]; ks = H["kvsum"]
    F = {s: [] for s in range(-2, NS)}
    if h == 0:
        S = p2.k_consts() + p2.feat_b(0) + p2.kv_addrs(0) + p2.k_tail()
        w = [opt.get(f"k{i}", d) for i, d in enumerate([0, 40] + [100] * (ke + 1))]
    else:
        S = p2.feat_b(1)
        w = [opt.get(f"q{i}", d) for i, d in enumerate([0, 40] + [0] * (ke + 2) + [40] * (ks - ke - 4) + [20])]
        F[ke] += p2.kv_addrs(1)
    for i, c in enumerate(wsplit(S, w)):
        F[i - 2] += c
        if i < 3: assert not any("ds_write" in x for x in c)
        if h == 1 and i - 2 <= ke + 1: assert not any("v_fma" in x for x in c)
        if h == 1 and i - 2 >= kc + 3: assert not any(x in p2.pack(0) for x in c)
    def at(pos, X):
        s, f = divmod(pos + 200, 100); F[s - 2] = insert(F[s - 2] + [""] * (16 - len(F[s - 2])), f / 100, X)
    def mix(s, X):
        L = F[s] + [""] * (16 - len(F[s])); n = len(L)
        for k in reversed(range(len(X))): L[n * k // len(X):n * k // len(X)] = X[k]
        F[s] = L
    F[ke + 1] += p2.kv_mm(h); F[ke + 2] = p2.kv_pub(h) + F[ke + 2]
    F[H["oad"]] += o_addrs()
    GL, G = gather(h)
    G[0] = GL + G[0]
    mix(kc + 1, G[:3]); mix(kc + 2, G[3:6]); mix(kc + 3, G[6:])
    assert ks >= kc + 5
    GS = gather_sum(h); i5 = GS.index(("wait", "g7"))
    F[ks - 1] += GS[:i5]; F[ks] += GS[i5:]
    if h == 1:
        L, R = o_reads(); F[ks] += L
        for i, c in enumerate(wsplit(R + o_compute(), [1] * H["ono"])): F[ks + 1 + i] += c
    assert H["xl"] > ks + H["ono"]
    F[H["xl"]] += x_load(); F[H["xu"]] += x_unpack()
    ev = [(H["kvsig"], signal("kv", "kvp")), (H["kvpoll"], poll("kv")), (kc * 100 + 99, pcheck("kv"))]
    for k in range(4):
        H[f"o{k}"] = max(H["ochk"], 2599 + 400 * k)
        if k & 1 == h: ev += [(H["opoll"] if k == 0 else H[f"o{k}"] - 299, poll(f"o{k}")), (H[f"o{k}"], pcheck(f"o{k}"))]
    if not opt.get("nox"):
        for b in (1, 2, 3):
            s0 = H["xs"] + 2 * H["xd"] * (b - 1); s1 = s0 + H["xd"]
            F[s0] += xch_send(b, 0); F[s1] += xch_send(b, 1)
            F[s1 + H["xsig"]] += signal("x", f"xs{b}", b)
        ev += [(H["xpoll"], poll("x")), (H["xchk"] * 100 + 99, pcheck("x"))]
        F[H["xchk"] + 1] += [""] * 8 + xch_recv(1); F[H["xchk"] + 2] += xch_recv(2) + xch_recv(3)
        for i, c in enumerate(split(final(1) + final(2) + final(3), [1] * (NS - H["xadd"]))): F[H["xadd"] + i] += c
    if h == 0: ev += [(H["hsig"], signal("h0", "hs")), (H["p2"], poll("h")), (H["c2"], pcheck("h"))]
    else: ev += [(H["hsig1"], signal("h1", "hs")), (H["hpoll"], poll("near")), (H["hchk"], pcheck("near")), (H["p1"], poll("h1")), (H["c1"], pcheck("h1")),
                 (H["osig"], signal("o", "os")), (H["pr1"] * 100, ["s_setprio 1"])]
    for pos, X in sorted(ev, key=lambda e: -e[0]): at(pos, X)
    def known(k, own):
        s, f = divmod(H[dict(near="hchk", h1="c1", h="c2").get(k, k)], 100)
        return (s, k) if own and f < 90 else (s + 1, None)
    items = []
    n4 = opt.get("n4", 3)
    for g in range(3, NS):
        k = "near" if g < 7 else "h1" if g < 17 else "h" if g < NO else f"o{(g - NO) >> 2}"
        e = known(k, g < 3 + n4)
        if est[g] > e[0]: e = (est[g], None)
        if g < 3 + n4:
            if h == 1: items += [(g, 0, a_dma4(g, i), e) for i in range(4)]
        else: items += [(g, 0, a_dma(g, i), e) for i in range(2)]
        if g >= 6: items.append((g, 1, w_dma(g), (g - 6, None)))
    D = {}
    for s in range(-1, NS):
        c = (H["cap0"] if s < 1 else H["cap"] if s < NH else H["capn"]) - sum(x4(x) for x in F[s] if x[2:] != ("xr1",))
        av = [it for it in items if it[3][0] <= s][:max(c, 0)]
        for it in av:
            items.remove(it); assert s <= it[0] - 2, (s, it)
        D[s] = sorted(av, key=lambda it: it[3] == (s, it[3][1]) and it[3][1] is not None)
    assert not items
    if opt.get("v"):
        print(h, "slots", ASL)
        for s in range(-2, NS): print(f"  s{s}: cost {cost(F[s])} n {len(F[s])} dma", " ".join(f"{'AW'[it[1]]}{it[0]}" for it in D.get(s, [])), [x[:2] if x[0] != 'vm' else x[::2] for x in F[s] if isinstance(x, tuple) and x[0] in ("vm", "check", "wait", "poll")])
    live = {}
    def dpre(it):
        for p in it[2][0]:
            r = p.split()[1]
            if live.get(r) != p: A(p); live[r] = p
    def dins(it): A(it[2][1]); vm.add(f"d{it[0]}")

    for x in F[-2]: put(x)
    sync("d0", i0); i0 = len(A.lines)
    stamp(7); stamp(8); stamp(9)
    for r in reads(0): E(r)
    for x in F[-1]: put(x)
    for it in D[-1]: dpre(it); dins(it)
    win = opt.get("win")
    for s in range(NS):
        if s == NH: stamp(10)
        if win is not None and win < s <= win + 24: stamp(13 + 2 * (s - win))
        sync(f"d{s+1}" if s < NS - 1 else None, i0); i0 = len(A.lines)
        if opt.get("st") == 2:
            if win is None: stamp(14 + s)
            elif win <= s <= win + 24: stamp(14 + 2 * (s - win))
        M = mfmas(s); nm = len(M)
        rd = reads(s + 1) if s + 1 < NS else []
        per = 1 if nm == 16 else 2
        fl = list(F[s]); nf = len(fl); done = 0
        dep = [it for it in D[s] if it[3][0] == s and it[3][1]]; ind = [it for it in D[s] if it not in dep]
        lo = opt.get("dlo", 2) if nm == 16 else opt.get("dlon", 1); ic = nm - 1
        if s == H["xchk"] + 1: ic = 4; lo = 0
        if dep:
            j = fl.index(("check", dep[0][3][1]))
            ic = min(i for i in range(nm) if (nf * (i + 1) + nm - 1) // nm > j)
            assert ic < nm - 1
        dpos = {i: [] for i in range(nm)}
        lo = min(lo, ic)
        for k, it in enumerate(ind): dpos[lo + (2 * k + 1) * (ic - lo + 1) // (2 * len(ind))].append(it)
        for k, it in enumerate(dep): dpos[ic + 1 + k * (nm - ic - 1) // len(dep)].append(it)
        for i, m in enumerate(M):
            if dpos[i]: dpre(dpos[i][0])
            A(m)
            for _ in range(per):
                if rd: E(rd.pop(0))
            for k, it in enumerate(dpos[i]):
                if k: dpre(it)
                dins(it)
            while done < (nf * (i + 1) + nm - 1) // nm:
                put(fl[done]); done += 1
        assert not rd and done == nf
    st(11)
    final2(A)
```

```python
from common import *
import p1, p2, p3

def kernel(opt):
    p3.OPT.update(opt); p1.SNAKE = opt.get("snake", 1)
    A = Asm(); O = Asm(); lab = NAME + "_kernel"
    st = Stamper(A, opt.get("st", 0))
    header(A, lab)
    p1.entry(A, st, opt)
    A(f"s_cmp_ge_u32 s{SW}, 4"); A("s_cbranch_scc1 L0_x")
    for h in range(2):
        if h == 0: p1.w_setup(A, opt, st)
        else:
            A.label("L0_x"); st.last = 1
            p1.x_setup(A, opt, st)
            if opt.get("prio"): A("s_setprio 1")
        st(4)
        for r in p1.next_reads(h, 0): A(r)
        A("s_waitcnt lgkmcnt(0)")
        hooks = dict(pre_last=p3.pre_last(h), scalars=p3.scalars(), t2=p3.t2(opt), wot=p3.wo_touch(), dbg=p3.dbg_load(), dbgcheck=lambda A: p3.dbgcheck(A, O), w2=[p3.w_dma(s) for s in range(6)], corder=p2.corder(h))
        p1.mainloop(A, O, h, opt, hooks)
        if opt.get("st") == 3: st.last = 45
        st(5)
        p3.post(A, O, h, opt, st)
        if h == 0: A("s_branch L3_end" if st.on else "s_endpgm")
    A.label("L3_end")
    st(12); st(13, True); st.out(14)
    A.label("L_end")
    A("s_endpgm")
    O.label("L_last"); O("s_endpgm")
    return lab, A.lines + O.lines

def build(path, opt):
    lab, lines = kernel(opt)
    lines, tot = pad(lines, opt.get("v", 0))
    print(f"{len(lines)} lines, {tot} pad states, lds {LDS_BYTES}")
    txt = f"; @launch grid=(256,1,1) block=(512,1,1) lds={LDS_BYTES}\n" + '.amdgcn_target "amdgcn-amd-amdhsa--gfx950"\n.text\n'
    for l in lines:
        txt += (l if (l.endswith(":") or l.startswith(".")) else " " + l) + "\n"
    txt += '.section .rodata,"a"\n' + desc(lab, 256, 102)
    open(path, "w").write(txt)

if __name__ == "__main__":
    opt = dict(touch=1, s1a=8, sp1a=2, s1b=8, sp1b=2)
    for a in sys.argv[2:]:
        k, v = a.split("="); opt[k] = int(v)
    build(sys.argv[1], opt)
```

```python
from common import *

ACC0 = 96
def acc(b, tb): return ACC0 + (b * 4 + tb) * 4
def afr(hs, i): return 24 + hs * 20 + i * 4
def bfr(par, tb): return 64 + par * 16 + tb * 4
VX = 2; VQ = 4; VG = 6; VD = 7; VL16 = 0
SEL = 12; CSA = 16; VCW = 9
VPA = 2; VSA = 3; VMA = 4
SV = 24
MV = 72
CV = 40
SPERM = 65
VT = 8; VTD = 9
PW = 64

def blocks(h):
    if h == 0:
        return [("q", 2), ("q", 3), ("q", 4), ("q", 5), ("g", 0), ("u", 0), ("g", 1), ("u", 1), ("g", 2), ("u", 2)]
    return [("q", 0), ("q", 1), ("g", 3), ("u", 3), ("g", 4), ("u", 4), ("g", 5), ("u", 5), ("g", 6), ("u", 6)]

def a_reads(h, hs, slot):
    R = []
    for i in range(5):
        kind, idx = blocks(h)[hs * 5 + i]
        for sec in range(2):
            d = vr(afr(hs, i) + 2 * sec, 2)
            if kind == "q":
                R.append(f"ds_read_b64_tr_b16 {d}, v{VQ + (idx & 1)} offset:{slot*QS + sec*16*192 + (idx>>1)*64}")
            else:
                R.append(f"ds_read_b64_tr_b16 {d}, v{VG} offset:{slot*GS + (UPO if kind == 'u' else 0) + sec*16*224 + idx*32}")
    return R

def b_reads(s):
    return [f"ds_read_b128 {vr(bfr(s & 1, tb), 4)}, v{VX + (s & 1)} offset:{((s >> 1) & 1)*32768 + tb*2048}" for tb in range(4)]

def next_reads(h, s):
    B = b_reads(s); Ar = a_reads(h, 0, s & 3)
    return [B[0], Ar[0], Ar[1], B[1], B[2], B[3]] + Ar[2:]

SNAKE = 1
def mfmas(h, hs, par, c=None):
    M = []
    for i in range(5):
        b = hs * 5 + i
        for tb in (range(4) if b % 2 == 0 or not SNAKE else range(3, -1, -1)):
            if h == 0 and b in (2, 3):
                M.append(mfma(acc(b, tb), bfr(par, tb), afr(hs, i), c))
            else:
                M.append(mfma(acc(b, tb), afr(hs, i), bfr(par, tb), c))
    return M

def w_dma(slot):
    return [([f"s_mov_b32 m0, s{M0T+slot*5+i}"],
             f"buffer_load_dwordx4 v{VD+i}, {S4(SR+4*i)}, s{SO+i} offen lds",
             [f"s_add_u32 s{SO+i}, s{SO+i}, s{ST+i}"]) for i in range(5)]

def x_dma(opt, xslot, half):
    PS = 16384; CS = 128
    D = []
    for i in range(4):
        pre = [f"s_mov_b32 m0, s{M0T + xslot*2 + half}"] if i == 0 else []
        if i < 3: inc = PS - 1024
        elif half == 0: inc = 4 * PS - 3 * (PS - 1024)
        else: inc = CS - 4 * PS - 3 * (PS - 1024)
        post = [f"s_add_u32 s{SO}, s{SO}, {inc & 0xffffffff:#x}"] if inc else []
        D.append((pre, f"buffer_load_dwordx4 v{VD}, {S4(XS)}, s{SO} offen offset:{i*1024} lds", post))
    return D

def touch(n=2):
    return [([], f"buffer_load_dword v{VTD}, v{VT}, {S4(SR)}, s{SO+1} offen sc1",
             [f"s_add_u32 s{SO+1}, s{SO+1}, s{ST+1}", f"s_min_u32 s{SO+1}, s{SO+1}, s{ST+2}"])] * n

def emit(A, D):
    for pre, ins, post in D:
        for p in pre: A(p)
        A(ins)
        for p in post: A(p)

def step(A, M, rd, dm, spread=1, ins={}, fill=(), first=False, fper=2, start=None):
    rd = list(rd); nd = len(dm); n = len(M); fill = list(fill)
    pos = {}
    if first: emit(A, dm)
    else:
        if start is not None and start + (nd - 1) * spread <= n - 1:
            for k in range(nd): pos[start + k * spread] = k
        else:
            if (nd - 1) * spread > n - 1: spread = 2
            for k in range(nd): pos[n - 1 - (nd - 1 - k) * spread] = k
    if -1 in ins: ins[-1]()
    for i, m in enumerate(M):
        if i in pos:
            for p in dm[pos[i]][0]: A(p)
        A(m)
        if rd: A(rd.pop(0))
        if i in pos:
            A(dm[pos[i]][1])
            for p in dm[pos[i]][2]: A(p)
        if i in ins: ins[i]()
        for _ in range(fper):
            if fill: A(fill.pop(0))
    assert not rd and not fill, (len(rd), len(fill))

def phi_reads():
    return [f"ds_read_b64_tr_b16 {vr(PW + 4*fb + 2*sec, 2)}, v{VPA} offset:{sec*1024 + fb*32}" for fb in range(2) for sec in range(2)]
def stat_reads():
    return ([f"ds_read_b64 {vr(MV + 2*tb, 2)}, v{VMA} offset:{tb*512}" for tb in range(4)] +
            [f"ds_read_b128 {vr(SV + 4*tb, 4)}, v{VSA} offset:{tb*512 + 16}" for tb in range(4)])
def split3(A, c, d, t):
    A(f"v_and_b32 v{t}, 0xffff0000, v{c}"); A(f"v_sub_f32 v{t}, v{c}, v{t}")
    A(f"v_perm_b32 v{d}, v{t}, v{c}, s{SPERM}")
    A(f"v_and_b32 v{d+2}, 0xffff0000, v{t}"); A(f"v_sub_f32 v{t}, v{t}, v{d+2}")
    A(f"v_perm_b32 v{d+2}, v{c}, v{t}, s{SPERM}")
    A(f"v_mov_b32 v{d+1}, v{d}")

SIX = 20
def smf(b): return f"v_smfmac_f32_16x16x64_bf16 {vr(CSA,4)}, {vr(SEL,4)}, {vr(afr(0,0)+4*b,8)}, v{SIX}"
def cs_pairs(h, wr):
    return [[0], [2], [6, 4] if h == 0 else [6], [8] if h == 0 else [8, 4]][wr]
def colsum(A, O, h, wrs, par):
    lb = uid("cb"); lab = {w: uid("cs") for w in wrs}
    if len(wrs) == 2:
        A(f"s_cmp_lt_u32 s{SWR}, 2" if wrs[0] == 0 else f"s_cmp_ge_u32 s{SWR}, 2")
        A(f"s_cbranch_scc1 {lab[wrs[0]]}"); A.label(lb)
        grp = [wrs]
    else:
        A(f"s_cmp_ge_u32 s{SWR}, 2"); A(f"s_cbranch_scc1 {lab[2]}")
        A(f"s_bitcmp1_b32 s{SWR}, 0"); A(f"s_cbranch_scc1 {lab[1]}")
        A(smf(0)); A.label(lb)
        O.label(lab[1]); O(smf(2)); O(f"s_branch {lb}")
        grp = [[2, 3]]
    for g in grp:
        O.label(lab[g[0]])
        O(f"s_bitcmp1_b32 s{SWR}, 0"); O(f"s_cbranch_scc1 {lab[g[1]]}")
        for w in g:
            if w & 1: O.label(lab[w])
            sl = cs_pairs(h, w)
            if par: sl = sl[::-1]
            for n, b in enumerate(sl):
                if n:
                    for r in range(4): O(f"v_mov_b32_dpp v{SEL+r}, v{SEL+r} row_ror:{12 if par else 4} row_mask:0xf bank_mask:0xf")
                O(smf(b))
            O(f"s_branch {lb}")
def cs_off(h, b):
    for wr in range(4):
        sl = cs_pairs(h, wr)
        if b & ~1 in sl: return CSB + (4 * h + wr) * 2048 + (b & 1) * 1024 + sl.index(b & ~1) * 256
def cs_src(h, b): return CV + 2 * b

def dbg_signal(A, O):
    lo = uid("dg"); lb = uid("db")
    A(f"s_sub_u32 s{SKEY}, s{SKEY}, 1"); A(f"s_cbranch_scc1 {lo}"); A.label(lb)
    O.label(lo)
    O("v_mov_b32 v22, 0"); O("v_mov_b32 v21, 1")
    O(f"buffer_store_byte v21, v22, {S4(DBG)}, s2 offen sc1")
    O(f"s_branch {lb}")

def dbg_poll(A, O):
    lo = uid("dp"); lb = uid("dq")
    A(f"s_cmp_eq_u32 s{SCNT}, 1"); A(f"s_cbranch_scc1 {lo}"); A.label(lb)
    O.label(lo)
    O("v_lshlrev_b32 v22, 2, v1")
    O(f"buffer_load_dword v21, v22, {S4(DBG)}, 0 offen sc1")
    O(f"s_branch {lb}")

def late_addrs():
    A = Asm()
    A("v_lshrrev_b32 v21, 2, v1"); A("v_lshlrev_b32 v21, 6, v21"); A("v_and_b32 v22, 3, v1"); A("v_lshl_add_u32 v21, v22, 3, v21")
    A(f"v_add_u32 v{VPA}, {PB}, v21")
    A("v_and_b32 v21, 15, v1"); A(f"v_lshl_add_u32 v{VSA}, v21, 5, s{T5}")
    A("v_bfe_u32 v22, v1, 4, 1"); A(f"v_lshl_add_u32 v{VMA}, v22, 3, v{VSA}")
    A("v_lshlrev_b32 v21, 4, v21"); A("v_lshl_add_u32 v21, v22, 3, v21")
    A("v_lshrrev_b32 v22, 5, v1"); A("v_lshl_add_u32 v5, v22, 9, v21")
    A(f"s_lshl_b32 s{T0}, s{SW}, 11"); A(f"v_add_u32 v{VCW}, s{T0}, v{VL16}")
    return A.lines
VCR = 5

def cs_inline(A, h, wr, par):
    sl = cs_pairs(h, wr)
    if par: sl = sl[::-1]
    def first():
        A(smf(sl[0]))
    def rot():
        for r in range(4): A(f"v_mov_b32_dpp v{SEL+r}, v{SEL+r} row_ror:{12 if par else 4} row_mask:0xf bank_mask:0xf")
    def second():
        A(smf(sl[1]))
    return [first] if len(sl) == 1 else [first, rot, second]

FS = {
 1: ("01|P||23|||45||6|7|8||9||a||b", "tab|t||cd|t||ab|tt||c>d|t||a|b|t||c"),
 2: ("01|P||23|||45|||67|8||9||a||b", "tab|t||cd|t||ab|t||cd|tt||a|b|t||c"),
 3: ("01|P|>2|3|||45|||67|8||9||a||b", "tabt||>c|d|t||ab|t||cd|tt||a|b|t||c"),
 4: ("0|1P||23|||45|||67|8||9||a||b", "tab|>t||cd|t||ab|t||cd|tt||a|b|t||c"),
 5: ("01|P||23||||45|6|7|8||9||a||b", "tab|t||cd|tt|||ab|ct|d|t||a|b|t||c"),
 6: ("0P|12|3||45||6||7||8||9||a||b", "ttab|cd|>t||a|b|tt||c|d|t||a|b|t||c"),
 7: ("0P|12|3|||45|6||7||8||9||a||b", "ttab|cd|>t|||ab|tt||c|d|t||a|b|t||c"),
}
def fsq(h, opt):
    q = FS[opt["fs"]][h].split("|"); assert len(q) == 17
    return q
def phi_dma():
    SPH = T4 - 1
    return [([f"s_lshl_b32 s{T0}, s{SJ}, 2", f"s_add_u32 s{T0}, s{T0}, s{SW}", f"s_lshl_b32 s{T0}, s{T0}, 9", f"s_lshl_b32 s{T1}, s{SW}, 9", f"s_add_u32 m0, s{T1}, {PB}", ],
             f"s_mov_b32 exec_hi, 0\nbuffer_load_dwordx4 v{VL16}, {S4(SPH)}, s{T0} offen lds\ns_mov_b32 exec_hi, -1", [])]
def fsd(h, t, opt):
    if t == ">": return []
    if h == 0 and t != "P": return w_dma(int(t, 16) & 3)
    if t == "t": return touch(1)
    if t == "P": return phi_dma()
    return x_dma(opt, "abcd".index(t) >> 1, "abcd".index(t) & 1)
def fsvm(h, opt, slot):
    q = "".join(fsq(h, opt)[:2 + 2 * slot])
    if slot < 0: q = fsq(h, opt)[0]
    if h == 0: i = q.index(f"{slot + 1:x}")
    elif slot & 1 == 0: return None
    else:
        c = "d" if slot & 3 == 1 else "b"
        assert q.count(c) == (slot + 1) // 4 + 1, (q, slot)
        i = q.rindex(c)
    return sum(len(fsd(h, t, opt)) for t in q[i + 1:])

def mainloop(A, O, h, opt, hooks):
    sp = opt.get("spread", 2)
    c0 = opt.get(f"cs{h}a", 4); c1 = opt.get(f"cs{h}b", 4)
    nt = 2 if opt["touch"] else 0
    npw = opt.get("npw", 2); npx = opt.get("npx", 2)
    def stage(slot, mode, wr=None):
        last = mode == "last"; first = mode == "first"; fa = opt.get("fs") and mode in ("first", "second"); sg = slot + 4 * (mode == "second")
        d0 = []; d1 = []; vm = None; f0 = []; par = slot & 1; s0 = sp
        if wr is None:
            i0 = {c0: lambda: colsum(A, O, h, [0, 1], par)}; i1 = {c1: lambda: colsum(A, O, h, [2, 3], par)}
        else:
            L = cs_inline(A, h, wr, par); c = c0 if wr < 2 else c1
            ii = {c + 2 * n: f for n, f in enumerate(L)}
            i0, i1 = (ii, {}) if wr < 2 else ({}, ii)
        if opt.get("nocs"): i0 = {}; i1 = {}
        if last and slot == 0: f0 = hooks["pre_last"][0]
        if last and slot == 2: f0 = hooks["pre_last"][1]
        if last and slot == 3: f0 = late_addrs()
        if h == 0:
            if wr == 3: i0[2 if c0 != 2 else 3] = lambda: dbg_signal(A, O)
            if not last: d1 = w_dma(slot); vm = 10
            else:
                vm = [10, 7, 2, 0][slot]
                if slot == 0: d1 = hooks["wot"]
            if first:
                g = npw + 2 * slot if npw + slot < 4 else None
                if g is not None:
                    d0 = w_dma(g & 3); d1 = w_dma((g + 1) & 3)
                    vm = 5 * (g - slot - 1) + (1 if slot + 1 < npw else 0)
                elif slot + 1 < npw: vm = 11
        else:
            if wr == 3 and slot == opt.get("dps", 2): i0[0] = lambda: dbg_poll(A, O)
            if slot == 0:
                d0 = x_dma(opt, 1, 1)
                if not last: d1 = touch() if nt else []
                else: d1 = hooks["dbg"] + hooks["t2"]
                if first and npx == 2: d0 = x_dma(opt, 1, 0) + d0
                if first and opt.get("t1late"): d1 = d1 + touch()
            elif slot == 1:
                vm = nt if not last else len(hooks["t2"]) + len(hooks["dbg"])
                if first and opt.get("t1late"): vm = 2 * nt
                if not last: d1 = x_dma(opt, 0, 0)
            elif slot == 2:
                if not last: d0 = x_dma(opt, 0, 1)
            else:
                vm = 0
                if not last: d1 = x_dma(opt, 1, 0)
        if fa:
            q = fsq(h, opt)
            d0 = [d for t in q[1 + 2 * sg] for d in fsd(h, t, opt)]; d1 = [d for t in q[2 + 2 * sg] for d in fsd(h, t, opt)]
            vm = fsvm(h, opt, sg)
        cz = "0" if first and slot == 0 else None
        def fp(d, late): return dict(spread=1 if len(d) > 8 else 2, start=None if late else 0)
        if fa: step(A, mfmas(h, 0, par, cz), a_reads(h, 1, slot), d0, ins=i0, fill=f0, fper=4, **fp(d0, ">" in q[1 + 2 * sg]))
        else: step(A, mfmas(h, 0, par, cz), a_reads(h, 1, slot), d0, opt.get(f"sp{h}a", s0), i0, f0, fper=4, start=opt.get(f"s{h}a"))
        A(f"s_waitcnt vmcnt({vm}) lgkmcnt(0)" if vm is not None else "s_waitcnt lgkmcnt(0)")
        A("s_barrier")
        if opt.get("st") == 3:
            A(f"s_mov_b32 m0, s{T7}"); A("s_nop 3"); A(f"v_writelane_b32 v{VST}, s100, m0"); A("s_memtime s[100:101]")
            if first and slot == 0: A(f"s_mov_b32 s{T7}, 14")
            else: A(f"s_add_u32 s{T7}, s{T7}, 1")
        if last and slot == 3:
            F = Asm()
            F(f"v_add_f32 v{CSA}, v{CSA}, v{CSA+1}"); F(f"v_add_f32 v{CSA+2}, v{CSA+2}, v{CSA+3}")
            F(f"v_mov_b32 v{SEL+3}, 0"); F("v_mov_b32 v43, 0")
            for g in range(2):
                d = (SEL, 40)[g]
                split3(F, CSA + 2 * g, d, CSA + 2 * g + 1)
                F(f"ds_write_b128 v{VCW}, {vr(d,4)} offset:{CSB + g*1024}")
            ii = {-1: list(i1.values())[0]} if i1 else {}
            step(A, mfmas(h, 1, 1), phi_reads() + stat_reads(), hooks["w2"], 2, ii, ["s_nop 0"] * 4 + F.lines)
            A("s_waitcnt lgkmcnt(0)"); A("s_barrier")
            for b in hooks["corder"]: A(f"ds_read_b64 {vr(cs_src(h,b),2)}, v{VCR} offset:{cs_off(h,b)}")
        elif fa:
            step(A, mfmas(h, 1, par, cz), next_reads(h, slot + 1), d1, ins=i1, **fp(d1, ">" in q[2 + 2 * sg]))
            if sg < 7: A("s_waitcnt lgkmcnt(0)")
        else:
            step(A, mfmas(h, 1, par, cz), next_reads(h, slot + 1), d1, opt.get(f"sp{h}b", 1 if len(d1) > 3 else sp), i1, hooks["scalars"] if last and slot == 2 else (), fper=3, start=opt.get(f"s{h}b"))
            if not (first and slot == 3): A("s_waitcnt lgkmcnt(0)")
    if opt.get("st") == 3: A(f"s_mov_b32 s{T7}, 4")
    for slot in range(4): stage(slot, "first")
    if opt.get("fs"):
        for slot in range(4): stage(slot, "second")
    A(f"s_mov_b32 s{SCNT}, {5 if opt.get('fs') else 6}")
    A(f"s_cmp_ge_u32 s{SWR}, 2"); A(f"s_cbranch_scc1 L1_d{h}")
    for wr in range(4):
        if wr == 2: A.label(f"L1_d{h}")
        if wr in (0, 2):
            A(f"s_bitcmp1_b32 s{SWR}, 0"); A("s_waitcnt lgkmcnt(0)"); A(f"s_cbranch_scc1 L1_loop{h}{wr+1}")
        A.label(f"L1_loop{h}{wr}")
        for slot in range(4): stage(slot, "mid", wr)
        A(f"s_sub_u32 s{SCNT}, s{SCNT}, 1"); A(f"s_cmp_lg_u32 s{SCNT}, 0"); A(f"s_cbranch_scc1 L1_loop{h}{wr}")
        if wr < 3: A(f"s_branch L1_last{h}")
        elif h == 1: hooks["dbgcheck"](A)
    A.label(f"L1_last{h}")
    for slot in range(4): stage(slot, "last")

def divmod_v(A, q, r, n, d, t):
    m = (65536 + d - 1) // d
    for x in range(1024): assert (x * m) >> 16 == x // d
    A(f"v_mul_u32_u24 v{q}, {m}, v{n}"); A(f"v_lshrrev_b32 v{q}, 16, v{q}")
    A(f"v_mul_u32_u24 v{t}, {d}, v{q}"); A(f"v_sub_u32 v{r}, v{n}, v{t}")

def read_bases(A):
    A("v_lshrrev_b32 v14, 4, v1"); A("v_lshrrev_b32 v15, 2, v1"); A("v_and_b32 v16, 3, v1")
    A("v_and_b32 v17, 15, v1"); A("v_and_b32 v18, 7, v1"); A("v_xor_b32 v18, v14, v18")
    A(f"s_lshl_b32 s{T0}, s{SWR}, 13")
    A(f"v_lshlrev_b32 v17, 7, v17"); A(f"v_add_u32 v17, s{T0}, v17")
    A(f"v_lshl_add_u32 v{VX}, v18, 4, v17"); A("v_xor_b32 v18, 4, v18"); A(f"v_lshl_add_u32 v{VX+1}, v18, 4, v17")
    A("v_mul_u32_u24 v17, 192, v15"); A("v_lshl_add_u32 v17, v16, 3, v17"); A(f"v_add_u32 v17, {QB}, v17")
    A("v_and_b32 v18, 1, v14"); A(f"v_lshl_add_u32 v{VQ}, v18, 5, v17"); A("v_xor_b32 v18, 1, v18"); A(f"v_lshl_add_u32 v{VQ+1}, v18, 5, v17")
    A("v_mul_u32_u24 v17, 224, v15"); A("v_lshl_add_u32 v17, v16, 3, v17"); A(f"v_add_u32 v{VG}, {GB}, v17")
    A("v_bfe_u32 v17, v1, 1, 3"); A("v_lshrrev_b32 v18, 5, v1"); A("v_cmp_eq_u32 vcc, v17, v18"); A("v_mov_b32 v17, 0x3f803f80")
    for r in range(4): A(f"v_cndmask_b32 v{SEL+r}, 0, v17, vcc")
    A("v_and_b32 v17, 1, v1"); A("v_mul_u32_u24 v17, 0xaaaa, v17"); A(f"v_add_u32 v{SIX}, 0x4444, v17")
    for r in range(4): A(f"v_mov_b32 v{CSA+r}, 0")

PX, PQ, PPH, PWO, PG, PU, PD, POUT, PDBG, PWS = 52, 54, 56, 58, 62, 64, 66, 68, 70, 72
KA = 0

def srd_hi(A, d, size):
    A(f"s_mov_b32 s{d+2}, {size}"); A(f"s_mov_b32 s{d+3}, 0x20000")
def ptr(A, d, slot): A(f"s_load_dwordx2 s[{d}:{d+1}], s[0:1], {slot*8}")

def entry(A, st, opt):
    A("s_cmp_ge_u32 s2, 256"); A("s_cbranch_scc1 L_end")
    ptr(A, XS, 0)
    if opt.get("cpf", 1):
        A(f"s_getpc_b64 s[{T1}:{T2}]"); A.label("L_pc")
        A(f"s_bfe_u32 s{T0}, s2, 0x30003"); A(f"s_lshl_b32 s{T0}, s{T0}, 13")
        A("v_and_b32 v1, 63, v0"); A("v_lshrrev_b32 v2, 6, v0")
        A("v_lshlrev_b32 v3, 7, v1"); A("v_lshl_add_u32 v3, v2, 16, v3"); A(f"v_add_u32 v3, s{T0}, v3")
        A(f"v_cmp_gt_u32 vcc, L_last-L_pc, v3"); A(f"v_mov_b32 v5, s{T2}")
        A(f"s_and_saveexec_b64 s[{T3}:{T4}], vcc"); A("s_cbranch_execz L_nopf")
        A(f"v_add_co_u32 v4, vcc, s{T1}, v3"); A("v_addc_co_u32 v5, vcc, 0, v5, vcc")
        A("global_load_dword v22, v[4:5], off")
        A.label("L_nopf")
        A("s_mov_b64 exec, -1")
    else:
        A("v_and_b32 v1, 63, v0"); A("v_lshrrev_b32 v2, 6, v0")
    st(0, True)
    ptr(A, WS, 10); ptr(A, DBG, 9); ptr(A, WO, 3); ptr(A, WD, 7); ptr(A, OUT, 8)
    A(f"v_readfirstlane_b32 s{SW}, v2")
    A(f"s_and_b32 s{SXCD}, s2, 7"); A(f"s_lshr_b32 s{SIDX}, s2, 3")
    A(f"s_and_b32 s{SA}, s{SIDX}, 3"); A(f"s_lshr_b32 s{SMI}, s{SIDX}, 2")
    A(f"s_lshl_b32 s{SJ}, s{SXCD}, 2"); A(f"s_add_u32 s{SJ}, s{SJ}, s{SA}")
    A(f"s_lshr_b32 s{SKS}, s{SJ}, 3"); A(f"s_and_b32 s{SNI}, s{SJ}, 7")
    A(f"s_lshr_b32 s{SKSH}, s{SKS}, 1"); A(f"s_and_b32 s{SKSL}, s{SKS}, 1")
    A(f"v_lshlrev_b32 v{VL16}, 4, v1")
    A(f"s_and_b32 s{SWR}, s{SW}, 3")
    A(f"s_lshl_b32 s{SK1}, s{SMI}, 5"); A(f"s_add_u32 s{SK1}, s{SK1}, s{SJ}"); A(f"s_lshl_b32 s{SK1}, s{SK1}, 3"); A(f"s_add_u32 s{SK1}, s{SK1}, s{SW}")
    srd_hi(A, XS, 2048 * 2048); srd_hi(A, WS, WS_BYTES); srd_hi(A, DBG, 256); srd_hi(A, WO, 1024 * 2048)
    srd_hi(A, WD, 3584 * 2048); srd_hi(A, OUT, 2048 * 2048)
    st(1)

def rows(A):
    A(f"s_lshl_b32 s{T1}, s{SK1}, 11")
    for i in range(2): A(f"buffer_load_dwordx4 {vr(24+4*i,4)}, v{VL16}, {S4(XS)}, s{T1} offen offset:{i*1024}")

def krow(A, d, rho, t):
    A(f"v_bfe_u32 v{d}, v{rho}, 2, 2"); A(f"v_lshlrev_b32 v{d}, 3, v{d}")
    A(f"v_lshrrev_b32 v{t}, 4, v{rho}"); A(f"v_lshl_add_u32 v{d}, v{t}, 2, v{d}")
    A(f"v_and_b32 v{t}, 3, v{rho}"); A(f"v_add_u32 v{d}, v{d}, v{t}")

def w_setup(A, opt, st):
    SPH = T4 - 1
    assert SPH % 4 == 0
    for w in range(4):
        if w < 3:
            A(f"s_cmp_lg_u32 s{SW}, {w}"); A(f"s_cbranch_scc1 L0_ws{w+1}")
        pcs = []
        for i in range(5):
            g = 5 * w + i
            kind, idx = (0, g) if g < 6 else (1, g - 6) if g < 13 else (2, g - 13)
            pcs.append((kind, idx))
            ptr(A, SR + 4 * i, [1, 5, 6][kind])
        for i, (kind, idx) in enumerate(pcs):
            srd_hi(A, SR + 4 * i, 1024 * (6144 if kind == 0 else 7168))
            A(f"v_add_u32 v14, {idx*64}, v1")
            divmod_v(A, 15, 16, 14, 12 if kind == 0 else 14, 17)
            krow(A, 17, 15, 19)
            if kind == 0:
                A("v_mul_u32_u24 v17, 6144, v17"); A("v_lshrrev_b32 v19, 2, v16"); A("v_lshl_add_u32 v17, v19, 11, v17")
                A("v_and_b32 v16, 3, v16"); A("v_lshrrev_b32 v19, 1, v15"); A("v_and_b32 v19, 2, v19"); A("v_xor_b32 v16, v16, v19")
                A(f"v_lshl_add_u32 v{VD+i}, v16, 4, v17")
                A(f"s_lshl_b32 s{SO+i}, s{SJ}, 6"); A(f"s_mov_b32 s{ST+i}, {32*6144}")
                A(f"s_mov_b32 s{M0T+i}, {QB + idx*1024}"); A(f"s_mov_b32 s{M0T+15+i}, {QS}")
            else:
                A("v_mul_u32_u24 v17, 7168, v17"); A(f"v_lshl_add_u32 v{VD+i}, v16, 4, v17")
                A(f"s_mul_i32 s{SO+i}, s{SJ}, 224"); A(f"s_mov_b32 s{ST+i}, {32*7168}")
                A(f"s_mov_b32 s{M0T+i}, {GB + (UPO if kind == 2 else 0) + idx*1024}"); A(f"s_mov_b32 s{M0T+15+i}, {GS}")
        if w < 3:
            A("s_branch L0_wgo"); A.label(f"L0_ws{w+1}")
    A.label("L0_wgo")
    ptr(A, SPH, 2)
    for sl in range(1, 4):
        for i in range(5): A(f"s_add_u32 s{M0T+5*sl+i}, s{M0T+5*sl-5+i}, s{M0T+15+i}")
    srd_hi(A, SPH, 65536)
    A(f"s_and_b32 s{SKEY}, s{SIDX}, 15")
    st(58)
    A("s_waitcnt lgkmcnt(0)")
    ns = opt.get("nostat", 0)
    if not ns: rows(A)
    npw = opt.get("npw", 2)
    if opt.get("wwait", 0):
        read_bases(A); A("s_waitcnt vmcnt(0)")
    st(2)
    if opt.get("fs"):
        for t in fsq(0, opt)[0]: emit(A, fsd(0, t, opt))
        st(60); read_bases(A); st(59); st(3)
        A(f"s_waitcnt vmcnt({fsvm(0, opt, -1)})"); A("s_barrier")
        return
    for sl in range(npw): emit(A, w_dma(sl))
    A(f"s_lshl_b32 s{T0}, s{SJ}, 2"); A(f"s_add_u32 s{T0}, s{T0}, s{SW}"); A(f"s_lshl_b32 s{T0}, s{T0}, 9")
    A(f"s_lshl_b32 s{T1}, s{SW}, 9"); A(f"s_add_u32 m0, s{T1}, {PB}")
    A("s_mov_b32 exec_hi, 0")
    A(f"buffer_load_dwordx4 v{VL16}, {S4(SPH)}, s{T0} offen lds")
    A("s_mov_b32 exec_hi, -1")
    st(60)
    if not opt.get("wwait", 0): read_bases(A)
    if not ns: A(f"s_waitcnt vmcnt({5*npw + 1})")
    st(59)
    if not ns: stats(A)
    st(3)
    A(f"s_waitcnt vmcnt({5*npw - 5 + 2 - ns})")
    A("s_barrier")

def wave_sum(A, a, t):
    A(f"v_mov_b32 v{t}, v{a}"); A(f"v_permlane32_swap_b32 v{a}, v{t}"); A(f"v_add_f32 v{a}, v{a}, v{t}")
    A(f"v_mov_b32 v{t}, v{a}"); A(f"v_permlane16_swap_b32 v{a}, v{t}"); A(f"v_add_f32 v{a}, v{a}, v{t}")
    for r in (8, 4, 2, 1): A(f"v_add_f32_dpp v{a}, v{a}, v{a} row_ror:{r} row_mask:0xf bank_mask:0xf")

C0 = -2.0 * math.sqrt(2.0 / math.pi) * math.log2(math.e)
def stats(A):
    F = 40; R = 32
    A(f"s_mov_b32 s{T3}, 0xffff0000")
    for i in range(8):
        A(f"v_lshlrev_b32 v{F+2*i}, 16, v{24+i}"); A(f"v_and_b32 v{F+1+2*i}, s{T3}, v{24+i}")
    for c in range(4): A(f"v_add_f32 v{R+c}, v{F+c}, v{F+4+c}")
    for k in (8, 12):
        for c in range(4): A(f"v_add_f32 v{R+c}, v{R+c}, v{F+k+c}")
    A(f"v_add_f32 v{R}, v{R}, v{R+1}"); A(f"v_add_f32 v{R+2}, v{R+2}, v{R+3}"); A(f"v_add_f32 v{R}, v{R}, v{R+2}")
    wave_sum(A, R, R + 1)
    A(f"v_mul_f32 v{R}, {hex(f2u(-1.0/1024))}, v{R}")
    for i in range(16): A(f"v_add_f32 v{F+i}, v{F+i}, v{R}")
    Q = 36
    for k in range(4):
        for c in range(4):
            b = F + 4 * k + c
            A(f"v_mul_f32 v{Q+c}, v{b}, v{b}" if k == 0 else f"v_fmac_f32 v{Q+c}, v{b}, v{b}")
    A(f"v_add_f32 v{Q}, v{Q}, v{Q+1}"); A(f"v_add_f32 v{Q+2}, v{Q+2}, v{Q+3}"); A(f"v_add_f32 v{Q}, v{Q}, v{Q+2}")
    wave_sum(A, Q, Q + 1)
    O = 44
    A(f"v_mov_b32 v{O+7}, {hex(f2u(1e-5))}"); A(f"v_fmac_f32 v{O+7}, {hex(f2u(1.0/1024))}, v{Q}")
    A(f"v_rsq_f32 v{O+5}, v{O+7}")
    A(f"s_mov_b32 s{T4}, 0x07060302")
    A(f"v_perm_b32 v{O}, v{R}, v{R}, s{T4}")
    A(f"v_and_b32 v{R+1}, s{T3}, v{R}"); A(f"v_sub_f32 v{R+1}, v{R}, v{R+1}")
    A(f"v_perm_b32 v{O+1}, v{R+1}, v{R+1}, s{T4}")
    A(f"v_and_b32 v{R+2}, s{T3}, v{R+1}"); A(f"v_sub_f32 v{R+2}, v{R+1}, v{R+2}")
    A(f"v_perm_b32 v{O+2}, v{R+2}, v{R}, s{T4}"); A(f"v_mov_b32 v{O+3}, 0")
    A(f"s_lshl_b32 s{T3}, s{SK1}, 5"); A(f"s_add_u32 s{T3}, s{T3}, {STAT}")
    A(f"v_mul_f32 v{O+4}, {hex(f2u(C0))}, v{O+5}"); A(f"v_mul_f32 v{Q}, v{O+5}, v{O+5}")
    A(f"v_mul_f32 v{Q}, {hex(f2u(0.044715))}, v{Q}"); A(f"v_mul_f32 v{O+6}, v{Q}, v{O+4}")
    A("v_cmp_eq_u32 vcc, 0, v1")
    for r in range(4): A(f"v_cndmask_b32 v{O+r}, v{O+4+r}, v{O+r}, vcc")
    A("s_mov_b64 exec, 3")
    A(f"buffer_store_dwordx4 {vr(O,4)}, v{VL16}, {S4(WS)}, s{T3} offen sc1")
    A("s_mov_b64 exec, -1")

def x_setup(A, opt, st):
    A(f"s_cmp_lg_u32 s{SWR}, 0"); A("s_cbranch_scc1 L0_xt1")
    ptr(A, SR, 0); srd_hi(A, SR, 2048 * 2048)
    A(f"s_lshl_b32 s{T2}, s{SMI}, 2"); A(f"s_add_u32 s{T2}, s{T2}, s{SA}")
    A(f"v_lshlrev_b32 v{VT}, 11, v1")
    A(f"s_lshl_b32 s{SO+1}, s{T2}, 17"); A(f"s_mov_b32 s{ST+1}, 128")
    A(f"s_add_u32 s{ST+2}, s{SO+1}, {15*128}")
    A("s_branch L0_xt3")
    A.label("L0_xt1")
    A(f"s_cmp_lg_u32 s{SWR}, 1"); A("s_cbranch_scc1 L0_xt2")
    ptr(A, SR, 1); srd_hi(A, SR, 1024 * 6144)
    A("v_lshrrev_b32 v14, 1, v1"); A("v_and_b32 v15, 1, v1")
    A("v_lshlrev_b32 v15, 7, v15"); A("v_lshl_add_u32 v15, v14, 11, v15")
    A(f"v_mov_b32 v16, {OOB}"); A("v_cmp_gt_u32 vcc, 6, v14"); A(f"v_cndmask_b32 v{VT}, v16, v15, vcc")
    A(f"s_mul_i32 s{T2}, s{SIDX}, {2*6144}"); A(f"s_lshl_b32 s{T3}, s{SXCD}, 8"); A(f"s_add_u32 s{SO+1}, s{T2}, s{T3}")
    A(f"s_mov_b32 s{ST+1}, {64*6144}"); A(f"s_add_u32 s{ST+2}, s{SO+1}, {15*64*6144}")
    A("s_branch L0_xt3")
    A.label("L0_xt2")
    A(f"s_cmp_eq_u32 s{SWR}, 2"); A("s_cbranch_scc1 L0_xt4"); ptr(A, SR, 6); A("s_branch L0_xt5")
    A.label("L0_xt4"); ptr(A, SR, 5); A.label("L0_xt5")
    srd_hi(A, SR, 1024 * 7168)
    A("v_lshrrev_b32 v14, 1, v1"); A("v_and_b32 v15, 1, v1")
    A("v_mul_u32_u24 v15, 7168, v15"); A("v_lshl_add_u32 v15, v14, 7, v15")
    A(f"v_mov_b32 v16, {OOB}"); A("v_cmp_gt_u32 vcc, 7, v14"); A(f"v_cndmask_b32 v{VT}, v16, v15, vcc")
    A(f"s_mul_i32 s{T2}, s{SIDX}, {2*7168}"); A(f"s_mul_i32 s{T3}, s{SXCD}, 896"); A(f"s_add_u32 s{SO+1}, s{T2}, s{T3}")
    A(f"s_mov_b32 s{ST+1}, {64*7168}"); A(f"s_add_u32 s{ST+2}, s{SO+1}, {15*64*7168}")
    A.label("L0_xt3")
    A(f"s_lshl_b32 s{T3}, s{SMI}, 2"); A(f"s_add_u32 s{T3}, s{T3}, s{SWR}")
    A("v_lshrrev_b32 v14, 3, v1"); A("v_and_b32 v15, 7, v1"); A("v_xor_b32 v15, v14, v15")
    A("v_lshlrev_b32 v14, 11, v14"); A(f"v_lshl_add_u32 v{VD}, v15, 4, v14"); A(f"s_lshl_b32 s{SO}, s{T3}, 17")
    A(f"s_lshl_b32 s{M0T}, s{SWR}, 13")
    for k in range(1, 4): A(f"s_add_u32 s{M0T+k}, s{M0T}, {(k>>1)*32768 + (k&1)*4096}")
    st(58)
    A("s_waitcnt lgkmcnt(0)")
    nt = 2 if opt["touch"] else 0
    ns = opt.get("nostat", 0); t0 = opt.get("t0", 1)
    if opt.get("fs"):
        st(2)
        for t in fsq(1, opt)[0]: emit(A, fsd(1, t, opt))
        st(60)
        A(f"s_lshl2_add_u32 s{T2}, s2, s{SWR}"); A(f"s_lshl_b32 s{T2}, s{T2}, 7"); A(f"s_add_u32 s{T2}, s{T2}, {FLG}")
        read_bases(A)
        A("v_mov_b32 v21, 0"); A("v_and_b32 v22, 31, v1"); A("v_lshlrev_b32 v22, 2, v22")
        A(f"buffer_store_dword v21, v22, {S4(WS)}, s{T2} offen sc1")
        st(59); st(3)
        A(f"s_waitcnt vmcnt({fsvm(1, opt, -1) + 1})"); A("s_barrier")
        return
    if t0 == 1: emit(A, touch())
    if not ns: rows(A)
    npx = opt.get("npx", 2)
    X = x_dma(opt, 0, 0) + x_dma(opt, 0, 1) + (x_dma(opt, 1, 0) if npx == 3 else [])
    if opt.get("xwait", 0):
        read_bases(A); A("s_waitcnt vmcnt(2)")
    st(2)
    emit(A, X)
    n1 = 0
    if t0 == 2: emit(A, touch()); n1 = 2
    if t0 == 0:
        for x in touch()[1][2] * 2: A(x)
    if nt and not opt.get("t1late"): emit(A, touch()); n1 += 2
    st(60)
    A(f"s_lshl2_add_u32 s{T2}, s2, s{SWR}"); A(f"s_lshl_b32 s{T2}, s{T2}, 7"); A(f"s_add_u32 s{T2}, s{T2}, {FLG}")
    if not opt.get("xwait", 0): read_bases(A)
    A("v_mov_b32 v21, 0"); A("v_and_b32 v22, 31, v1"); A("v_lshlrev_b32 v22, 2, v22")
    A(f"buffer_store_dword v21, v22, {S4(WS)}, s{T2} offen sc1")
    if not ns: A(f"s_waitcnt vmcnt({len(X) + n1 + 1})")
    st(59)
    if not ns: stats(A)
    st(3)
    A(f"s_waitcnt vmcnt({len(X) - 8 + n1 + 2 - ns})")
    A("s_barrier")
```

```python
from common import *
import p1, p2
from p1 import VL16, emit, SV
from p2 import SHB, VHS, VHO, IR2, HQ, PH, sum4

def acc(tbi, cbi): return 96 + (tbi * 4 + cbi) * 4
def af(st, c): return 24 + st * 32 + c * 4
def bf(st, t): return 24 + st * 32 + 16 + t * 4
VB = 2; VB2 = 4; VW = 6; VDW = 10; VDW2 = 11; VDA = 13; VO4 = (15, 17); VDW3 = 19
VDUM = 90; VS1 = 91; VOUT = 94
TW = 32; TA = 40
SW2B = 49; SM0A = 50; SM0W = 51
SOD = 56; SOB = 57; SWOB = 58; SODW = 59; SXB = 60; SOUT = 61; SD0 = 62; SD1 = 63; SPL = 64; SOUT2 = 66; SWC = 67
SM0H = 55; SFX = 71; SQA = 52; SQW = 53; SPO = 54
NH = 24; NO = 32; NS = 48
TOFF = [0, 48, 80]
ASL = {}
def asl(s): return ASL[s]
def nt(s):
    if s < 3: return 0, s
    if s < 17: return 1 + (s - 3) // 2, 1 + (s - 3) % 2
    return s - 16, 0
OPT = {}

def pre_last(h):
    A = Asm()
    A(f"s_mul_i32 s{SW2B}, s{SKS}, {896*2048}"); A(f"s_lshl_b32 s{T0}, s{SNI}, 8"); A(f"s_add_u32 s{SW2B}, s{SW2B}, s{T0}")
    A(f"s_lshl_b32 s{SHB}, s{SKS}, 3"); A(f"s_add_u32 s{SHB}, s{SHB}, s{SMI}"); A(f"s_mul_i32 s{SHB}, s{SHB}, {28*16384}"); A(f"s_add_u32 s{SHB}, s{SHB}, {HACT}")
    A(f"s_lshr_b32 s{T1}, s{SNI}, 2"); A(f"s_add_u32 s{SPO}, s{SA}, s{T1}"); A(f"s_add_u32 s{SPO}, s{SPO}, 3"); A(f"s_and_b32 s{SPO}, s{SPO}, 3")
    for n in range(8):
        if n == 0: A(f"s_mov_b32 s{T0}, s{SNI}")
        elif n == 7:
            A(f"s_add_u32 s{T0}, s{SPO}, s{T1}"); A(f"s_and_b32 s{T0}, s{T0}, 3"); A(f"s_andn2_b32 s{T2}, 4, s{SNI}"); A(f"s_or_b32 s{T0}, s{T0}, s{T2}")
        else:
            A(f"s_add_u32 s{T0}, s{SPO}, {1 + n // 2}"); A(f"s_and_b32 s{T0}, s{T0}, 3")
            if n & 1: A(f"s_or_b32 s{T0}, s{T0}, 4")
        A(f"s_mul_i32 s{TW+n}, s{T0}, {112*2048}"); A(f"s_add_u32 s{TW+n}, s{TW+n}, s{SW2B}")
        A(f"s_mul_i32 s{TA+n}, s{T0}, {3*16384}"); A(f"s_add_u32 s{TA+n}, s{TA+n}, s{SHB}")
    A(f"s_lshl_b32 s{SM0A}, s{SW}, 11"); A(f"s_lshl_b32 s{SM0W}, s{SW}, 10"); A(f"s_add_u32 s{SM0W}, s{SM0W}, {W2B}")
    A(f"s_lshl_b32 s{T0}, s{SW}, 2"); A("v_lshrrev_b32 v9, 4, v1"); A(f"v_add_u32 v9, s{T0}, v9")
    A("v_and_b32 v21, 7, v9"); A("v_lshlrev_b32 v21, 1, v21"); A("v_and_b32 v22, 15, v1"); A("v_xor_b32 v21, v21, v22")
    A("v_lshlrev_b32 v9, 11, v9"); A(f"v_lshl_add_u32 v{VDW}, v21, 4, v9")
    A("v_lshrrev_b32 v22, 3, v21"); A("v_lshl_add_u32 v9, v22, 16, v9"); A("v_and_b32 v21, 7, v21"); A(f"v_lshl_add_u32 v{VDW2}, v21, 4, v9")
    B = A.lines; A = Asm()
    if h == 1:
        A("v_lshrrev_b32 v9, 3, v1"); A("v_and_b32 v21, 7, v1"); A("v_lshlrev_b32 v21, 7, v21"); A("v_lshl_add_u32 v21, v9, 11, v21")
        A(f"v_mov_b32 v22, {OOB}"); A("v_cmp_gt_u32 vcc, 7, v9"); A("v_cndmask_b32 v8, v22, v21, vcc")
        A(f"s_lshl_b32 s{T0}, s{SKS}, 5"); A(f"s_add_u32 s{T0}, s{T0}, s{SIDX}"); A(f"s_lshl_b32 s{T0}, s{T0}, 2"); A(f"s_add_u32 s{T0}, s{T0}, s{SWR}")
        A(f"s_mul_i32 s{T0}, s{T0}, {7*2048}"); A(f"s_and_b32 s{T1}, s{SXCD}, 1"); A(f"s_lshl_b32 s{T1}, s{T1}, 10"); A(f"s_add_u32 s{T6}, s{T0}, s{T1}")
    else:
        A("v_bfe_u32 v9, v1, 2, 3"); A("v_and_b32 v21, 3, v1"); A("v_lshlrev_b32 v21, 8, v21"); A("v_lshl_add_u32 v8, v9, 11, v21")
        A(f"s_lshl2_add_u32 s{T0}, s{SIDX}, s{SWR}"); A(f"s_lshl_b32 s{T0}, s{T0}, 14")
        A(f"s_and_b32 s{T1}, s{SNI}, 4"); A(f"s_lshl1_add_u32 s{T1}, s{T1}, s{SKSL}"); A(f"s_lshl_b32 s{T1}, s{T1}, 7"); A(f"s_add_u32 s{T6}, s{T0}, s{T1}")
        A("v_and_b32 v7, 0x1fff, v8")
        A(f"s_mul_i32 s{T0}, s{SIDX}, 28"); A(f"s_add_u32 s{T0}, s{T0}, s{SWR}"); A(f"s_add_u32 s{T0}, s{T0}, 8"); A(f"s_lshl_b32 s{T0}, s{T0}, 13"); A(f"s_add_u32 s{T4}, s{T0}, s{T1}")
    A("v_lshlrev_b32 v9, 5, v1")
    A(f"s_lshl_b32 s{T5}, s{SWR}, 11"); A(f"s_add_u32 s{T5}, s{T5}, {STB}")
    A(f"s_mov_b32 s{p1.SPERM}, 0x07060302")
    return A.lines, B
def scalars():
    A = Asm()
    A(f"s_lshr_b32 s{T2}, s{SW}, 2")
    for c in range(4):
        A(f"s_xor_b32 s{T0}, s{SKSL}, {c>>1}"); A(f"s_lshl_b32 s{T0}, s{T0}, 1"); A(f"s_add_u32 s{T0}, s{T0}, s{T2}")
        A(f"s_lshl1_add_u32 s{SWC+c}, s{T0}, {c&1}")
    A(f"s_lshl1_add_u32 s{SWOB}, s{SNI}, s{SKSL}"); A(f"s_lshl_b32 s{SWOB}, s{SWOB}, 7")
    A(f"s_lshr_b32 s{T0}, s{SWR}, 1"); A(f"s_mul_i32 s{T0}, s{T0}, 104"); A(f"s_and_b32 s{T1}, s{SWR}, 1"); A(f"s_lshl2_add_u32 s{T0}, s{T1}, s{T0}")
    A(f"s_mul_i32 s{T1}, s{T2}, 12"); A(f"s_sub_u32 s{T0}, s{T0}, s{T1}"); A(f"s_add_u32 s{T0}, s{T0}, 32"); A(f"s_lshl_b32 s{T0}, s{T0}, 11")
    A(f"s_add_u32 s{SODW}, s{T0}, s{SWOB}")
    A(f"s_xor_b32 s{T0}, s{T2}, s{SKSL}"); A(f"s_lshl_b32 s{T0}, s{T0}, 14")
    A(f"s_lshl1_add_u32 s{T1}, s{SWR}, s{SKSH}"); A(f"s_lshl_b32 s{T3}, s{T1}, 11"); A(f"s_add_u32 s{T0}, s{T0}, s{T3}")
    A(f"s_lshl_b32 s{SOB}, s{SMI}, 19"); A(f"s_add_u32 s{SOB}, s{SOB}, s{T0}"); A(f"s_add_u32 s{SOB}, s{SOB}, {OACT}")
    A(f"s_mul_i32 s{SOD}, s{SMI}, {28*16384}"); A(f"s_add_u32 s{SOD}, s{SOD}, s{T0}"); A(f"s_add_u32 s{SOD}, s{SOD}, {HACT + 24*16384}")
    A(f"s_lshl_b32 s{T0}, s{SMI}, 3"); A(f"s_add_u32 s{T1}, s{T1}, s{T0}"); A(f"s_lshl_b32 s{SOUT}, s{T1}, 16")
    A(f"s_add_u32 s{SOUT}, s{SOUT}, s{SWOB}"); A(f"s_lshl_b32 s{T2}, s{T2}, 6"); A(f"s_add_u32 s{SOUT}, s{SOUT}, s{T2}")
    A(f"s_add_u32 s{SOUT2}, s{SOUT}, 32768"); A(f"s_lshl_b32 s{SM0H}, s{SWR}, 12")
    A(f"s_add_u32 s{T0}, s{T0}, s{SNI}"); A(f"s_mul_i32 s{SXB}, s{T0}, {12*16384}"); A(f"s_add_u32 s{SXB}, s{SXB}, {XCH}")
    return A.lines
def dbg_load():
    return [([f"s_mov_b32 m0, s{T5}", f"s_lshl2_add_u32 s{T0}, s{SMI}, s{SWR}", f"s_lshl_b32 s{T0}, s{T0}, 11", f"s_add_u32 s{T0}, s{T0}, {STAT}"],
             f"buffer_load_dwordx4 v{VL16}, {S4(WS)}, s{T0} offen sc1 lds", []),
            ([], f"buffer_load_dwordx4 v{VL16}, {S4(WS)}, s{T0} offen offset:1024 sc1 lds", [f"s_lshl_b32 s{T1}, s{SWR}, 12", f"s_add_u32 s{T0}, s{T0}, 20"]),
            ([f"s_add_u32 m0, s{T1}, {RTB}"], f"buffer_load_dword v9, {S4(WS)}, s{T0} offen sc1 lds", [])]
def wo_touch():
    return [([], f"buffer_load_dword v7, v7, {S4(WD)}, s{T4} offen", []), ([], f"buffer_load_dword v8, v8, {S4(WO)}, s{T6} offen", [])]
def t2(opt):
    return [([], f"buffer_load_dword v8, v8, {S4(WD)}, s{T6} offen", [])] if opt["touch"] else []
def dbgcheck(A, O):
    A(f"s_mov_b32 s{T0}, 0x01010101")
    check(A, O, 21, 22, DBG, "0", f"s{T0}")

def consts(h):
    def f(A, part):
        if part == 0:
            for tb in range(4): A(f"v_mov_b32 v{IR2+2*tb}, v{SV+4*tb+3}")
            A(f"s_lshl_b32 s{T0}, s{SWR}, 12"); A(f"v_add_u32 v{VHS}, s{T0}, v{VL16}")
            if h == 0:
                A("v_and_b32 v21, 15, v1"); A(f"v_lshl_add_u32 v21, v21, 4, s{T0}"); A("v_bfe_u32 v22, v1, 4, 1"); A("v_lshl_add_u32 v21, v22, 10, v21")
                A("v_lshrrev_b32 v22, 5, v1"); A(f"v_lshl_add_u32 v{VHO}, v22, 8, v21")
                A(f"s_add_u32 s{T0}, s{T0}, {RTB}"); A("v_and_b32 v22, 48, v1"); A(f"v_add_u32 v22, s{T0}, v22")
            A(f"v_add_u32 v{VDA}, s{SM0A}, v{VL16}")
            for u in range(2):
                A(f"s_xor_b32 s{T0}, s{SKSH}, {u}"); A(f"s_lshl_b32 s{T1}, s{T0}, 11"); A(f"v_add_u32 v{VB+u}, s{T1}, v{VHS}")
                A(f"v_add_u32 v{VB2+u}, 0x10000, v{VB+u}")
        else:
            A("v_lshrrev_b32 v19, 2, v1"); A("v_and_b32 v15, 3, v1"); A("v_lshlrev_b32 v15, 3, v15"); A("v_lshl_add_u32 v15, v19, 8, v15")
            A(f"v_add_u32 v15, {W2B}, v15"); A("v_and_b32 v19, 7, v19")
            for c in range(4):
                A(f"v_xor_b32 v{VW+c}, s{SWC+c}, v19"); A(f"v_lshl_add_u32 v{VW+c}, v{VW+c}, 5, v15")
    return f
def o_addrs():
    return [f"s_lshl_b32 s{T0}, s{SWR}, 11", f"v_add_u32 v{VO4[0]}, s{T0}, v{VL16}", f"v_add_u32 v{VO4[1]}, 0x10000, v{VO4[0]}",
            f"v_lshrrev_b32 v{VDW3}, 16, v{VDW2}", f"v_mul_u32_u24 v{VDW3}, {192*2048}, v{VDW3}", f"v_add_u32 v{VDW3}, v{VDW3}, v{VDW2}"] + \
           [f"s_lshl_b32 s{SFX}, s{SMI}, 5", f"s_add_u32 s{SFX}, s{SFX}, s{SJ}", f"s_lshl_b32 s{SFX}, s{SFX}, 5", f"s_add_u32 s{SFX}, s{SFX}, s{SW}", f"s_lshl2_add_u32 s{SFX}, s{SFX}, {FX}"]

def quart(d, k, mul, base):
    if OPT.get("norot"): return f"s_add_u32 s{d}, s{base}, {k*mul}"
    return f"s_add_u32 s{d}, s{SA}, {k}\ns_and_b32 s{d}, s{d}, 3\ns_mul_i32 s{d}, s{d}, {mul}\ns_add_u32 s{d}, s{d}, s{base}"
def w_dma(s):
    sl = s % 6
    m0 = f"s_add_u32 m0, s{SM0W}, {sl*8192}"
    if s < NH:
        n, t = nt(s)
        return ([m0, f"s_add_u32 s{SD1}, s{TW+n}, {TOFF[t]*2048}"], f"buffer_load_dwordx4 v{VDW}, {S4(WD)}, s{SD1} offen lds", [])
    if s < NO:
        u = s - NH
        return ([m0, quart(SQW, u >> 1, 896*2048, SODW), f"s_add_u32 s{SD1}, s{SQW}, {(u&1)*448*2048} ; {s}"], f"buffer_load_dwordx4 v{VDW3}, {S4(WD)}, s{SD1} offen lds", [])
    u = s - NO
    return ([m0, quart(SQW, u >> 2, 256*2048, SWOB), f"s_add_u32 s{SD1}, s{SQW}, {(u&3)*64*2048} ; {s}"], f"buffer_load_dwordx4 v{VDW2}, {S4(WO)}, s{SD1} offen lds", [])
def a_dma(s, i):
    m0 = f"s_add_u32 m0, s{SM0A}, {asl(s)*16384}"
    v = VL16
    if s < NH:
        n, t = nt(s); v = VDA
        pre = [f"s_add_u32 s{SD0}, s{TA+n}, {t*16384}"]
    elif s < NO:
        u = s - NH
        pre = [quart(SQA, u >> 1, 8*28*16384, SOD), f"s_add_u32 s{SD0}, s{SQA}, {(u&1)*32768} ; {s}"]
    else:
        u = s - NO
        pre = [quart(SQA, u >> 2, 4*32768, SOB), f"s_add_u32 s{SD0}, s{SQA}, {(u&3)*32768} ; {s}"]
    return ([m0] + pre, f"buffer_load_dwordx4 v{v}, {S4(WS)}, s{SD0} offen offset:{i*1024} sc1 lds", [])
def a_dma4(s, i):
    n, t = nt(s)
    return ([f"s_add_u32 m0, s{SM0H}, {asl(s)*16384}", f"s_add_u32 s{SD0}, s{TA+n}, {t*16384}"],
            f"buffer_load_dwordx4 v{VHS}, {S4(WS)}, s{SD0} offen offset:{i*1024} sc1 lds", [])

def reads(s):
    st = s & 1; sl = asl(s); ws = s % 6
    def wr(c, sec): return f"ds_read_b64_tr_b16 {vr(af(st,c)+2*sec,2)}, v{VW+c} offset:{ws*8192 + sec*4096}"
    if s < NH:
        def br(t): return f"ds_read_b128 {vr(bf(st,t),4)}, v{(VB if sl < 4 else VB2) + (t>>1)} offset:{(sl & 3)*16384 + (t&1)*1024}"
    else:
        def br(t): return f"ds_read_b128 {vr(bf(st,t),4)}, v{VO4[sl >> 2]} offset:{(sl & 3)*16384 + (t>>1)*8192 + (t&1)*1024}"
    return [br(0), wr(0, 0), wr(0, 1), wr(1, 0), wr(1, 1), br(1), wr(2, 0), wr(2, 1), br(2), wr(3, 0), wr(3, 1), br(3)]

def mfmas(s):
    st = s & 1
    if s < NH:
        order = [(0, 0), (0, 1), (1, 0), (1, 1), (0, 2), (1, 2), (2, 0), (2, 1), (2, 2), (0, 3), (1, 3), (2, 3), (3, 0), (3, 1), (3, 2), (3, 3)]
        if p1.SNAKE: order = [(t, c if t % 2 == 0 else 3 - c) for t in range(4) for c in range(4)]
        return [mfma(acc(t, c), af(st, c), bf(st, t), "0" if s == 0 else None) for t, c in order]
    return [mfma(acc(t, c), af(st, 2 * x + c), bf(st, 2 * x + t)) for x in range(2) for t in range(2) for c in ((1, 0) if t and p1.SNAKE else (0, 1))]

def lines(f, *a):
    A = Asm(); f(A, *a); return A.lines
def line3(d, g, base):
    return [f"s_lshl2_add_u32 s{d}, s{SMI}, s{g}", f"s_lshl2_add_u32 s{d}, s{d}, s{SWR}", f"s_lshl_b32 s{d}, s{d}, 7", f"s_add_u32 s{d}, s{d}, {base}"]
def line2(d, kind):
    if kind == "kv": return [f"s_lshl3_add_u32 s{d}, s{SJ}, s{SW}", f"s_lshl_b32 s{d}, s{d}, 7", f"s_add_u32 s{d}, s{d}, {FKV}"]
    return [f"s_lshl2_add_u32 s{d}, s{SMI}, s{SWR}", f"s_lshl_b32 s{d}, s{d}, 7", f"s_add_u32 s{d}, s{d}, {FH0}"]
def signal(kind, tag, b=0):
    d = T7
    if kind == "x": L = [f"s_xor_b32 s{d}, s{SFX}, {b << 10}"]
    elif kind == "kv": L = line2(d, kind) + [f"s_add_u32 s{d}, s{d}, s{SMI}"]
    elif kind == "h0": L = line2(d, kind) + [f"s_add_u32 s{d}, s{d}, s{SJ}"]
    elif kind == "o": L = line3(d, SKS, FO) + [f"s_add_u32 s{d}, s{d}, s{SNI}"]
    else: L = line3(d, SKS, FH1 + 1) + [f"s_lshl1_add_u32 s{d}, s{SPO}, s{d}", f"s_lshr_b32 s{T6}, s{SNI}, 2\ns_sub_u32 s{d}, s{d}, s{T6}"]
    off = f" offset:{b-1}" if b > 1 else ""
    return L + [f"v_mov_b32 v{VS1}, 1", ("wait", tag), ("vm", f"buffer_store_byte v{VS1}, off, {S4(WS)}, s{d}{off} sc1", "sig")]
NP = dict(near=2, h1=2, h=8, kv=2, o0=2, o1=2, o2=2, o3=2, x=1)
def pload(kind):
    n = NP[kind]
    return f"s_buffer_load_dword{'' if n == 1 else 'x' + str(n)} {sr(PR,n)}, {S4(WS)}, s{SFX if kind == 'x' else SPL} glc"
def poll(kind):
    d = SPL
    if kind == "near": L = line3(d, SKS, FH1) + [f"s_add_u32 s{PR+2}, s{SPO}, 1", f"s_lshl_b32 s{PR+2}, s{PR+2}, 4"]
    elif kind == "h1": L = []
    elif kind in ("h", "kv"): L = line2(d, kind)
    elif kind[0] == "o":
        k = int(kind[1])
        L = ([f"s_mov_b32 s{d}, {k}"] if OPT.get("norot") else [f"s_add_u32 s{d}, s{SA}, {k}", f"s_and_b32 s{d}, s{d}, 3"]) + line3(d, d, FO)
    else: L = []
    return [("pbeg",)] + L + [("poll", kind)]
def pcheck(k): return [("check", k)]

GZ = 92
GQ = [192, 196, 200, 204, 248, 252, HQ[0], HQ[4]]
def gather(h):
    L = [f"s_mul_i32 s{T2}, s{SJ}, {8*KVS}", f"s_add_u32 s{T2}, s{T2}, {KVP}"]
    if h == 0:
        L += [f"v_lshrrev_b32 v{GZ+2}, 4, v1", f"v_mul_u32_u24 v{GZ+2}, {KVS}, v{GZ+2}", f"v_and_b32 v{GZ+3}, 15, v1", f"v_lshl_add_u32 v{GZ+2}, v{GZ+3}, 2, v{GZ+2}",
              f"s_lshl_b32 s{T1}, s{SWR}, 6", f"s_add_u32 s{T1}, s{T1}, s{T2}", f"s_add_u32 s{T1}, s{T1}, 8192",
              ("vm", f"buffer_load_dword v{GZ}, v{GZ+2}, {S4(WS)}, s{T1} offen sc1", "g"), f"s_add_u32 s{T1}, s{T1}, {4*KVS}",
              ("vm", f"buffer_load_dword v{GZ+1}, v{GZ+2}, {S4(WS)}, s{T1} offen sc1", "g")]
    L += [f"s_lshl_b32 s{T1}, s{SW}, 10", f"s_add_u32 s{T2}, s{T2}, s{T1}"]
    G = []
    for p in range(8):
        G.append([("vm", f"buffer_load_dwordx4 {vr(GQ[p],4)}, v{VL16}, {S4(WS)}, s{T2} offen sc1", f"g{p}")] + ([f"s_add_u32 s{T2}, s{T2}, {KVS}"] if p < 7 else []))
    return L, G
def gather_sum(h):
    def ad(a, b): return [f"v_add_f32 v{GQ[a]+i}, v{GQ[a]+i}, v{GQ[b]+i}" for i in range(4)]
    L = [("wait", "g1")] + ad(0, 1) + [("wait", "g3")] + ad(2, 3) + ad(0, 2) + [("wait", "g5")] + ad(4, 5) + ad(0, 4) + [("wait", "g7")] + ad(6, 7) + ad(0, 6)
    L += [f"s_lshr_b32 s{T0}, s{SWR}, 1\ns_lshl_b32 s{T0}, s{T0}, 11\ns_and_b32 s{T1}, s{SWR}, 1\ns_lshl3_add_u32 s{T0}, s{T1}, s{T0}\ns_add_u32 s{T0}, s{T0}, {E_KVF + h*1024}\nv_add_u32 v{GZ+2}, s{T0}, v{VL16}"]
    G = GQ[0]
    L += [f"v_cvt_pk_bf16_f32 v{G}, v{G}, v{G+1}", f"v_cvt_pk_bf16_f32 v{G+1}, v{G+2}, v{G+3}", f"ds_write_b64 v{GZ+2}, {vr(G,2)}"]
    if h == 0:
        L += [f"v_add_f32 v{GZ}, v{GZ}, v{GZ+1}"] + sum4(GZ, GZ + 1) + [f"v_cvt_pk_bf16_f32 v{GZ}, v{GZ}, v{GZ}",
              f"s_lshl_b32 s{T0}, s{SWR}, 5\ns_add_u32 s{T0}, s{T0}, {E_ZF}\nv_lshl_add_u32 v{GZ+3}, v{GZ+3}, 1, s{T0}",
              f"ds_write_b16 v{GZ+3}, v{GZ}"]
    else:
        L += [f"v_and_b32 v{GZ+3}, 31, v1", f"v_lshlrev_b32 v{GZ+3}, 2, v{GZ+3}", f"v_add_u32 v{GZ+3}, {E_ZF + 128}, v{GZ+3}", f"v_mov_b32 v{GZ}, 0x3f803f80",
              f"ds_write_b32 v{GZ+3}, v{GZ}"]
    return L
KA = 192; ZA = 240; CC = 248
def o_reads():
    L = [f"v_add_u32 v{GZ+2}, {E_KVF}, v{VL16}", f"v_lshrrev_b32 v{GZ+3}, 4, v1", f"v_lshlrev_b32 v{GZ+3}, 3, v{GZ+3}", f"v_and_b32 v{GZ}, 1, v1",
         f"v_lshl_add_u32 v{GZ+3}, v{GZ}, 7, v{GZ+3}", f"v_add_u32 v{GZ+3}, {E_ZF}, v{GZ+3}"]
    R = [("ds", f"ds_read_b64 {vr(ZA+4*sg+2*sec,2)}, v{GZ+3} offset:{sg*64 + sec*32}", "za") for sg in range(2) for sec in range(2)]
    R += [("ds", f"ds_read_b128 {vr(KA+4*c,4)}, v{GZ+2} offset:{c*1024}", "ka") for c in range(4)]
    return L, R
def o_compute():
    def D(tb, sg): return HQ[4 * sg + tb]
    L = [f"s_lshl_b32 s{T3}, s{SMI}, 5", f"s_add_u32 s{T3}, s{T3}, s{SJ}", f"s_lshl_b32 s{T3}, s{T3}, 14", f"s_add_u32 s{T3}, s{T3}, {OACT}",
         f"v_mov_b32 v{GZ}, {hex(f2u(1e-6))}", ("lw", "za")]
    L += [mfma(D(tb, sg), ZA + 4 * sg, PH(tb, sg), "0") for tb in range(4) for sg in range(2)]
    L += [f"v_rcp_f32 v{CC+2*tb+sg}, v{D(tb,sg)+1}" for tb in range(4) for sg in range(2)]
    L += [f"v_fma_f32 v{D(tb,0)}, v{D(tb,0)}, v{CC+2*tb}, v{GZ}" for tb in range(4)]
    L += [f"v_fma_f32 v{D(tb,0)}, v{D(tb,1)}, v{CC+2*tb+1}, v{D(tb,0)}" for tb in range(4)]
    L += [f"v_rcp_f32 v{D(tb,0)}, v{D(tb,0)}" for tb in range(4)]
    L += [f"v_mul_f32 v{CC+2*tb+sg}, v{CC+2*tb+sg}, v{D(tb,0)}" for tb in range(4) for sg in range(2)]
    N = [HQ[0:4], HQ[4:8], [PH(0, 0), PH(0, 1), ZA, ZA + 4], [PH(1, 0), PH(1, 1), PH(2, 0), PH(2, 1)]]
    def M(tb): return [mfma(N[tb][c], KA + 4 * c, PH(tb, c >> 1), "0") for c in range(4)]
    def V(tb):
        n = N[tb]; o = []
        for db in range(2):
            o += [f"v_mul_f32 v{n[db]+i}, v{n[db]+i}, v{CC+2*tb}" for i in range(4)]
        for db in range(2):
            o += [f"v_fma_f32 v{n[db]+i}, v{n[2+db]+i}, v{CC+2*tb+1}, v{n[db]+i}" for i in range(4)]
        o += [f"v_cvt_pk_bf16_f32 v{n[0]+r}, v{n[r>>1]+2*(r&1)}, v{n[r>>1]+2*(r&1)+1}" for r in range(4)]
        return o + [("vm", f"buffer_store_dwordx4 {vr(n[0],4)}, v{VHS}, {S4(WS)}, s{T3} offen offset:{tb*1024} sc1", "os")]
    def mix(a, b):
        a = list(a); o = []
        for i, x in enumerate(b):
            if a and i % 4 == 0: o.append(a.pop(0))
            o.append(x)
        return o
    return L + [("lw", "ka")] + M(0) + M(1) + mix(M(2), V(0)) + mix(M(3), V(1)) + V(2) + V(3)
XR = 160; XX = 184; Fv = 192
def xch_send(b, t):
    u, v = b >> 1, b & 1
    Pp = acc(2 * u + t, 2 * v)
    L = [f"v_cvt_pk_bf16_f32 v{Pp+r}, v{Pp+2*r}, v{Pp+2*r+1}" for r in range(4)]
    L += [f"s_xor_b32 s{T0}, s{SKS}, {b}", f"s_mul_i32 s{T0}, s{T0}, {3*16384}", f"s_add_u32 s{T0}, s{T0}, s{SXB}"]
    if b > 1: L.append(f"s_add_u32 s{T0}, s{T0}, {(b-1)*16384}")
    return L + [("vm", f"buffer_store_dwordx4 {vr(Pp,4)}, v{VDA}, {S4(WS)}, s{T0} offen offset:{t*1024} sc1", f"xs{b}")]
def xch_recv(b):
    L = [f"s_mul_i32 s{T0}, s{SKS}, {3*16384}", f"s_add_u32 s{T0}, s{T0}, s{SXB}"]
    if b > 1: L.append(f"s_add_u32 s{T0}, s{T0}, {(b-1)*16384}")
    return L + [("vm", f"buffer_load_dwordx4 {vr(XR+8*(b-1)+4*t,4)}, v{VDA}, {S4(WS)}, s{T0} offen offset:{t*1024} sc1", f"xr{b}") for t in range(2)]
def x_load():
    return [f"v_and_b32 v{VOUT}, 15, v1", f"v_lshlrev_b32 v{VOUT}, 11, v{VOUT}", f"v_bfe_u32 v{GZ}, v1, 4, 1", f"v_lshl_add_u32 v{VOUT}, v{GZ}, 5, v{VOUT}",
            f"v_lshrrev_b32 v{GZ}, 5, v1", f"v_lshl_add_u32 v{VOUT}, v{GZ}, 4, v{VOUT}"] + \
           [("vm", f"buffer_load_dwordx4 {vr(XX+4*t,4)}, v{VOUT}, {S4(XS)}, s{(SOUT, SOUT2)[t]} offen", "xx") for t in range(2)]
def x_unpack():
    L = [f"s_mov_b32 s{T4}, 0xffff0000", ("wait", "xx")]
    L += [f"v_permlane16_swap_b32 v{XX+4*t+r}, v{XX+4*t+2+r}" for t in range(2) for r in range(2)]
    for t in range(2):
        for r in range(4):
            lo = Fv + 8 * t + 2 * r
            L += [f"v_lshlrev_b32 v{lo}, 16, v{XX+4*t+r}", f"v_and_b32 v{lo+1}, s{T4}, v{XX+4*t+r}"]
    return L
def final(b):
    L = [("wait", f"xr{b}")]
    for t in range(2):
        for r in range(4):
            s = XR + 8 * (b - 1) + 4 * t + r; lo = Fv + 8 * t + 2 * r; k = 208 + (r & 1) * 2
            L += [f"v_lshlrev_b32 v{k}, 16, v{s}", f"v_and_b32 v{k+1}, s{T4}, v{s}", f"v_add_f32 v{lo}, v{lo}, v{k}", f"v_add_f32 v{lo+1}, v{lo+1}, v{k+1}"]
    return L
def final2(A):
    for t in range(2):
        Pp = acc(t, 0)
        for i in range(8): A(f"v_add_f32 v{Pp+i}, v{Pp+i}, v{Fv+8*t+i}")
        for r in range(4): A(f"v_cvt_pk_bf16_f32 v{Pp+r}, v{Pp+2*r}, v{Pp+2*r+1}")
        for r in range(2): A(f"v_permlane16_swap_b32 v{Pp+r}, v{Pp+2+r}")
        A(f"buffer_store_dwordx4 {vr(Pp,4)}, v{VOUT}, {S4(OUT)}, s{(SOUT, SOUT2)[t]} offen")

def split(L, w):
    tot = sum(w); out = []; a = 0; c = 0
    for x in w:
        c += x; b = round(len(L) * c / tot); out.append(L[a:b]); a = b
    return out
def insert(L, frac, X):
    i = round(len(L) * frac); return L[:i] + X + L[i:]


def x4(x): return isinstance(x, tuple) and x[0] == "vm" and "dwordx4" in x[1]
def cost(L):
    c = 0
    for x in L:
        if isinstance(x, tuple):
            if x[0] not in ("vm", "ds"): continue
            x = x[1]
        for l in x.split("\n"):
            if l.startswith("v_mfma"): c += 4
            elif l.startswith(("v_exp", "v_rcp")): c += 2
            elif l.startswith("v_"): c += 1
    return c
def wsplit(L, w):
    tot = cost(L); sw = sum(w); out = []; i = 0; c = 0; t = 0
    for n, x in enumerate(w):
        t += x; o = []
        while i < len(L) and (c < tot * t / sw - 0.5 or n == len(w) - 1):
            c += cost([L[i]]); o.append(L[i]); i += 1
        out.append(o)
    return out

def params(opt):
    ke = opt.get("kend", 4)
    H = dict(kend=ke, hsig=50, hsig1=-200, hpoll=-100, hchk=30, p1=100, c1=299, p2=(ke + 2) * 100 + 30, c2=(ke + 4) * 100 + 99,
             kvsig=(ke + 3) * 100 + 50, kvpoll=(ke + 5) * 100 + 50, kvchk=ke + 6, kvsum=ke + 11, ono=4,
             osig=(ke + 17) * 100 + 50, opoll=2400, ochk=2599, oad=ke + 3,
             xs=24, xd=2, xsig=3, xpoll=3900, xchk=40, xadd=44, xl=26, xu=35, cap=4, capn=4, cap0=8, pr1=ke + 1)
    for k in H:
        if k in opt: H[k] = opt[k]
    return H
def slots(H):
    free = {0: H["kend"] + 2, 1: H["kend"] + 2, 2: 2, 3: -1, 4: -1, 5: -1}; est = {}
    for g in range(3): ASL[g] = g
    for g in range(3, NS):
        sl = min(free, key=lambda k: free[k]); ASL[g] = sl; est[g] = free[sl]; free[sl] = g
    return est

def post(A, O, h, opt, st):
    vm = VM(); dq = []; state = dict(poll=0)
    for s in range(6): vm.add(f"d{s}")
    def E(x, tag=None):
        for l in x.split("\n"):
            A(l)
            if l.startswith("ds_"): dq.append(tag)
    def put(x):
        if isinstance(x, str): E(x)
        elif x[0] == "vm": A(x[1]); vm.add(x[2])
        elif x[0] == "ds": E(x[1], x[2])
        elif x[0] == "lw":
            assert state["poll"] < 2
            if x[1] in dq: A(f"s_waitcnt lgkmcnt({min(15, dq[::-1].index(x[1]))})")
        elif x[0] == "wait": A(f"s_waitcnt vmcnt({vm.n(x[1])})")
        elif x[0] == "pbeg":
            assert state["poll"] == 0; state["poll"] = 1
        elif x[0] == "poll": A(pload(x[1])); state["poll"] = 2; state["lg"] = min(2, NP[x[1]])
        elif x[0] == "check":
            assert state["poll"] == 2; state["poll"] = 0; dq.clear()
            scheck(A, O, NP[x[1]], pload(x[1]), dict(x=0x010101, near=0x0101).get(x[1], 0x01010101), x[1] == "near")
        else: assert 0, x
    def stamp(i):
        n = len(A.lines); st(i)
        if state["poll"] == 2: A.lines[n:] = [l for l in A.lines[n:] if not l.startswith("s_waitcnt")]
    def sync(tag, i0):
        lg = 0
        if state["poll"] == 2:
            i = max(i for i in range(i0, len(A.lines)) if A.lines[i].startswith("ds_"))
            lg = state["lg"]; A.lines[i + 1:i + 1] = [f"ds_read_b32 v{VDUM}, v{VL16}"] * lg
        if tag: A(f"s_waitcnt vmcnt({vm.n(tag)}) lgkmcnt({lg})"); A("s_barrier")
        else: A(f"s_waitcnt lgkmcnt({lg})")
        dq.clear()
    i0 = len(A.lines)
    if h == 1 and opt.get("gp", 8): A("s_setprio 1")
    p2.gelus(A, h, opt, vm, consts(h))
    st(6)
    p2.feat_a(A)
    if h == 0:
        A("s_waitcnt lgkmcnt(0)"); p2.v_cvt(A)
    H = params(opt); ke = H["kend"]; est = slots(H); kc = H["kvchk"]; ks = H["kvsum"]
    F = {s: [] for s in range(-2, NS)}
    if h == 0:
        S = p2.k_consts() + p2.feat_b(0) + p2.kv_addrs(0) + p2.k_tail()
        w = [opt.get(f"k{i}", d) for i, d in enumerate([0, 40] + [100] * (ke + 1))]
    else:
        S = p2.feat_b(1)
        w = [opt.get(f"q{i}", d) for i, d in enumerate([0, 40] + [0] * (ke + 2) + [40] * (ks - ke - 4) + [20])]
        F[ke] += p2.kv_addrs(1)
    for i, c in enumerate(wsplit(S, w)):
        F[i - 2] += c
        if i < 3: assert not any("ds_write" in x for x in c)
        if h == 1 and i - 2 <= ke + 1: assert not any("v_fma" in x for x in c)
        if h == 1 and i - 2 >= kc + 3: assert not any(x in p2.pack(0) for x in c)
    def at(pos, X):
        s, f = divmod(pos + 200, 100); F[s - 2] = insert(F[s - 2] + [""] * (16 - len(F[s - 2])), f / 100, X)
    def mix(s, X):
        L = F[s] + [""] * (16 - len(F[s])); n = len(L)
        for k in reversed(range(len(X))): L[n * k // len(X):n * k // len(X)] = X[k]
        F[s] = L
    F[ke + 1] += p2.kv_mm(h); F[ke + 2] = p2.kv_pub(h) + F[ke + 2]
    F[H["oad"]] += o_addrs()
    GL, G = gather(h)
    G[0] = GL + G[0]
    mix(kc + 1, G[:3]); mix(kc + 2, G[3:6]); mix(kc + 3, G[6:])
    assert ks >= kc + 5
    GS = gather_sum(h); i5 = GS.index(("wait", "g7"))
    F[ks - 1] += GS[:i5]; F[ks] += GS[i5:]
    if h == 1:
        L, R = o_reads(); F[ks] += L
        for i, c in enumerate(wsplit(R + o_compute(), [1] * H["ono"])): F[ks + 1 + i] += c
    assert H["xl"] > ks + H["ono"]
    F[H["xl"]] += x_load(); F[H["xu"]] += x_unpack()
    ev = [(H["kvsig"], signal("kv", "kvp")), (H["kvpoll"], poll("kv")), (kc * 100 + 99, pcheck("kv"))]
    for k in range(4):
        H[f"o{k}"] = max(H["ochk"], 2599 + 400 * k)
        if k & 1 == h: ev += [(H["opoll"] if k == 0 else H[f"o{k}"] - 299, poll(f"o{k}")), (H[f"o{k}"], pcheck(f"o{k}"))]
    if not opt.get("nox"):
        for b in (1, 2, 3):
            s0 = H["xs"] + 2 * H["xd"] * (b - 1); s1 = s0 + H["xd"]
            F[s0] += xch_send(b, 0); F[s1] += xch_send(b, 1)
            F[s1 + H["xsig"]] += signal("x", f"xs{b}", b)
        ev += [(H["xpoll"], poll("x")), (H["xchk"] * 100 + 99, pcheck("x"))]
        F[H["xchk"] + 1] += [""] * 8 + xch_recv(1); F[H["xchk"] + 2] += xch_recv(2) + xch_recv(3)
        for i, c in enumerate(split(final(1) + final(2) + final(3), [1] * (NS - H["xadd"]))): F[H["xadd"] + i] += c
    if h == 0: ev += [(H["hsig"], signal("h0", "hs")), (H["p2"], poll("h")), (H["c2"], pcheck("h"))]
    else: ev += [(H["hsig1"], signal("h1", "hs")), (H["hpoll"], poll("near")), (H["hchk"], pcheck("near")), (H["p1"], poll("h1")), (H["c1"], pcheck("h1")),
                 (H["osig"], signal("o", "os")), (H["pr1"] * 100, ["s_setprio 1"])]
    for pos, X in sorted(ev, key=lambda e: -e[0]): at(pos, X)
    def known(k, own):
        s, f = divmod(H[dict(near="hchk", h1="c1", h="c2").get(k, k)], 100)
        return (s, k) if own and f < 90 else (s + 1, None)
    items = []
    n4 = opt.get("n4", 3)
    for g in range(3, NS):
        k = "near" if g < 7 else "h1" if g < 17 else "h" if g < NO else f"o{(g - NO) >> 2}"
        e = known(k, g < 3 + n4)
        if est[g] > e[0]: e = (est[g], None)
        if g < 3 + n4:
            if h == 1: items += [(g, 0, a_dma4(g, i), e) for i in range(4)]
        else: items += [(g, 0, a_dma(g, i), e) for i in range(2)]
        if g >= 6: items.append((g, 1, w_dma(g), (g - 6, None)))
    D = {}
    for s in range(-1, NS):
        c = (H["cap0"] if s < 1 else H["cap"] if s < NH else H["capn"]) - sum(x4(x) for x in F[s] if x[2:] != ("xr1",))
        av = [it for it in items if it[3][0] <= s][:max(c, 0)]
        for it in av:
            items.remove(it); assert s <= it[0] - 2, (s, it)
        D[s] = sorted(av, key=lambda it: it[3] == (s, it[3][1]) and it[3][1] is not None)
    assert not items
    if opt.get("v"):
        print(h, "slots", ASL)
        for s in range(-2, NS): print(f"  s{s}: cost {cost(F[s])} n {len(F[s])} dma", " ".join(f"{'AW'[it[1]]}{it[0]}" for it in D.get(s, [])), [x[:2] if x[0] != 'vm' else x[::2] for x in F[s] if isinstance(x, tuple) and x[0] in ("vm", "check", "wait", "poll")])
    live = {}
    def dpre(it):
        for p in it[2][0]:
            r = p.split()[1]
            if live.get(r) != p: A(p); live[r] = p
    def dins(it): A(it[2][1]); vm.add(f"d{it[0]}")

    for x in F[-2]: put(x)
    sync("d0", i0); i0 = len(A.lines)
    stamp(7); stamp(8); stamp(9)
    for r in reads(0): E(r)
    for x in F[-1]: put(x)
    for it in D[-1]: dpre(it); dins(it)
    win = opt.get("win")
    for s in range(NS):
        if s == NH: stamp(10)
        if win is not None and win < s <= win + 24: stamp(13 + 2 * (s - win))
        sync(f"d{s+1}" if s < NS - 1 else None, i0); i0 = len(A.lines)
        if opt.get("st") == 2:
            if win is None: stamp(14 + s)
            elif win <= s <= win + 24: stamp(14 + 2 * (s - win))
        M = mfmas(s); nm = len(M)
        rd = reads(s + 1) if s + 1 < NS else []
        per = 1 if nm == 16 else 2
        fl = list(F[s]); nf = len(fl); done = 0
        dep = [it for it in D[s] if it[3][0] == s and it[3][1]]; ind = [it for it in D[s] if it not in dep]
        lo = opt.get("dlo", 2) if nm == 16 else opt.get("dlon", 1); ic = nm - 1
        if s == H["xchk"] + 1: ic = 4; lo = 0
        if dep:
            j = fl.index(("check", dep[0][3][1]))
            ic = min(i for i in range(nm) if (nf * (i + 1) + nm - 1) // nm > j)
            assert ic < nm - 1
        dpos = {i: [] for i in range(nm)}
        lo = min(lo, ic)
        for k, it in enumerate(ind): dpos[lo + (2 * k + 1) * (ic - lo + 1) // (2 * len(ind))].append(it)
        for k, it in enumerate(dep): dpos[ic + 1 + k * (nm - ic - 1) // len(dep)].append(it)
        for i, m in enumerate(M):
            if dpos[i]: dpre(dpos[i][0])
            A(m)
            for _ in range(per):
                if rd: E(rd.pop(0))
            for k, it in enumerate(dpos[i]):
                if k: dpre(it)
                dins(it)
            while done < (nf * (i + 1) + nm - 1) // nm:
                put(fl[done]); done += 1
        assert not rd and done == nf
    st(11)
    final2(A)
```
